```python
import torch

def _softmax(x, axis=-1):
    return torch.softmax(x, dim=axis)
def _gelu(x):
    return torch.nn.functional.gelu(x, approximate="tanh")
def _silu(x):
    return torch.nn.functional.silu(x)
def _sigmoid(x):
    return torch.sigmoid(x)
def _layernorm(x, axis=-1, eps=1e-5):
    m = x.mean(dim=axis, keepdim=True)
    v = x.var(dim=axis, keepdim=True, unbiased=False)
    return (x - m) / torch.sqrt(v + eps)
def _scatter_add(tgt, idx, src, axis=0):
    return tgt.clone().index_add_(axis, idx, src)
def _segment_sum(src, seg, n):
    out = torch.zeros((n,) + src.shape[1:], dtype=src.dtype)
    return out.index_add_(0, seg, src)
def _pad(x, pw):
    flat = tuple(v for pair in reversed(pw) for v in pair)
    return torch.nn.functional.pad(x, flat)

kernel_name = 'recurrent_scan__grouped_kv_mqa__glu_gated_reglu__prompt'

def setup_inputs():

    _w = (lambda a: (lambda t: t.to(torch.bfloat16) if t.is_floating_point() else t)(torch.as_tensor(a)))
    def _A_setup():
        B, S, D, H = 1, 2048, 448, 16
        Dh = D // H
        return {
            "x": _w((lambda *s: torch.randn(*s, dtype=torch.bfloat16) * 0.05)(B, S, D)),
            "wq": _w((lambda *s: torch.randn(*s, dtype=torch.bfloat16) * 0.2)(D, H * Dh)),
            "wk": _w((lambda *s: torch.randn(*s, dtype=torch.bfloat16) * 0.2)(D, Dh)),
            "wv": _w((lambda *s: torch.randn(*s, dtype=torch.bfloat16) * 0.2)(D, Dh)),
            "wo": _w((lambda *s: torch.randn(*s, dtype=torch.bfloat16) * 0.2)(H * Dh, D)),
        }
    _A_in = _A_setup()

    def _B_setup():
        B, S, D, F = 1, 2048, 448, 1792
        return {
            "x": _w((lambda *s: torch.randn(*s, dtype=torch.bfloat16) * 0.05)(B, S, D)),
            "W_gate": _w((lambda *s: torch.randn(*s, dtype=torch.bfloat16) * 0.1)(D, F) * (2.0 / D) ** 0.5),
            "W_up": _w((lambda *s: torch.randn(*s, dtype=torch.bfloat16) * 0.1)(D, F) * (2.0 / D) ** 0.5),
            "W_down": _w((lambda *s: torch.randn(*s, dtype=torch.bfloat16) * 0.1)(F, D) * (1.0 / F) ** 0.5),
        }
    _B_in = _B_setup()

    return {
        "A_x": _A_in["x"],
        "A_wq": _A_in["wq"],
        "A_wk": _A_in["wk"],
        "A_wv": _A_in["wv"],
        "A_wo": _A_in["wo"],
        "B_x": _B_in["x"],
        "B_W_gate": _B_in["W_gate"],
        "B_W_up": _B_in["W_up"],
        "B_W_down": _B_in["W_down"],
    }

def reference(A_x, A_wq, A_wk, A_wv, A_wo, B_x, B_W_gate, B_W_up, B_W_down):
    def _A_ref(x, wq, wk, wv, wo):
        B, S, D = x.shape
        H = 16
        Dh = D // H
        q = (lambda x, *d: x.permute(*d))((x @ wq).reshape(B, S, H, Dh), 0, 2, 1, 3)
        k = x @ wk
        v = x @ wv
        scores = torch.einsum("bhqd,bkd->bhqk", q, k) * (Dh ** -0.5)
        p = _softmax(scores, axis=-1)
        o = torch.einsum("bhqk,bkd->bhqd", p, v)
        return (lambda x, *d: x.permute(*d))(o, 0, 2, 1, 3).reshape(B, S, H * Dh) @ wo

    def _B_ref(x, W_gate, W_up, W_down):
        gate = torch.einsum("bsd,df->bsf", x, W_gate)
        up = torch.einsum("bsd,df->bsf", x, W_up)
        gate = gate * (lambda x, dt: x.to(dt))(gate > 0, gate.dtype)
        h = gate * up
        return torch.einsum("bsf,fd->bsd", h, W_down)

    x = A_x
    xn = _layernorm(x, axis=-1)
    s = _A_ref(xn, A_wq, A_wk, A_wv, A_wo)
    g = _silu(_B_ref(xn, B_W_gate, B_W_up, B_W_down))
    return x + s * g
```

```python
import sys, math, struct

NAME = "recurrent_scan__grouped_kv_mqa__glu_gated_reglu__prompt"

WS_Q  = 0x0000000
WS_KV = 0x0200000
WS_H  = 0x0400000
WS_O  = 0x0C00000
WS_D  = 0x1000000

QSCALE = math.log2(math.e) / math.sqrt(28.0)

def f32bits(x):
    return struct.unpack("<I", struct.pack("<f", x))[0]

class Asm:
    def __init__(self):
        self.L = []
    def __call__(self, s):
        self.L.append("  " + s)
    def label(self, s):
        self.L.append(s + ":")
    def c(self, s):
        self.L.append("  ; " + s)
    def raw(self, s):
        self.L.append(s)
    def text(self):
        return "\n".join(self.L) + "\n"

def vr(b, n=1):
    return f"v{b}" if n == 1 else f"v[{b}:{b+n-1}]"
def ar(b, n=1):
    return f"a{b}" if n == 1 else f"a[{b}:{b+n-1}]"
def sr(b, n=1):
    return f"s{b}" if n == 1 else f"s[{b}:{b+n-1}]"

def kernel_head(a, name):
    a.raw(".text")
    a.raw(f".globl {name}")
    a.raw(".p2align 8")
    a.raw(f".type {name},@function")
    a.label(name)

def kernel_desc(a, name, vgpr, agpr, sgpr=96):
    acc = (vgpr + 3) // 4 * 4
    a.raw('.section .rodata,"a"')
    a.raw(".p2align 6")
    a.raw(f".amdhsa_kernel {name}")
    a.raw(f"  .amdhsa_next_free_vgpr {acc + agpr if agpr else vgpr}")
    a.raw(f"  .amdhsa_next_free_sgpr {sgpr}")
    a.raw(f"  .amdhsa_accum_offset {acc}")
    a.raw("  .amdhsa_group_segment_fixed_size 0")
    a.raw("  .amdhsa_kernarg_size 96")
    a.raw("  .amdhsa_user_sgpr_count 2")
    a.raw("  .amdhsa_user_sgpr_kernarg_segment_ptr 1")
    a.raw("  .amdhsa_system_sgpr_workgroup_id_x 1")
    a.raw(".end_amdhsa_kernel")

MFMA = "v_mfma_f32_32x32x16_bf16"
import os
STAMP = int(os.environ.get("STAMP", "0"))
STAMP_WG = int(os.environ.get("STAMP_WG", "0"))
def stamp(a, i):
    if STAMP:
        a(f"s_memtime s[{64+2*i}:{65+2*i}]")
def stamp_flush(a, n, tag, vtmp=1):
    if not STAMP:
        return
    a("s_waitcnt lgkmcnt(0) vmcnt(0)")
    a(f"s_memtime s[{64+2*n}:{65+2*n}]")
    a(f"s_load_dwordx2 s[62:63], s[0:1], 80")
    a("s_waitcnt lgkmcnt(0)")
    a(f"s_cmp_lg_u32 s2, {STAMP_WG}")
    a(f"s_cbranch_scc1 L_nostamp{tag}")
    a("v_cmp_eq_u32 vcc, 0, v0")
    a("s_and_saveexec_b64 s[60:61], vcc")
    a(f"s_cbranch_execz L_nostamp{tag}")
    a(f"v_mov_b32 v{vtmp+1}, 0")
    for i in range(1, n + 1):
        a(f"s_sub_u32 s59, s{64+2*i}, s64")
        a(f"v_mov_b32 v{vtmp}, s59")
        a(f"global_store_dword v{vtmp+1}, v{vtmp}, s[62:63] offset:{4*i}")
    a.label(f"L_nostamp{tag}")

K1_KPS   = 4
K1_NST   = 7
K1_NSLOT = 5
K1_R1    = 16384
K1_SLOT  = 32768
K1_LDS   = K1_NSLOT * K1_SLOT
XAHEAD   = 4
KVT      = 6144

def k1(a):
    name = "k1_kernel"
    kernel_head(a, name)
    V_TA = 1
    V_STR = 9
    V_RINV, V_NEGM = 10, 11
    V_A0, V_A1 = 12, 14
    V_T = 16
    V_XN = 24
    V_X = 32
    V_ACC = 144
    V_XO = V_T
    V_XA = V_T + 4
    V_S0, V_S1, V_Q0, V_Q1 = 24, 25, 26, 27
    V_LANE = 28
    P = V_ACC
    def acc(t):
        return vr(V_ACC + 16 * t, 16) if t < 7 else ar(64, 16)
    def frag(buf, t, half=None):
        b = buf * 32 + t * 4
        return ar(b, 4) if half is None else ar(b + 2 * half, 2)
    S_X, S_WQ, S_WK, S_WV, S_WG, S_WU, S_WS = 4, 6, 8, 10, 12, 14, 16
    S_RB, S_CB, S_W, S_T0, S_T1, S_T2, S_T3 = 20, 21, 22, 23, 24, 25, 26
    S_MASK, S_ONES = 27, 29
    S_IT, S_IDX, S_M0, S_DSLOT, S_WRAP, S_FWD = 30, 31, 32, 33, 34, 35

    a("s_cmp_ge_u32 s2, 256")
    a("s_cbranch_scc1 L_k1_end")
    stamp(a, 0)
    a(f"s_load_dwordx4 s[4:7], s[0:1], 0")
    a(f"s_load_dwordx4 s[8:11], s[0:1], 16")
    a(f"s_load_dwordx4 s[12:15], s[0:1], 48")
    a(f"s_load_dwordx2 s[16:17], s[0:1], 88")
    a(f"s_and_b32 s{S_T0}, s2, 7")
    a(f"s_lshr_b32 s{S_T1}, s2, 3")
    a(f"s_and_b32 s{S_RB}, s{S_T0}, 1")
    a(f"s_lshl_b32 s{S_RB}, s{S_RB}, 3")
    a(f"s_and_b32 s{S_T2}, s{S_T1}, 7")
    a(f"s_add_u32 s{S_RB}, s{S_RB}, s{S_T2}")
    a(f"s_lshr_b32 s{S_CB}, s{S_T0}, 1")
    a(f"s_lshl_b32 s{S_CB}, s{S_CB}, 2")
    a(f"s_lshr_b32 s{S_T2}, s{S_T1}, 3")
    a(f"s_add_u32 s{S_CB}, s{S_CB}, s{S_T2}")
    a(f"v_lshrrev_b32 v{P}, 6, v0")
    a(f"v_and_b32 v{V_LANE}, 63, v0")
    a(f"v_readfirstlane_b32 s{S_W}, v{P}")
    a(f"s_mov_b32 s{S_MASK}, 0xffff0000")
    a(f"s_mov_b32 s{S_ONES}, 0x3f803f80")
    a(f"s_lshl_b32 s{S_T0}, s{S_RB}, 7")
    a(f"s_lshl_b32 s{S_T1}, s{S_W}, 5")
    a(f"s_add_u32 s{S_T0}, s{S_T0}, s{S_T1}")
    a(f"v_lshrrev_b32 v{P}, 3, v{V_LANE}")
    a(f"v_add_u32 v{P+1}, s{S_T0}, v{P}")
    a(f"v_mul_u32_u24 v{P+1}, 896, v{P+1}")
    a(f"v_lshrrev_b32 v{P+2}, 1, v{P}")
    a(f"v_and_b32 v{P+3}, 7, v{V_LANE}")
    a(f"v_xor_b32 v{P+2}, v{P+2}, v{P+3}")
    a(f"v_xor_b32 v{P+3}, 4, v{P+2}")
    a(f"v_lshl_add_u32 v{V_XO}, v{P+2}, 4, v{P+1}")
    a(f"v_lshl_add_u32 v{V_XO+1}, v{P+3}, 4, v{P+1}")
    a(f"v_add_u32 v{V_XO+1}, {8*896}, v{V_XO+1}")
    a(f"v_add_u32 v{V_XO+2}, {16*896}, v{V_XO}")
    a(f"v_add_u32 v{V_XO+3}, {16*896}, v{V_XO+1}")
    a(f"s_lshl_b32 s{S_M0}, s{S_W}, 10")
    def piece_addr(n):
        return (n >> 3) * K1_SLOT + (n & 1) * K1_R1 + ((n >> 1) & 3) * 4096
    def x_dma(c):
        for g in range(4):
            a(f"s_add_u32 m0, s{S_M0}, {piece_addr(12 + 4*c + g) - 128*c}")
            a("s_nop 0")
            a(f"global_load_lds_dwordx4 v{V_XO+g}, s[{S_X}:{S_X+1}] offset:{128*c}")
    a("s_waitcnt lgkmcnt(0)")
    for c in range(XAHEAD):
        x_dma(c)
    a(f"v_lshrrev_b32 v{P}, 4, v{V_LANE}")
    a(f"v_bfe_u32 v{P+1}, v{V_LANE}, 1, 3")
    a(f"v_lshlrev_b32 v{P+2}, 1, v{P}")
    a(f"v_xor_b32 v{P+1}, v{P+1}, v{P+2}")
    a(f"s_lshl_b32 s{S_T1}, s{S_W}, 2")
    a(f"v_add_u32 v{P+3}, s{S_T1}, v{P}")
    a(f"v_and_b32 v{P+4}, 1, v{V_LANE}")
    a(f"v_bfe_u32 v{P+5}, v{V_LANE}, 2, 2")
    a(f"v_lshlrev_b32 v{P+6}, 8, v{P+5}")
    a(f"v_lshrrev_b32 v{P+7}, 5, v{V_LANE}")
    a(f"v_lshl_add_u32 v{P+6}, v{P+7}, 11, v{P+6}")
    a(f"v_lshlrev_b32 v{P+5}, 1, v{P+5}")
    a(f"v_bfe_u32 v{P+7}, v{V_LANE}, 4, 1")
    a(f"v_and_b32 v{P+8}, 1, v{V_LANE}")
    a(f"v_bfe_u32 v{P+9}, v{V_LANE}, 1, 1")
    a(f"v_lshl_add_u32 v{P+6}, v{P+9}, 3, v{P+6}")
    a(f"s_cmp_ge_u32 s{S_CB}, 14")
    a("s_cbranch_scc1 L_k1_qsetup")
    a(f"v_lshl_add_u32 v{P+6}, v{P+7}, 14, v{P+6}")
    a(f"v_lshl_add_u32 v{P+6}, v{P+8}, 4, v{P+6}")
    a(f"v_add_u32 v{P+5}, v{P+5}, v{P+7}")
    for t in range(8):
        a(f"v_xor_b32 v{P+10}, {t}, v{P+5}")
        a(f"v_lshl_add_u32 v{V_TA+t}, v{P+10}, 5, v{P+6}")
    a(f"v_mul_u32_u24 v{P+3}, 3584, v{P+3}")
    a(f"v_lshl_add_u32 v{P+3}, v{P+4}, 4, v{P+3}")
    a(f"s_lshl_b32 s{S_T1}, s{S_CB}, 8")
    a(f"v_add_u32 v{P+3}, s{S_T1}, v{P+3}")
    a(f"v_lshl_add_u32 v{P+10}, v{P+1}, 5, v{P+3}")
    a(f"v_xor_b32 v{P+1}, 1, v{P+1}")
    a(f"v_lshl_add_u32 v{P+11}, v{P+1}, 5, v{P+3}")
    a(f"v_mov_b32 v{V_A0+1}, s{S_WG+1}")
    a(f"v_add_co_u32 v{V_A0}, vcc, s{S_WG}, v{P+10}")
    a(f"v_addc_co_u32 v{V_A0+1}, vcc, 0, v{V_A0+1}, vcc")
    a(f"v_mov_b32 v{V_A1+1}, s{S_WU+1}")
    a(f"v_add_co_u32 v{V_A1}, vcc, s{S_WU}, v{P+11}")
    a(f"v_addc_co_u32 v{V_A1+1}, vcc, 0, v{V_A1+1}, vcc")
    a(f"v_mov_b32 v{V_STR}, {16*3584}")
    a("s_branch L_k1_dma0")
    a.label("L_k1_qsetup")
    a(f"v_lshl_add_u32 v{P+6}, v{P+7}, 4, v{P+6}")
    a(f"v_add_u32 v{P+5}, v{P+5}, v{P+8}")
    for t in range(4):
        a(f"v_xor_b32 v{P+10}, {2*t}, v{P+5}")
        a(f"v_lshl_add_u32 v{V_TA+t}, v{P+10}, 5, v{P+6}")
        a(f"v_add_u32 v{V_TA+4+t}, {K1_R1}, v{V_TA+t}")
    a(f"v_mul_u32_u24 v{P+10}, 896, v{P+3}")
    a(f"v_lshl_add_u32 v{P+10}, v{P+1}, 5, v{P+10}")
    a(f"v_lshl_add_u32 v{P+10}, v{P+4}, 4, v{P+10}")
    a(f"s_sub_u32 s{S_T1}, s{S_CB}, 14")
    a(f"s_lshl_b32 s{S_T1}, s{S_T1}, 9")
    a(f"v_add_u32 v{P+10}, s{S_T1}, v{P+10}")
    a(f"v_mov_b32 v{V_A0+1}, s{S_WQ+1}")
    a(f"v_add_co_u32 v{V_A0}, vcc, s{S_WQ}, v{P+10}")
    a(f"v_addc_co_u32 v{V_A0+1}, vcc, 0, v{V_A0+1}, vcc")
    a(f"v_add_co_u32 v{V_A1}, vcc, 0x100, v{V_A0}")
    a(f"v_addc_co_u32 v{V_A1+1}, vcc, 0, v{V_A0+1}, vcc")
    a(f"v_mov_b32 v{V_STR}, {16*896}")
    a(f"s_cmp_eq_u32 s{S_CB}, 14")
    a("s_cbranch_scc1 L_k1_dma0")
    a(f"v_mul_u32_u24 v{P+10}, 56, v{P+3}")
    a(f"v_lshl_add_u32 v{P+11}, v{P+4}, 3, v{P+10}")
    a(f"v_add_u32 v{P+11}, 32, v{P+11}")
    a(f"v_lshl_add_u32 v{P+10}, v{P+4}, 4, v{P+10}")
    a(f"v_and_b32 v{P+12}, 1, v{P+1}")
    a(f"v_cmp_eq_u32 vcc, 1, v{P+12}")
    a(f"v_mov_b32 v{P+12}, s{S_WK}")
    a(f"v_mov_b32 v{P+13}, s{S_WK+1}")
    a(f"v_cndmask_b32 v{P+10}, v{P+10}, v{P+11}, vcc")
    a(f"v_mov_b32 v{P+14}, s{S_WV}")
    a(f"v_mov_b32 v{P+15}, s{S_WV+1}")
    a(f"v_cmp_le_u32 vcc, 6, v{P+1}")
    a("s_nop 1")
    a(f"v_cndmask_b32 v{P+12}, v{P+12}, v{P+14}, vcc")
    a(f"v_cndmask_b32 v{P+13}, v{P+13}, v{P+15}, vcc")
    a(f"v_add_co_u32 v{P+12}, vcc, v{P+12}, v{P+10}")
    a(f"v_addc_co_u32 v{P+13}, vcc, 0, v{P+13}, vcc")
    a(f"v_cmp_le_u32 vcc, 4, v{P+1}")
    a(f"v_mov_b32 v{P+14}, {16*56}")
    a("s_nop 0")
    a(f"v_cndmask_b32 v{V_A1}, v{V_A1}, v{P+12}, vcc")
    a(f"v_cndmask_b32 v{V_A1+1}, v{V_A1+1}, v{P+13}, vcc")
    a(f"v_cndmask_b32 v{V_STR}, v{V_STR}, v{P+14}, vcc")
    a(f"v_and_b32 v{P+10}, 19, v{V_LANE}")
    a(f"v_cmp_eq_u32 vcc, 17, v{P+10}")
    a(f"v_add_u32 v{P+11}, 8, v{V_TA+6}")
    a(f"v_add_u32 v{P+12}, 8, v{V_TA+7}")
    a(f"v_cndmask_b32 v{V_TA+6}, v{V_TA+6}, v{P+11}, vcc")
    a(f"v_cndmask_b32 v{V_TA+7}, v{V_TA+7}, v{P+12}, vcc")
    a.label("L_k1_dma0")
    a(f"s_cmp_ge_u32 s{S_CB}, 14")
    a(f"s_movk_i32 s{S_T0}, {16*896}")
    a(f"s_mov_b32 s{S_T3}, {16*3584}")
    a(f"s_cselect_b32 s{S_T3}, s{S_T0}, s{S_T3}")

    def dma_unit(imm):
        a(f"s_add_u32 m0, s{S_M0}, {imm}")
        a("s_nop 0")
        a(f"global_load_lds_dwordx4 v[{V_A0}:{V_A0+1}], off")
        a(f"s_add_u32 m0, s{S_M0}, {imm + K1_R1}")
        a(f"v_add_co_u32 v{V_A0}, vcc, s{S_T3}, v{V_A0}")
        a(f"v_addc_co_u32 v{V_A0+1}, vcc, 0, v{V_A0+1}, vcc")
        a(f"global_load_lds_dwordx4 v[{V_A1}:{V_A1+1}], off")
        a(f"v_add_co_u32 v{V_A1}, vcc, v{V_A1}, v{V_STR}")
        a(f"v_addc_co_u32 v{V_A1+1}, vcc, 0, v{V_A1+1}, vcc")
    stamp(a, 1)
    a(f"v_bfe_u32 v{P}, v{V_LANE}, 4, 1")
    a(f"v_lshlrev_b32 v{P}, 12, v{P}")
    a(f"v_bfe_u32 v{P+1}, v{V_LANE}, 3, 1")
    a(f"v_lshl_add_u32 v{P}, v{P+1}, 14, v{P}")
    a(f"v_and_b32 v{P+1}, 7, v{V_LANE}")
    a(f"v_lshl_add_u32 v{P}, v{P+1}, 7, v{P}")
    a(f"v_add_u32 v{P}, s{S_M0}, v{P}")
    a(f"v_bfe_u32 v{P+1}, v{V_LANE}, 1, 3")
    a(f"v_lshrrev_b32 v{P+2}, 5, v{V_LANE}")
    a(f"v_xor_b32 v{P+1}, v{P+1}, v{P+2}")
    for i in range(4):
        a(f"v_xor_b32 v{P+2}, {2*i}, v{P+1}")
        a(f"v_lshl_add_u32 v{V_XA+i}, v{P+2}, 4, v{P}")
    for r in range(V_ACC, 256):
        a(f"v_mov_b32 v{r}, 0")
    for r in range(64, 80):
        a(f"v_accvgpr_write_b32 a{r}, 0")
    for r in (V_S0, V_S1, V_Q0, V_Q1):
        a(f"v_mov_b32 v{r}, 0")
    stamp(a, 2)
    def stats(c):
        if c < 6:
            a("s_waitcnt lgkmcnt(4)")
        for i in range(16):
            x = V_X + 16 * c + i
            a(f"v_dot2_f32_bf16 v{V_Q0 + (i&1)}, v{x}, v{x}, v{V_Q0 + (i&1)}")
            a(f"v_dot2_f32_bf16 v{V_S0 + (i&1)}, v{x}, s{S_ONES}, v{V_S0 + (i&1)}")
    xbase = 0
    groups = [("x", c) for c in range(XAHEAD, 7)] + [("w", n) for n in range(0, 12, 4)]
    issued = 4 * XAHEAD
    for c in range(7):
        cb_ = piece_addr(12 + 4 * c)
        if cb_ - xbase > 65535 - 32768:
            for i in range(4):
                a(f"v_add_u32 v{V_XA+i}, {cb_ - xbase}, v{V_XA+i}")
            xbase = cb_
        a(f"s_waitcnt vmcnt({issued - 4*(c+1)})")
        for i in range(4):
            a(f"ds_read_b128 {vr(V_X+16*c+4*i,4)}, v{V_XA+i} offset:{cb_ - xbase}")
        if groups:
            kind, n = groups.pop(0)
            if kind == "x":
                x_dma(n)
            else:
                dma_unit(piece_addr(n)); dma_unit(piece_addr(n + 2))
            issued += 4
        if c > 0:
            stats(c - 1)
    assert not groups
    a("s_waitcnt lgkmcnt(0)")
    dma_unit(piece_addr(12)); dma_unit(piece_addr(14))
    stats(6)
    a("s_nop 2")
    a(f"v_add_f32 v{V_S0}, v{V_S0}, v{V_S1}")
    a(f"v_add_f32 v{V_Q0}, v{V_Q0}, v{V_Q1}")
    a(f"v_mov_b32 v{V_S1}, v{V_S0}")
    a(f"v_mov_b32 v{V_Q1}, v{V_Q0}")
    a("s_nop 1")
    a(f"v_permlane32_swap_b32 v{V_S0}, v{V_S1}")
    a(f"v_permlane32_swap_b32 v{V_Q0}, v{V_Q1}")
    a("s_nop 1")
    a(f"v_add_f32 v{V_S0}, v{V_S0}, v{V_S1}")
    a(f"v_add_f32 v{V_Q0}, v{V_Q0}, v{V_Q1}")
    a(f"v_mul_f32 v{V_S0}, {hex(f32bits(1.0/448))}, v{V_S0}")
    a(f"v_mul_f32 v{V_Q0}, {hex(f32bits(1.0/448))}, v{V_Q0}")
    a(f"v_fma_f32 v{V_Q0}, -v{V_S0}, v{V_S0}, v{V_Q0}")
    a(f"v_max_f32 v{V_Q0}, 0, v{V_Q0}")
    a(f"v_cvt_pk_bf16_f32 v{V_S1}, v{V_S0}, v{V_Q0}")
    a(f"v_lshlrev_b32 v{V_NEGM}, 16, v{V_S1}")
    a(f"v_xor_b32 v{V_NEGM}, 0x80000000, v{V_NEGM}")
    a(f"v_and_b32 v{V_Q0}, 0xffff0000, v{V_S1}")
    a(f"v_add_f32 v{V_Q0}, {hex(f32bits(1e-5))}, v{V_Q0}")
    a(f"v_cvt_pk_bf16_f32 v{V_Q0}, v{V_Q0}, v{V_Q0}")
    a(f"v_and_b32 v{V_Q0}, 0xffff0000, v{V_Q0}")
    a(f"v_sqrt_f32 v{V_Q0}, v{V_Q0}")
    a("s_nop 0")
    a(f"v_cvt_pk_bf16_f32 v{V_Q0}, v{V_Q0}, v{V_Q0}")
    a(f"v_and_b32 v{V_Q0}, 0xffff0000, v{V_Q0}")
    a(f"v_rcp_f32 v{V_RINV}, v{V_Q0}")
    a("s_nop 0")
    a(f"v_mul_f32 v{V_NEGM}, v{V_NEGM}, v{V_RINV}")

    def norm_ops(buf):
        g1 = [f"s_set_gpr_idx_on s{S_IDX}, gpr_idx(SRC1)"]
        for i in range(2):
            g1.append(f"v_lshlrev_b32 v{V_T+2*i}, 16, v{V_X+i}")
            g1.append(f"v_and_b32 v{V_T+2*i+1}, s{S_MASK}, v{V_X+i}")
        g1.append("s_set_gpr_idx_off")
        g2 = [f"s_set_gpr_idx_on s{S_IDX}, gpr_idx(SRC1)"]
        for i in range(2, 4):
            g2.append(f"v_lshlrev_b32 v{V_T+2*i}, 16, v{V_X+i}")
            g2.append(f"v_and_b32 v{V_T+2*i+1}, s{S_MASK}, v{V_X+i}")
        g2.append("s_set_gpr_idx_off")
        g2.append(f"s_add_u32 s{S_IDX}, s{S_IDX}, 4")
        f = [f"v_fma_f32 v{V_T+i}, v{V_T+i}, v{V_RINV}, v{V_NEGM}" for i in range(8)]
        cv = [f"v_cvt_pk_bf16_f32 v{V_XN+4*buf+i}, v{V_T+2*i}, v{V_T+2*i+1}" for i in range(4)]
        return g1, g2, f[0:4], f[4:8], cv

    def tr_reads(buf, j):
        out = []
        for t in range(8):
            for half in range(2):
                out.append(f"ds_read_b64_tr_b16 {frag(buf,t,half)}, v{V_TA+t} offset:{j*4096 + half*1024}")
        return out

    stamp(a, 3)
    a(f"s_waitcnt vmcnt(8)")
    a("s_barrier")
    for ins in tr_reads(0, 0):
        a(ins)
    a(f"s_mov_b32 s{S_IDX}, 0")
    for g in norm_ops(0):
        for ins in g:
            a(ins)
        a("s_nop 1")
    stamp(a, 4)
    a(f"s_mov_b32 s{S_IT}, 0")
    a(f"s_mov_b32 s{S_WRAP}, {(-(K1_NSLOT-1)*K1_SLOT) & 0xffffffff}")
    a(f"s_mov_b32 s{S_FWD}, {K1_SLOT}")
    a(f"s_add_u32 s{S_M0}, s{S_M0}, {2*K1_SLOT}")

    def main_loop(tag, swapv):
        a.label(f"L_k1_main{tag}")
        for j in range(K1_KPS):
            cur, nxt = j & 1, (j & 1) ^ 1
            last = (j == K1_KPS - 1)
            a("s_waitcnt lgkmcnt(0)")
            if last:
                a(f"s_cmp_le_u32 s{S_IT}, {K1_NST-3}")
                a(f"s_cbranch_scc1 L_k1_w{tag}")
                a("s_waitcnt vmcnt(0)")
                a.label(f"L_k1_w{tag}")
                a(f"s_waitcnt vmcnt(6)")
                a("s_barrier")
                a(f"s_cmp_eq_u32 s{S_IT}, {K1_NSLOT-1}")
                a(f"s_cselect_b32 s{S_T0}, s{S_WRAP}, s{S_FWD}")
            rd = tr_reads(nxt, 0 if last else j + 1)
            if last:
                rd2 = []
                for t in range(8):
                    rd2.append(f"v_add_u32 v{V_TA+t}, s{S_T0}, v{V_TA+t}")
                    rd2 += rd[2*t:2*t+2]
                rdg = [rd2[0:6], rd2[6:9], rd2[9:12], rd2[12:15], rd2[15:18], rd2[18:21], rd2[21:24]]
            else:
                rdg = [rd[0:4], rd[4:6], rd[6:8], rd[8:10], rd[10:12], rd[12:14], rd[14:16]]
            g1, g2, g3, g4, g5 = norm_ops(nxt)
            EXP = os.environ.get("EXP", "")
            if "nonorm" in EXP:
                g1, g2, g3, g4, g5 = [], [], [], [], []
            if "nord" in EXP:
                rdg = [[x for x in g if "ds_read" not in x] for g in rdg]
            fill = [rdg[0], g1 + rdg[1], g2 + rdg[2], g3 + rdg[3], g4 + rdg[4], g5 + rdg[5], rdg[6], []]
            for t in range(8):
                A_, B_ = frag(cur, t), vr(V_XN + 4 * cur, 4)
                if swapv and t == 7:
                    A_, B_ = B_, A_
                a(f"{MFMA} {acc(t)}, {A_}, {B_}, {acc(t)}")
                for ins in fill[t]:
                    a(ins)
                if t == 6:
                    a(f"s_cmp_gt_u32 s{S_IT}, {K1_NST-3}")
                    a(f"s_cbranch_scc1 L_k1_nodma{tag}{j}")
                    dma_unit(j * 4096)
                    if last:
                        a(f"s_cmp_eq_u32 s{S_IT}, {K1_NSLOT-3}")
                        a(f"s_cselect_b32 s{S_T1}, s{S_WRAP}, s{S_FWD}")
                        a(f"s_add_u32 s{S_M0}, s{S_M0}, s{S_T1}")
                    a.label(f"L_k1_nodma{tag}{j}")
        a(f"s_add_u32 s{S_IT}, s{S_IT}, 1")
        a(f"s_cmp_lt_u32 s{S_IT}, {K1_NST}")
        a(f"s_cbranch_scc1 L_k1_main{tag}")

    a(f"s_cmp_eq_u32 s{S_CB}, 15")
    a("s_cbranch_scc1 L_k1_mainv")
    main_loop("a", False)
    a("s_branch L_k1_epi")
    main_loop("v", True)
    a.label("L_k1_epi")
    stamp(a, 5)
    a("s_waitcnt lgkmcnt(0)")
    a(f"v_and_b32 v{V_LANE}, 63, v0")
    a(f"s_lshl_b32 s{S_T0}, s{S_RB}, 2")
    a(f"s_add_u32 s{S_T0}, s{S_T0}, s{S_W}")
    a("s_nop 15")
    V_A7 = V_X
    for r in range(16):
        a(f"v_accvgpr_read_b32 v{V_A7+r}, a{64+r}")
    def accv(t):
        return V_ACC + 16 * t if t < 7 else V_A7
    V_O = V_X + 16
    a(f"s_cmp_ge_u32 s{S_CB}, 14")
    a("s_cbranch_scc1 L_k1_epiq")
    a(f"s_mul_i32 s{S_T0}, s{S_T0}, 112")
    a(f"s_lshl_b32 s{S_T1}, s{S_CB}, 3")
    a(f"s_add_u32 s{S_T0}, s{S_T0}, s{S_T1}")
    a(f"s_lshl_b32 s{S_T0}, s{S_T0}, 10")
    a(f"s_add_u32 s{S_T0}, s{S_T0}, {WS_H + 4096}")
    a(f"v_lshlrev_b32 v{V_T}, 4, v{V_LANE}")
    a(f"v_add_u32 v{V_T}, s{S_T0}, v{V_T}")
    for t in range(8):
        b = accv(t)
        o = V_O + 4 * t
        for r in range(8):
            a(f"v_max_f32 v{b+r}, 0, v{b+r}")
        for r in range(8):
            a(f"v_mul_f32 v{b+r}, v{b+r}, v{b+8+r}")
        for r in range(4):
            a(f"v_cvt_pk_bf16_f32 v{o+r}, v{b+2*r}, v{b+2*r+1}")
        a(f"global_store_dwordx4 v{V_T}, {vr(o,4)}, s[{S_WS}:{S_WS+1}] offset:{t*1024 - 4096}")
    stamp(a, 6)
    stamp_flush(a, 7, "k1a")
    a("s_endpgm")
    a.label("L_k1_epiq")
    a(f"s_mul_i32 s{S_T1}, s{S_T0}, {56*512}")
    a(f"s_sub_u32 s{S_T2}, s{S_CB}, 14")
    a(f"s_lshl_b32 s{S_T2}, s{S_T2}, 14")
    a(f"s_add_u32 s{S_T1}, s{S_T1}, s{S_T2}")
    a(f"s_add_u32 s{S_T1}, s{S_T1}, {WS_Q + 4096}")
    a(f"v_and_b32 v{V_T+4}, 31, v{V_LANE}")
    a(f"v_lshrrev_b32 v{V_T+5}, 5, v{V_LANE}")
    a(f"v_lshlrev_b32 v{V_T+6}, 4, v{V_T+4}")
    a(f"v_lshl_add_u32 v{V_T+6}, v{V_T+5}, 10, v{V_T+6}")
    a(f"v_add_u32 v{V_T}, s{S_T1}, v{V_T+6}")
    a(f"v_add_u32 v{V_T+1}, 8192, v{V_T}")
    a(f"v_mov_b32 v{V_T+2}, {hex(f32bits(QSCALE))}")
    def q_tile(t):
        b = accv(t)
        o = V_O + 8 * t
        for r in range(8):
            a(f"v_pk_mul_f32 {vr(b+2*r,2)}, {vr(b+2*r,2)}, {vr(V_T+2,2)} op_sel_hi:[1,0]")
        for r in range(8):
            a(f"v_cvt_pk_bf16_f32 v{o+r}, v{b+2*r}, v{b+2*r+1}")
        va = V_T + (t >> 2)
        off = (t & 3) * 2048 - 4096
        a(f"global_store_dwordx4 v{va}, {vr(o,4)}, s[{S_WS}:{S_WS+1}] offset:{off}")
        a(f"global_store_dwordx4 v{va}, {vr(o+4,4)}, s[{S_WS}:{S_WS+1}] offset:{off+512}")
    for t in range(6):
        q_tile(t)
    a(f"s_cmp_eq_u32 s{S_CB}, 15")
    a("s_cbranch_scc1 L_k1_epikv")
    q_tile(6)
    q_tile(7)
    a("s_endpgm")
    a.label("L_k1_epikv")
    a(f"s_mul_i32 s{S_T0}, s{S_T0}, {KVT}")
    a(f"s_add_u32 s{S_T0}, s{S_T0}, {WS_KV + 2048}")
    a(f"v_add_u32 v{V_T+2}, s{S_T0}, v{V_T+6}")
    b = accv(6); o = V_O + 48
    for r in range(8):
        a(f"v_cvt_pk_bf16_f32 v{o+r}, v{b+2*r}, v{b+2*r+1}")
    a(f"v_mov_b32 v{V_T+3}, 0x3f803f80")
    a(f"v_mov_b32 v{V_T+7}, 0x00003f80")
    a(f"v_cmp_eq_u32 vcc, 1, v{V_T+5}")
    a("s_nop 1")
    a(f"v_cndmask_b32 v{o+6}, v{o+6}, v{V_T+3}, vcc")
    a(f"v_cndmask_b32 v{o+7}, v{o+7}, v{V_T+7}, vcc")
    a(f"v_mov_b32 v{V_T+7}, 0")
    a(f"global_store_dwordx4 v{V_T+2}, {vr(o,4)}, s[{S_WS}:{S_WS+1}] offset:-2048")
    a(f"global_store_dwordx4 v{V_T+2}, {vr(o+4,4)}, s[{S_WS}:{S_WS+1}] offset:-1536")
    for q in range(3):
        cs = q + 1
        a(f"global_store_dwordx2 v{V_T+2}, {vr(o+2*q,2)}, s[{S_WS}:{S_WS+1}] offset:{(cs>>1)*512 + (cs&1)*8}")
    a(f"v_mov_b32 v{V_T+3}, 1024")
    a(f"v_mov_b32 v{V_T+1}, -1024")
    a(f"v_cndmask_b32 v{V_T+3}, v{V_T+3}, v{V_T+1}, vcc")
    a(f"v_add_u32 v{V_T+3}, v{V_T+3}, v{V_T+2}")
    a(f"global_store_dwordx2 v{V_T+3}, {vr(o+6,2)}, s[{S_WS}:{S_WS+1}]")
    b = accv(7); o = V_O + 56
    for r in range(8):
        a(f"v_cvt_pk_bf16_f32 v{o+r}, v{b+2*r}, v{b+2*r+1}")
    a(f"v_mov_b32 v{V_T+3}, 0x3f803f80")
    a(f"v_cmp_eq_u32 vcc, 28, v{V_T+4}")
    a("s_nop 1")
    a(f"v_cndmask_b32 v{V_T+3}, v{V_T+7}, v{V_T+3}, vcc")
    a(f"v_cmp_le_u32 vcc, 28, v{V_T+4}")
    a("s_nop 1")
    for r in range(8):
        a(f"v_cndmask_b32 v{o+r}, v{o+r}, v{V_T+3}, vcc")
    a(f"v_lshlrev_b32 v{V_T+2}, 4, v{V_LANE}")
    a(f"v_add_u32 v{V_T+2}, s{S_T0}, v{V_T+2}")
    a(f"global_store_dwordx4 v{V_T+2}, {vr(o,4)}, s[{S_WS}:{S_WS+1}] offset:2048")
    a(f"global_store_dwordx4 v{V_T+2}, {vr(o+4,4)}, s[{S_WS}:{S_WS+1}] offset:3072")
    a.label("L_k1_end")
    a("s_endpgm")
    kernel_desc(a, name, 256, 80)
    return (name, 256, 256, K1_LDS)


AT_LDS = 4 * 4 * 4096 + 4 * 4 * 256

def attn_body(a, S_W, S_WS, S_RT, S_HG, sb, ldsbase=0):
    V_LANE, V_KO, V_VO = 1, 2, 3
    V_T = 4
    V_M = 12
    V_Q = 16
    V_O = 48
    V_S = 112
    V_P = 144
    V_KV = 160
    S_SRD = sb
    S_OFF, S_IT, S_PASS, S_T0, S_T1, S_PAR = sb + 4, sb + 5, sb + 6, sb + 7, sb + 8, sb + 9
    S_EX = sb + 10
    def Qf(g, t): return vr(V_Q + 8 * g + 4 * t, 4)
    def Kf(b, t): return vr(V_KV + 16 * b + 4 * t, 4)
    def Vf(b, t): return vr(V_KV + 16 * b + 8 + 4 * t, 4)
    def O(g): return vr(V_O + 16 * g, 16)
    def S(i): return vr(V_S + 16 * i, 16)

    a(f"v_and_b32 v{V_LANE}, 63, v0")
    a(f"s_and_b32 s{S_PAR}, s{S_HG}, 1")
    a(f"s_mul_i32 s{S_T0}, s{S_W}, {16*KVT}")
    a(f"s_add_u32 s{S_T0}, s{S_T0}, {WS_KV}")
    a(f"s_add_u32 s{S_SRD}, s{S_WS}, s{S_T0}")
    a(f"s_addc_u32 s{S_SRD+1}, s{S_WS+1}, 0")
    a(f"s_and_b32 s{S_SRD+1}, s{S_SRD+1}, 0xffff")
    a(f"s_mov_b32 s{S_SRD+2}, {16*KVT}")
    a(f"s_mov_b32 s{S_SRD+3}, 0x00020000")
    a(f"v_lshlrev_b32 v{V_KO}, 4, v{V_LANE}")
    a(f"v_add_u32 v{V_VO}, 4096, v{V_KO}")
    a(f"s_lshr_b32 s{S_T0}, s{S_HG}, 1")
    a(f"s_mul_i32 s{S_T0}, s{S_T0}, 28")
    a(f"s_mul_i32 s{S_T1}, s{S_PAR}, 3")
    a(f"s_add_u32 s{S_T0}, s{S_T0}, s{S_T1}")
    a(f"s_mul_i32 s{S_T1}, s{S_RT}, 56")
    a(f"s_add_u32 s{S_T0}, s{S_T0}, s{S_T1}")
    a(f"s_lshl_b32 s{S_T0}, s{S_T0}, 9")
    a(f"s_add_u32 s{S_T0}, s{S_T0}, {WS_Q}")
    a(f"v_add_u32 v{V_T}, s{S_T0}, v{V_KO}")
    for g in range(4):
        if g:
            a(f"v_add_u32 v{V_T}, {7*512}, v{V_T}")
        for t in range(2):
            a(f"global_load_dwordx4 {Qf(g,t)}, v{V_T}, s[{S_WS}:{S_WS+1}] offset:{1024*t}")
    a(f"s_lshl_b32 s{S_T0}, s{S_PAR}, 11")
    a(f"v_add_u32 v{V_KO}, s{S_T0}, v{V_KO}")
    def load_k(b):
        for t in range(2):
            a(f"buffer_load_dwordx4 {Kf(b,t)}, v{V_KO}, s[{S_SRD}:{S_SRD+3}], s{S_OFF} offen offset:{1024*t}")
    def load_v(b):
        for t in range(2):
            a(f"buffer_load_dwordx4 {Vf(b,t)}, v{V_VO}, s[{S_SRD}:{S_SRD+3}], s{S_OFF} offen offset:{1024*t}")
    a(f"s_cmp_eq_u32 s{S_PAR}, 0")
    a(f"s_cselect_b32 s{S_EX}, 0, -1")
    a(f"s_cselect_b32 s{S_EX+1}, -1, 0")
    a(f"s_mov_b32 s{S_PASS}, 0")

    def set_pads(src):
        a(f"s_mov_b64 exec, s[{S_EX}:{S_EX+1}]")
        a(f"s_cmp_eq_u32 s{S_PAR}, 0")
        lab = set_pads.n; set_pads.n += 1
        a(f"s_cbranch_scc0 L_at_padodd{lab}")
        for g in range(4):
            r0, r1 = src(g)
            a(f"v_mov_b32 v{V_Q+8*g+6}, {r0}")
            a(f"v_mov_b32 v{V_Q+8*g+7}, {r1}")
        a(f"s_branch L_at_paddone{lab}")
        a.label(f"L_at_padodd{lab}")
        for g in range(4):
            r0, r1 = src(g)
            a(f"v_mov_b32 v{V_Q+8*g+0}, {r0}")
            a(f"v_mov_b32 v{V_Q+8*g+1}, {r1}")
        a.label(f"L_at_paddone{lab}")
        a("s_mov_b64 exec, -1")
    set_pads.n = 0

    def qk(i, g, b):
        return [f"{MFMA} {S(i)}, {Kf(b,0)}, {Qf(g,0)}, 0",
                f"{MFMA} {S(i)}, {Kf(b,1)}, {Qf(g,1)}, {S(i)}"]
    def max_into(g, i, first):
        b = V_S + 16 * i
        if first:
            a(f"v_max3_f32 v{V_M+g}, v{b}, v{b+1}, v{b+2}")
            rest = list(range(3, 16))
        else:
            rest = list(range(0, 16))
        while len(rest) >= 2:
            a(f"v_max3_f32 v{V_M+g}, v{V_M+g}, v{b+rest[0]}, v{b+rest[1]}")
            rest = rest[2:]
        if rest:
            a(f"v_max_f32 v{V_M+g}, v{V_M+g}, v{b+rest[0]}")

    def first_loads():
        a(f"s_mov_b32 s{S_OFF}, 0")
        for b in range(3):
            load_k(b); load_v(b)
            a(f"s_add_u32 s{S_OFF}, s{S_OFF}, {KVT}")
    first_loads()
    a("s_waitcnt vmcnt(12)")
    set_pads(lambda g: ("0", "0"))
    a("s_waitcnt vmcnt(10)")
    a("s_nop 1")
    for g in range(4):
        for ins in qk(g & 1, g, 0):
            a(ins)
        if g:
            max_into(g - 1, (g - 1) & 1, True)
        else:
            a("s_nop 7")
        a("s_nop 7")
    a("s_nop 7")
    max_into(3, 1, True)
    a.label("L_at_setmax")
    for g in range(4):
        a(f"v_mov_b32 v{V_T+g}, v{V_M+g}")
    a("s_nop 1")
    for g in range(4):
        a(f"v_permlane32_swap_b32 v{V_M+g}, v{V_T+g}")
    a("s_nop 1")
    for g in range(4):
        a(f"v_max_f32 v{V_M+g}, v{V_M+g}, v{V_T+g}")
    for g in range(4):
        hi, r, mid = V_S + 4 * g, V_S + 4 * g + 1, V_S + 4 * g + 2
        a(f"v_and_b32 v{hi}, 0xffff0000, v{V_M+g}")
        a(f"v_sub_f32 v{r}, v{V_M+g}, v{hi}")
        a(f"v_and_b32 v{mid}, 0xffff0000, v{r}")
        a(f"v_sub_f32 v{r}, v{r}, v{mid}")
        a(f"v_lshrrev_b32 v{hi}, 16, v{hi}")
        a(f"v_or_b32 v{hi}, v{hi}, v{mid}")
        a(f"v_xor_b32 v{hi}, 0x80008000, v{hi}")
        a(f"v_lshrrev_b32 v{r}, 16, v{r}")
        a(f"v_xor_b32 v{r}, 0x8000, v{r}")
    set_pads(lambda g: (f"v{V_S+4*g}", f"v{V_S+4*g+1}"))
    for r in range(64):
        a(f"v_mov_b32 v{V_O+r}, 0")
    for r in range(8):
        a(f"v_mov_b32 v{V_P+8+r}, 0")
        a(f"v_mov_b32 v{V_KV+48+8+r}, 0")
    for ins in qk(0, 0, 0):
        a(ins)
    a(f"s_mov_b32 s{S_IT}, 4")
    a("s_nop 7")
    stamp(a, 1)
    a.label("L_at_main")
    for u in range(16):
        kt, g = u >> 2, u & 3
        cur, nxt = u & 1, (u & 1) ^ 1
        nkt, ng = ((u + 1) >> 2) & 3, (u + 1) & 3
        pkt, pg = ((u - 1) >> 2) & 3, (u - 1) & 3
        if g == 3:
            a("s_waitcnt vmcnt(10)")
        if g == 1:
            a("s_waitcnt vmcnt(8)")
        q = qk(nxt, ng, nkt)
        pp = V_P + 8 * nxt
        pv = [f"{MFMA} {O(pg)}, {Vf(pkt,0)}, {vr(pp,4)}, {O(pg)}",
              f"{MFMA} {O(pg)}, {Vf(pkt,1)}, {vr(pp+4,4)}, {O(pg)}"]
        sb_ = V_S + 16 * cur
        ex = [f"v_exp_f32 v{sb_+i}, v{sb_+i}" for i in range(16)]
        cv = [f"v_cvt_pk_bf16_f32 v{V_P+8*cur+i}, v{sb_+2*i}, v{sb_+2*i+1}" for i in range(8)]
        mf = [q[0], q[1], pv[0], pv[1]]
        for k in range(4):
            a(mf[k])
            for ins in ex[4*k:4*k+4]:
                a(ins)
            if k:
                for ins in cv[2*k-2:2*k]:
                    a(ins)
        for ins in cv[6:8]:
            a(ins)
        if g == 1:
            load_k((kt + 3) & 3); load_v((kt + 3) & 3)
            a(f"s_add_u32 s{S_OFF}, s{S_OFF}, {KVT}")
    a(f"s_sub_u32 s{S_IT}, s{S_IT}, 1")
    a(f"s_cmp_lg_u32 s{S_IT}, 0")
    a("s_cbranch_scc1 L_at_main")
    pp = V_P + 8
    a(f"{MFMA} {O(3)}, {Vf(3,0)}, {vr(pp,4)}, {O(3)}")
    a(f"{MFMA} {O(3)}, {Vf(3,1)}, {vr(pp+4,4)}, {O(3)}")
    stamp(a, 2)
    a(f"v_pk_add_f32 {vr(V_T,2)}, {vr(V_O,2)}, {vr(V_O+2,2)}")
    a(f"v_pk_add_f32 {vr(V_T+2,2)}, {vr(V_O+4,2)}, {vr(V_O+6,2)}")
    for r in range(8, 64, 4):
        if r == 48:
            a("s_nop 7")
        a(f"v_pk_add_f32 {vr(V_T,2)}, {vr(V_T,2)}, {vr(V_O+r,2)}")
        a(f"v_pk_add_f32 {vr(V_T+2,2)}, {vr(V_T+2,2)}, {vr(V_O+r+2,2)}")
    a(f"v_pk_add_f32 {vr(V_T,2)}, {vr(V_T,2)}, {vr(V_T+2,2)}")
    a(f"v_add_f32 v{V_T}, v{V_T}, v{V_T+1}")
    a(f"v_mov_b32 v{V_T+1}, 0x207")
    a(f"v_cmp_class_f32 vcc, v{V_T}, v{V_T+1}")
    a(f"s_cmp_lg_u32 s{S_PASS}, 0")
    a("s_cbranch_scc1 L_at_reduce")
    a("s_cbranch_vccz L_at_reduce")
    a(f"s_mov_b32 s{S_PASS}, 1")
    a("s_waitcnt vmcnt(0)")
    set_pads(lambda g: ("0", "0"))
    for g in range(4):
        a(f"v_mov_b32 v{V_M+g}, 0xff800000")
    a(f"s_mov_b32 s{S_OFF}, 0")
    a(f"s_mov_b32 s{S_IT}, 16")
    a.label("L_at_slow")
    load_k(0)
    a(f"s_add_u32 s{S_OFF}, s{S_OFF}, {KVT}")
    a("s_waitcnt vmcnt(0)")
    for g in range(4):
        for ins in qk(0, g, 0):
            a(ins)
        a("s_nop 15")
        max_into(g, 0, False)
    a(f"s_sub_u32 s{S_IT}, s{S_IT}, 1")
    a(f"s_cmp_lg_u32 s{S_IT}, 0")
    a("s_cbranch_scc1 L_at_slow")
    first_loads()
    a("s_waitcnt vmcnt(10)")
    a("s_branch L_at_setmax")
    a.label("L_at_reduce")
    a(f"v_lshlrev_b32 v{V_T}, 4, v{V_LANE}")
    a(f"s_lshl_b32 s{S_T0}, s{S_W}, 14")
    a(f"s_add_u32 s{S_T0}, s{S_T0}, {ldsbase}")
    a(f"v_add_u32 v{V_T+1}, s{S_T0}, v{V_T}")
    a(f"v_lshlrev_b32 v{V_T+2}, 2, v{V_LANE}")
    a(f"s_lshl_b32 s{S_T0}, s{S_W}, 10")
    a(f"s_add_u32 s{S_T0}, s{S_T0}, {ldsbase + 65536}")
    a(f"v_add_u32 v{V_T+3}, s{S_T0}, v{V_T+2}")
    for g in range(4):
        a(f"ds_write_b32 v{V_T+3}, v{V_M+g} offset:{256*g}")
        for qd in range(4):
            a(f"ds_write_b128 v{V_T+1}, {vr(V_O+16*g+4*qd,4)} offset:{4096*g + 1024*qd}")
    a(f"s_lshl_b32 s{S_T0}, s{S_W}, 12")
    a(f"s_add_u32 s{S_T0}, s{S_T0}, {ldsbase}")
    a(f"v_add_u32 v{V_T+1}, s{S_T0}, v{V_T}")
    a(f"s_lshl_b32 s{S_T0}, s{S_W}, 8")
    a(f"s_add_u32 s{S_T0}, s{S_T0}, {ldsbase + 65536}")
    a(f"v_add_u32 v{V_T+3}, s{S_T0}, v{V_T+2}")
    a("s_waitcnt lgkmcnt(0)")
    a("s_barrier")
    for sw in range(4):
        a(f"ds_read_b32 v{V_M+sw}, v{V_T+3} offset:{1024*sw}")
    for sw in range(4):
        for qd in range(4):
            a(f"ds_read_b128 {vr(V_O+16*sw+4*qd,4)}, v{V_T+1} offset:{16384*sw + 1024*qd}")
    a(f"s_lshr_b32 s{S_T0}, s{S_HG}, 1")
    a(f"s_lshl_b32 s{S_T0}, s{S_T0}, 3")
    a(f"s_lshl_b32 s{S_T1}, s{S_W}, 1")
    a(f"s_add_u32 s{S_T0}, s{S_T0}, s{S_T1}")
    a(f"s_add_u32 s{S_T0}, s{S_T0}, s{S_PAR}")
    a(f"s_lshl_b32 s{S_T0}, s{S_T0}, 11")
    a(f"s_lshl_b32 s{S_T1}, s{S_RT}, 15")
    a(f"s_add_u32 s{S_T0}, s{S_T0}, s{S_T1}")
    a(f"s_add_u32 s{S_T0}, s{S_T0}, {WS_O}")
    a(f"v_and_b32 v{V_T}, 31, v{V_LANE}")
    a(f"v_lshlrev_b32 v{V_T}, 4, v{V_T}")
    a(f"v_lshrrev_b32 v{V_T+2}, 5, v{V_LANE}")
    a(f"v_lshl_add_u32 v{V_T}, v{V_T+2}, 10, v{V_T}")
    a(f"v_add_u32 v{V_T}, s{S_T0}, v{V_T}")
    a("s_waitcnt lgkmcnt(15)")
    a("s_waitcnt lgkmcnt(12)")
    a(f"v_max3_f32 v{V_T+4}, v{V_M}, v{V_M+1}, v{V_M+2}")
    a(f"v_max_f32 v{V_T+4}, v{V_T+4}, v{V_M+3}")
    for sw in range(4):
        a(f"v_sub_f32 v{V_M+sw}, v{V_M+sw}, v{V_T+4}")
    for sw in range(4):
        a(f"v_exp_f32 v{V_M+sw}, v{V_M+sw}")
    a("s_nop 0")
    for r in range(16):
        a(f"v_mul_f32 v{V_O+r}, v{V_O+r}, v{V_M}")
    for sw in range(1, 4):
        a(f"s_waitcnt lgkmcnt({12 - 4*sw})")
        for r in range(16):
            a(f"v_fmac_f32 v{V_O+r}, v{V_O+16*sw+r}, v{V_M+sw}")
    a(f"v_mov_b32 v{V_T+4}, v{V_O+12}")
    a(f"v_mov_b32 v{V_T+5}, v{V_O+12}")
    a("s_nop 1")
    a(f"v_permlane32_swap_b32 v{V_T+4}, v{V_T+5}")
    a("s_nop 1")
    a(f"v_rcp_f32 v{V_T+5}, v{V_T+5}")
    a(f"v_cmp_eq_u32 vcc, 1, v{V_T+2}")
    for r in range(16):
        a(f"v_mul_f32 v{V_O+r}, v{V_O+r}, v{V_T+5}")
    for r in range(8):
        a(f"v_cvt_pk_bf16_f32 v{V_S+r}, v{V_O+2*r}, v{V_O+2*r+1}")
    a(f"v_mov_b32 v{V_T+4}, 0")
    a(f"v_cndmask_b32 v{V_S+6}, v{V_S+6}, v{V_T+4}, vcc")
    a(f"v_cndmask_b32 v{V_S+7}, v{V_S+7}, v{V_T+4}, vcc")
    a(f"global_store_dwordx4 v{V_T}, {vr(V_S,4)}, s[{S_WS}:{S_WS+1}]")
    a(f"global_store_dwordx4 v{V_T}, {vr(V_S+4,4)}, s[{S_WS}:{S_WS+1}] offset:512")

def k2(a):
    name = "k2_kernel"
    kernel_head(a, name)
    a("s_cmp_ge_u32 s2, 256")
    a("s_cbranch_scc1 L_k2_end")
    stamp(a, 0)
    a("s_load_dwordx2 s[4:5], s[0:1], 88")
    a("v_lshrrev_b32 v1, 6, v0")
    a("s_lshr_b32 s7, s2, 2")
    a("v_readfirstlane_b32 s6, v1")
    a("s_and_b32 s8, s2, 3")
    a("s_waitcnt lgkmcnt(0)")
    attn_body(a, 6, 4, 7, 8, 12)
    stamp(a, 3)
    stamp_flush(a, 4, "k2")
    a.label("L_k2_end")
    a("s_endpgm")
    kernel_desc(a, name, 224, 0)
    return (name, 256, 256, AT_LDS)


def gemm_setup(a, R, S_W, S_T0):
    L, P = R["lane"], R["tmp"]
    a(f"v_and_b32 v{L}, 63, v0")
    a(f"v_lshrrev_b32 v{P}, 3, v{L}")
    a(f"v_mul_u32_u24 v{R['wo']}, 896, v{P}")
    a(f"v_bfe_u32 v{P+1}, v{L}, 4, 1")
    a(f"v_lshlrev_b32 v{P+1}, 2, v{P+1}")
    a(f"v_and_b32 v{P+2}, 7, v{L}")
    a(f"v_xor_b32 v{P+1}, v{P+1}, v{P+2}")
    a(f"v_lshl_add_u32 v{R['wo']}, v{P+1}, 4, v{R['wo']}")
    a(f"v_lshrrev_b32 v{P}, 5, v{L}")
    a(f"v_lshlrev_b32 v{P}, 10, v{P}")
    a(f"v_bfe_u32 v{P+1}, v{L}, 2, 2")
    a(f"v_lshl_add_u32 v{P}, v{P+1}, 7, v{P}")
    a(f"v_and_b32 v{P+1}, 1, v{L}")
    a(f"v_lshl_add_u32 v{P}, v{P+1}, 5, v{P}")
    a(f"v_bfe_u32 v{P+1}, v{L}, 4, 1")
    a(f"v_lshl_add_u32 v{P}, v{P+1}, 4, v{P}")
    a(f"v_bfe_u32 v{P+1}, v{L}, 1, 1")
    a(f"v_lshl_add_u32 v{P}, v{P+1}, 3, v{P}")
    a(f"v_bfe_u32 v{P+1}, v{L}, 3, 1")
    a(f"s_and_b32 s{S_T0}, s{S_W}, 1")
    a(f"v_xor_b32 v{P+1}, s{S_T0}, v{P+1}")
    a(f"v_lshl_add_u32 v{R['tr']}, v{P+1}, 6, v{P}")
    a(f"v_xor_b32 v{R['tr']+1}, 64, v{R['tr']}")

def gemm_run(a, R, tag, U, NIT, S_WSRD, S_WOFF, wstep, S_BSRD, S_BOFF, S_LB, S_IT):
    ACC, AF, BF = R["acc"], R["af"], R["bf"]
    def issue(j):
        for p in range(2):
            a(f"s_add_u32 m0, s{S_LB}, {j*2048 + p*1024}")
            if p:
                a(f"s_add_u32 s{S_WOFF+1}, s{S_WOFF}, {8*896}")
            else:
                a("s_nop 0")
            a(f"buffer_load_dwordx4 v{R['wo']}, s[{S_WSRD}:{S_WSRD+3}], s{S_WOFF+p} offen lds")
        a(f"s_add_u32 s{S_WOFF}, s{S_WOFF}, {wstep(j)}")
        for b in range(2):
            a(f"buffer_load_dwordx4 {vr(BF+8*j+4*b,4)}, v{R['bo']+b}, s[{S_BSRD}:{S_BSRD+3}], s{S_BOFF} offen")
        a(f"s_add_u32 s{S_BOFF}, s{S_BOFF}, 1024")
    def reads(j, buf):
        for t in range(2):
            for hf in range(2):
                a(f"ds_read_b64_tr_b16 {vr(AF+8*buf+4*t+2*hf,2)}, v{R['tr']+t} offset:{j*2048 + hf*512}")
    def mfmas(j, buf):
        for b in range(2):
            for t in range(2):
                i = t + 2 * b
                a(f"{MFMA} {vr(ACC+16*i,16)}, {vr(AF+8*buf+4*t,4)}, {vr(BF+8*j+4*b,4)}, {vr(ACC+16*i,16)}")
    for j in range(U):
        issue(j)
    for r in range(64):
        a(f"v_mov_b32 v{ACC+r}, 0")
    a(f"s_waitcnt vmcnt({4*U - 2})")
    reads(0, 0)
    assert NIT == 1 or U % 2 == 0 or True
    par = 0
    if NIT > 1:
        assert U % 2 == 0, "loop needs even U for A double buffer"
        a(f"s_mov_b32 s{S_IT}, {NIT-1}")
        a.label(f"L_{tag}_loop")
        for j in range(U):
            a(f"s_waitcnt vmcnt({4*U - 6})")
            a("s_waitcnt lgkmcnt(0)")
            reads((j + 1) % U, (j + 1) & 1)
            mfmas(j, j & 1)
            issue(j)
        a(f"s_sub_u32 s{S_IT}, s{S_IT}, 1")
        a(f"s_cmp_lg_u32 s{S_IT}, 0")
        a(f"s_cbranch_scc1 L_{tag}_loop")
    for j in range(U):
        if j + 1 < U:
            a(f"s_waitcnt vmcnt({4*(U-j-2) + 2})")
            a("s_waitcnt lgkmcnt(0)")
            reads(j + 1, (j + 1) & 1)
        else:
            a("s_waitcnt vmcnt(0) lgkmcnt(0)")
        mfmas(j, j & 1)

def gemm_reduce_write(a, R, S_W, S_T0, red_base):
    P = R["tmp"]
    a(f"v_lshlrev_b32 v{P}, 4, v{R['lane']}")
    a("s_nop 7")
    a("s_nop 3")
    for i in range(1, 4):
        a(f"s_xor_b32 s{S_T0}, s{S_W}, {i}")
        a(f"s_mul_i32 s{S_T0}, s{S_T0}, 12288")
        a(f"s_add_u32 s{S_T0}, s{S_T0}, {red_base + (i-1)*4096}")
        a(f"v_add_u32 v{P+1}, s{S_T0}, v{P}")
        for q in range(4):
            a(f"ds_write_b128 v{P+1}, {vr(R['acc']+16*i+4*q,4)} offset:{1024*q}")
    a(f"s_mul_i32 s{S_T0}, s{S_W}, 12288")
    a(f"s_add_u32 s{S_T0}, s{S_T0}, {red_base}")
    a(f"v_add_u32 v{P+1}, s{S_T0}, v{P}")

def gemm_reduce_read(a, R):
    P, ACC = R["tmp"], R["acc"]
    for i in range(1, 4):
        for q in range(4):
            a(f"ds_read_b128 {vr(ACC+16*i+4*q,4)}, v{P+1} offset:{(i-1)*4096 + 1024*q}")
    for i in range(1, 4):
        a(f"s_waitcnt lgkmcnt({12 - 4*i})")
        for r in range(16):
            a(f"v_add_f32 v{ACC+r}, v{ACC+r}, v{ACC+16*i+r}")

def srd(a, S, base_lo, base_hi, off_s, nbytes):
    a(f"s_add_u32 s{S}, s{base_lo}, {off_s}")
    a(f"s_addc_u32 s{S+1}, s{base_hi}, 0")
    a(f"s_and_b32 s{S+1}, s{S+1}, 0xffff")
    a(f"s_mov_b32 s{S+2}, {nbytes}")
    a(f"s_mov_b32 s{S+3}, 0x00020000")

GR = dict(lane=1, tmp=2, wo=8, tr=10, bo=12, acc=16, af=80, bf=96)

def tile_ids(a, S_RB, S_CB, S_T0, S_T1):
    a(f"s_and_b32 s{S_T0}, s2, 7")
    a(f"s_lshr_b32 s{S_T1}, s2, 3")
    a(f"s_and_b32 s{S_RB}, s{S_T1}, 3")
    a(f"s_lshl_b32 s{S_T0}, s{S_T0}, 2")
    a(f"s_add_u32 s{S_RB}, s{S_RB}, s{S_T0}")
    a(f"s_lshr_b32 s{S_CB}, s{S_T1}, 2")

DN_U = 4
def down_body(a, S_W, S_WS, S_WD, S_RB, S_CB, sb, ldsbase, barrier):
    R = GR
    S_WSRD, S_BSRD = sb, sb + 4
    S_WOFF, S_BOFF, S_LB, S_IT, S_T0, S_T1 = sb + 8, sb + 10, sb + 11, sb + 12, sb + 13, sb + 14
    gemm_setup(a, R, S_W, S_T0)
    srd(a, S_WSRD, S_WD, S_WD + 1, 0, 1792 * 896)
    srd(a, S_BSRD, S_WS, S_WS + 1, WS_H, 64 * 112 * 1024)
    a(f"s_mul_i32 s{S_LB}, s{S_W}, {DN_U*2048}")
    a(f"s_add_u32 s{S_LB}, s{S_LB}, {ldsbase}")
    a(f"v_add_u32 v{R['tr']}, s{S_LB}, v{R['tr']}")
    a(f"v_add_u32 v{R['tr']+1}, s{S_LB}, v{R['tr']+1}")
    a(f"s_mul_i32 s{S_WOFF}, s{S_W}, {448*896}")
    a(f"s_lshl_b32 s{S_T0}, s{S_CB}, 7")
    a(f"s_add_u32 s{S_WOFF}, s{S_WOFF}, s{S_T0}")
    a(f"s_lshr_b32 s{S_T0}, s{S_W}, 1")
    a(f"s_lshl_b32 s{S_T1}, s{S_RB}, 1")
    a(f"s_add_u32 s{S_T0}, s{S_T0}, s{S_T1}")
    a(f"s_xor_b32 s{S_T1}, s{S_T0}, 1")
    a(f"s_mul_i32 s{S_T0}, s{S_T0}, {112*1024}")
    a(f"s_mul_i32 s{S_T1}, s{S_T1}, {112*1024}")
    a(f"v_lshlrev_b32 v{R['tmp']}, 4, v{R['lane']}")
    a(f"v_add_u32 v{R['bo']}, s{S_T0}, v{R['tmp']}")
    a(f"v_add_u32 v{R['bo']+1}, s{S_T1}, v{R['tmp']}")
    a(f"s_mul_i32 s{S_BOFF}, s{S_W}, {28*1024}")
    gemm_run(a, R, "dn", DN_U, 28 // DN_U, S_WSRD, S_WOFF, lambda j: 16 * 896, S_BSRD, S_BOFF, S_LB, S_IT)
    red = ldsbase + 4 * DN_U * 2048
    gemm_reduce_write(a, R, S_W, S_T0, red)
    a("s_waitcnt lgkmcnt(0)")
    barrier()
    gemm_reduce_read(a, R)
    ACC = R["acc"]; T = R["af"]
    for r in range(16):
        a(f"v_mul_f32 v{T+r}, {hex(f32bits(-math.log2(math.e)))}, v{ACC+r}")
    for r in range(16):
        a(f"v_exp_f32 v{T+r}, v{T+r}")
    for r in range(16):
        a(f"v_add_f32 v{T+r}, 1.0, v{T+r}")
    for r in range(16):
        a(f"v_rcp_f32 v{T+r}, v{T+r}")
    a(f"s_lshr_b32 s{S_T0}, s{S_W}, 1")
    a(f"s_lshl_b32 s{S_T1}, s{S_RB}, 1")
    a(f"s_add_u32 s{S_T0}, s{S_T0}, s{S_T1}")
    a(f"s_mul_i32 s{S_T0}, s{S_T0}, 14")
    a(f"s_lshl_b32 s{S_T1}, s{S_CB}, 1")
    a(f"s_add_u32 s{S_T0}, s{S_T0}, s{S_T1}")
    a(f"s_and_b32 s{S_T1}, s{S_W}, 1")
    a(f"s_add_u32 s{S_T0}, s{S_T0}, s{S_T1}")
    a(f"s_lshl_b32 s{S_T0}, s{S_T0}, 11")
    a(f"s_add_u32 s{S_T0}, s{S_T0}, {WS_D}")
    for r in range(16):
        a(f"v_mul_f32 v{ACC+r}, v{ACC+r}, v{T+r}")
    a(f"v_add_u32 v{R['tmp']}, s{S_T0}, v{R['tmp']}")
    for r in range(8):
        a(f"v_cvt_pk_bf16_f32 v{T+r}, v{ACC+2*r}, v{ACC+2*r+1}")
    a(f"global_store_dwordx4 v{R['tmp']}, {vr(T,4)}, s[{S_WS}:{S_WS+1}]")
    a(f"global_store_dwordx4 v{R['tmp']}, {vr(T+4,4)}, s[{S_WS}:{S_WS+1}] offset:1024")

def kd(a):
    name = "kd_kernel"
    kernel_head(a, name)
    a("s_cmp_ge_u32 s2, 224")
    a("s_cbranch_scc1 L_kd_end")
    stamp(a, 0)
    a("s_load_dwordx2 s[4:5], s[0:1], 88")
    a("s_load_dwordx2 s[6:7], s[0:1], 64")
    a("v_lshrrev_b32 v1, 6, v0")
    tile_ids(a, 9, 10, 11, 12)
    a("v_readfirstlane_b32 s8, v1")
    a("s_waitcnt lgkmcnt(0)")
    down_body(a, 8, 4, 6, 9, 10, 16, 0, lambda: a("s_barrier"))
    stamp_flush(a, 1, "kd")
    a.label("L_kd_end")
    a("s_endpgm")
    kernel_desc(a, name, 96 + 8 * DN_U, 0)
    return (name, 224, 256, 4 * DN_U * 2048 + 4 * 12288)

def k3(a):
    name = "k3_kernel"
    R = GR
    U = 8
    kernel_head(a, name)
    a("s_cmp_ge_u32 s2, 224")
    a("s_cbranch_scc1 L_k3_end")
    stamp(a, 0)
    S_WS, S_WO, S_X, S_OUT = 4, 6, 8, 10
    S_W, S_RB, S_CB = 12, 13, 14
    sb = 16
    S_WSRD, S_BSRD = sb, sb + 4
    S_WOFF, S_BOFF, S_LB, S_IT, S_T0, S_T1 = sb + 8, sb + 10, sb + 11, sb + 12, sb + 13, sb + 14
    a("s_load_dwordx2 s[4:5], s[0:1], 88")
    a("s_load_dwordx2 s[6:7], s[0:1], 32")
    a("s_load_dwordx2 s[8:9], s[0:1], 0")
    a("s_load_dwordx2 s[10:11], s[0:1], 72")
    a("v_lshrrev_b32 v1, 6, v0")
    tile_ids(a, S_RB, S_CB, S_T0, S_T1)
    a(f"v_readfirstlane_b32 s{S_W}, v1")
    a("s_nop 3")
    gemm_setup(a, R, S_W, S_T0)
    a("s_waitcnt lgkmcnt(0)")
    srd(a, S_WSRD, S_WO, S_WO + 1, 0, 448 * 896)
    srd(a, S_BSRD, S_WS, S_WS + 1, WS_O, 64 * 32 * 1024)
    a(f"s_mul_i32 s{S_LB}, s{S_W}, {U*2048}")
    a(f"v_add_u32 v{R['tr']}, s{S_LB}, v{R['tr']}")
    a(f"v_add_u32 v{R['tr']+1}, s{S_LB}, v{R['tr']+1}")
    a(f"s_mul_i32 s{S_WOFF}, s{S_W}, {112*896}")
    a(f"s_lshl_b32 s{S_T0}, s{S_CB}, 7")
    a(f"s_add_u32 s{S_WOFF}, s{S_WOFF}, s{S_T0}")
    a(f"s_lshr_b32 s{S_T0}, s{S_W}, 1")
    a(f"s_lshl_b32 s{S_T1}, s{S_RB}, 1")
    a(f"s_add_u32 s{S_T0}, s{S_T0}, s{S_T1}")
    a(f"s_xor_b32 s{S_T1}, s{S_T0}, 1")
    a(f"v_lshlrev_b32 v{R['tmp']}, 4, v{R['lane']}")
    a(f"s_lshl_b32 s{S_IT}, s{S_T0}, 15")
    a(f"v_add_u32 v{R['bo']}, s{S_IT}, v{R['tmp']}")
    a(f"s_lshl_b32 s{S_IT}, s{S_T1}, 15")
    a(f"v_add_u32 v{R['bo']+1}, s{S_IT}, v{R['tmp']}")
    a(f"s_lshl_b32 s{S_BOFF}, s{S_W}, 13")
    V_XG = R["bf"] + 8 * U
    V_OA = V_XG + 16
    a(f"v_and_b32 v{V_OA}, 31, v{R['lane']}")
    a(f"s_lshl_b32 s{S_IT}, s{S_T0}, 5")
    a(f"v_add_u32 v{V_OA}, s{S_IT}, v{V_OA}")
    a(f"v_mul_u32_u24 v{V_OA}, 896, v{V_OA}")
    a(f"v_lshrrev_b32 v{V_OA+1}, 5, v{R['lane']}")
    a(f"v_lshl_add_u32 v{V_OA}, v{V_OA+1}, 5, v{V_OA}")
    a(f"s_lshl_b32 s{S_IT}, s{S_CB}, 1")
    a(f"s_and_b32 s{S_T1}, s{S_W}, 1")
    a(f"s_add_u32 s{S_IT}, s{S_IT}, s{S_T1}")
    a(f"s_lshl_b32 s{S_T1}, s{S_IT}, 6")
    a(f"v_add_u32 v{V_OA}, s{S_T1}, v{V_OA}")
    a(f"global_load_dwordx4 {vr(V_XG,4)}, v{V_OA}, s[{S_X}:{S_X+1}]")
    a(f"global_load_dwordx4 {vr(V_XG+4,4)}, v{V_OA}, s[{S_X}:{S_X+1}] offset:16")
    a(f"s_mul_i32 s{S_T0}, s{S_T0}, 14")
    a(f"s_add_u32 s{S_T0}, s{S_T0}, s{S_IT}")
    a(f"s_lshl_b32 s{S_T0}, s{S_T0}, 11")
    a(f"s_add_u32 s{S_T0}, s{S_T0}, {WS_D}")
    a(f"v_add_u32 v{V_OA+1}, s{S_T0}, v{R['tmp']}")
    a(f"global_load_dwordx4 {vr(V_XG+8,4)}, v{V_OA+1}, s[{S_WS}:{S_WS+1}]")
    a(f"global_load_dwordx4 {vr(V_XG+12,4)}, v{V_OA+1}, s[{S_WS}:{S_WS+1}] offset:1024")
    gemm_run(a, R, "wo", U, 1, S_WSRD, S_WOFF, lambda j: (16 if j % 2 == 0 else 12) * 896, S_BSRD, S_BOFF, S_LB, S_IT)
    red = 4 * U * 2048
    gemm_reduce_write(a, R, S_W, S_T0, red)
    a("s_waitcnt lgkmcnt(0)")
    a("s_barrier")
    gemm_reduce_read(a, R)
    ACC = R["acc"]; T = R["af"]
    for r in range(8):
        a(f"v_lshlrev_b32 v{T}, 16, v{V_XG+r}")
        a(f"v_and_b32 v{T+1}, 0xffff0000, v{V_XG+r}")
        a(f"v_lshlrev_b32 v{T+2}, 16, v{V_XG+8+r}")
        a(f"v_and_b32 v{T+3}, 0xffff0000, v{V_XG+8+r}")
        a(f"v_fmac_f32 v{T}, v{ACC+2*r}, v{T+2}")
        a(f"v_fmac_f32 v{T+1}, v{ACC+2*r+1}, v{T+3}")
        a(f"v_cvt_pk_bf16_f32 v{T+8+r}, v{T}, v{T+1}")
    a(f"global_store_dwordx4 v{V_OA}, {vr(T+8,4)}, s[{S_OUT}:{S_OUT+1}]")
    a(f"global_store_dwordx4 v{V_OA}, {vr(T+12,4)}, s[{S_OUT}:{S_OUT+1}] offset:16")
    stamp_flush(a, 1, "k3")
    a.label("L_k3_end")
    a("s_endpgm")
    kernel_desc(a, name, V_OA + 2, 0)
    return (name, 224, 256, 4 * U * 2048 + 4 * 12288)


def build(kernels):
    a = Asm()
    infos = []
    body = Asm()
    for k in kernels:
        infos.append(k(body))
    hdr = ["; generated by work/gen.py"]
    for (name, grid, block, lds) in infos:
        hdr.append(f"; @launch kernel={name} grid=({grid},1,1) block=({block},1,1) lds={lds}")
    hdr.append('.amdgcn_target "amdgcn-amd-amdhsa--gfx950"')
    return "\n".join(hdr) + "\n" + body.text()

if __name__ == "__main__":
    out = sys.argv[1] if len(sys.argv) > 1 else "k.s"
    open(out, "w").write(build([globals()[k] for k in os.environ.get('KS', 'k1,k2,kd,k3').split(',')]))
```

```python
from gen import *

P1_XN = 0
P1_W  = 7 * 16384
P1_LDS = 163840
SCR0 = P1_W + 2 * 16384 + 15 * 1024
SCRA = P1_W + 0 * 16384
SCRN = P1_XN + 6 * 16384
SCRB = P1_XN

WS_ST = 0x1200000
WS_FL = 0x1210000
FL_KV = WS_FL + 32768
FL_Q  = FL_KV + 128
FL_H  = WS_FL + 2048
FL_O  = WS_FL + 8192

V_L = 1

def p1_ids(a, S_RB, S_CB, S_T0, S_T1, S_T2):
    a(f"s_and_b32 s{S_T0}, s2, 7")
    a(f"s_lshr_b32 s{S_T1}, s2, 3")
    a(f"s_and_b32 s{S_RB}, s{S_T0}, 1")
    a(f"s_lshl_b32 s{S_RB}, s{S_RB}, 3")
    a(f"s_and_b32 s{S_T2}, s{S_T1}, 7")
    a(f"s_add_u32 s{S_RB}, s{S_RB}, s{S_T2}")
    a(f"s_lshr_b32 s{S_CB}, s{S_T0}, 1")
    a(f"s_lshr_b32 s{S_T2}, s{S_T1}, 3")
    a(f"s_lshl_b32 s{S_T2}, s{S_T2}, 2")
    a(f"s_add_u32 s{S_CB}, s{S_CB}, s{S_T2}")

SPIN_MAX = 200000

WS_CS = 0x1280000
FL_CS = WS_FL + 16384

def p1_helper(a, S):
    V_WA, V_WB, V_XO, V_C1, V_C2, V_GA = 2, 3, 4, 6, 7, 8
    V_ACCS = 12
    V_U = 20
    V_ST = 28
    P = 32
    V_D = 40
    HW, T0, T1, T2 = S["T3"], S["T0"], S["T1"], S["T2"]
    sb = S["sb"]
    SA, SB, SX, SC1, SC2 = sb, sb + 4, sb + 8, sb + 12, sb + 16
    M0, IT, SL, OFF, STEP, XM0, MASK, CSTEP, MU, OC, KVF = [sb + 20 + i for i in range(11)]
    MSK = sb + 32
    NONCE, WS = S["NONCE"], S["WS"]
    a(f"s_sub_u32 s{HW}, s{S['W']}, 4")
    a(f"s_and_b32 s{MU}, s{HW}, 1")
    a(f"s_lshr_b32 s{OC}, s{HW}, 1")
    a(f"s_mov_b32 s{MASK}, 0xffff0000")
    a(f"s_mov_b32 s{KVF}, 0")
    a(f"v_lshrrev_b32 v{P}, 3, v{V_L}")
    a(f"v_and_b32 v{P+6}, 7, v{V_L}")
    a(f"v_lshrrev_b32 v{P+2}, 1, v{P}")
    a(f"v_xor_b32 v{P+1}, v{P+6}, v{P+2}")
    a(f"v_mul_u32_u24 v{V_XO}, 896, v{P}")
    a(f"v_lshl_add_u32 v{V_XO}, v{P+1}, 4, v{V_XO}")
    a(f"v_xor_b32 v{V_XO+1}, 64, v{V_XO}")
    a(f"s_lshl_b32 s{T0}, s{S['RB']}, 7")
    a(f"s_lshl_b32 s{XM0}, s{HW}, 5")
    a(f"s_add_u32 s{T0}, s{T0}, s{XM0}")
    a(f"s_mul_i32 s{T0}, s{T0}, 896")
    a("s_waitcnt lgkmcnt(0)")
    a(f"s_add_u32 s{SX}, s{S['X']}, s{T0}")
    a(f"s_addc_u32 s{SX+1}, s{S['X']+1}, 0")
    a(f"s_and_b32 s{SX+1}, s{SX+1}, 0xffff")
    a(f"s_mov_b32 s{SX+2}, {32*896}")
    a(f"s_mov_b32 s{SX+3}, 0x00020000")
    a(f"s_lshl_b32 s{XM0}, s{HW}, 12")
    def xdma(c):
        for g in range(4):
            a(f"s_add_u32 m0, s{XM0}, {P1_XN + c*16384 + g*1024}")
            a(f"s_movk_i32 s{T0}, {g*8*896 + c*128}")
            a(f"buffer_load_dwordx4 v{V_XO+(g&1)}, s[{SX}:{SX+3}], s{T0} offen lds")
    xdma(0)
    a(f"s_lshl_b32 s{T0}, s{OC}, 3")
    a(f"v_add_u32 v{P+7}, s{T0}, v{P}")
    a(f"v_bfe_u32 v{P+1}, v{V_L}, 1, 2")
    a(f"v_and_b32 v{P+2}, 1, v{V_L}")
    a(f"v_bfe_u32 v{P+3}, v{V_L}, 4, 1")
    a(f"s_lshl_b32 s{T0}, s{MU}, 1")
    a(f"v_add_u32 v{P+4}, s{T0}, v{P+3}")
    a(f"v_xor_b32 v{P+4}, v{P+4}, v{P+1}")
    a(f"v_mul_u32_u24 v{V_WB}, 3584, v{P+7}")
    a(f"v_lshl_add_u32 v{V_WB}, v{P+4}, 5, v{V_WB}")
    a(f"v_lshl_add_u32 v{V_WB}, v{P+2}, 4, v{V_WB}")
    a(f"s_cmp_eq_u32 s{MU}, 0")
    a(f"s_cselect_b32 s{SB}, s{S['WG']}, s{S['WU']}")
    a(f"s_cselect_b32 s{SB+1}, s{S['WG']+1}, s{S['WU']+1}")
    a(f"s_and_b32 s{SB+1}, s{SB+1}, 0xffff")
    a(f"s_mov_b32 s{SB+2}, {448*3584}")
    a(f"s_mov_b32 s{SB+3}, 0x00020000")
    a(f"s_mov_b32 s{SA+3}, 0x00020000")
    a(f"s_cmp_lt_u32 s{S['CB']}, 4")
    a("s_cbranch_scc1 L_p1h_q")
    a(f"s_mov_b32 s{SA}, s{SB}")
    a(f"s_mov_b32 s{SA+1}, s{SB+1}")
    a(f"s_mov_b32 s{SA+2}, s{SB+2}")
    a(f"v_mov_b32 v{V_WA}, v{V_WB}")
    a(f"s_sub_u32 s{OFF}, s{S['CB']}, 4")
    a(f"s_lshl_b32 s{OFF}, s{OFF}, 7")
    a(f"s_mov_b32 s{STEP}, {16*3584}")
    a("s_branch L_p1h_go")
    a.label("L_p1h_q")
    a(f"s_lshl_b32 s{T0}, s{S['CB']}, 1")
    a(f"s_add_u32 s{T0}, s{T0}, s{MU}")
    a(f"s_cmp_eq_u32 s{T0}, 7")
    a("s_cbranch_scc1 L_p1h_kv")
    a(f"v_lshlrev_b32 v{P+4}, 1, v{P+3}")
    a(f"v_xor_b32 v{P+4}, v{P+4}, v{P+1}")
    a(f"v_mul_u32_u24 v{V_WA}, 896, v{P+7}")
    a(f"v_lshl_add_u32 v{V_WA}, v{P+4}, 5, v{V_WA}")
    a(f"v_lshl_add_u32 v{V_WA}, v{P+2}, 4, v{V_WA}")
    a(f"s_mov_b32 s{SA}, s{S['WQ']}")
    a(f"s_and_b32 s{SA+1}, s{S['WQ']+1}, 0xffff")
    a(f"s_mov_b32 s{SA+2}, {448*896}")
    a(f"s_lshl_b32 s{OFF}, s{T0}, 7")
    a(f"s_movk_i32 s{STEP}, {16*896}")
    a("s_branch L_p1h_go")
    a.label("L_p1h_kv")
    a(f"v_lshrrev_b32 v{P+4}, 2, v{V_L}")
    a(f"v_mul_u32_u24 v{V_WA}, 56, v{P+4}")
    a(f"v_and_b32 v{P+1}, 3, v{V_L}")
    a(f"v_lshlrev_b32 v{P+2}, 4, v{P+1}")
    a(f"v_min_u32 v{P+2}, 40, v{P+2}")
    a(f"v_add_u32 v{V_WA}, v{V_WA}, v{P+2}")
    a(f"s_cmp_eq_u32 s{OC}, 0")
    a(f"s_cselect_b32 s{SA}, s{S['WK']}, s{S['WV']}")
    a(f"s_cselect_b32 s{SA+1}, s{S['WK']+1}, s{S['WV']+1}")
    a(f"s_cselect_b32 s{KVF}, 1, 0")
    a(f"s_and_b32 s{SA+1}, s{SA+1}, 0xffff")
    a(f"s_mov_b32 s{SA+2}, {448*56}")
    a(f"s_mov_b32 s{OFF}, 0")
    a(f"s_movk_i32 s{STEP}, {16*56}")
    a.label("L_p1h_go")
    a(f"s_lshl_b32 s{M0}, s{HW}, 10")
    a(f"s_add_u32 s{M0}, s{M0}, {P1_W}")
    def dma1(i):
        a(f"s_add_u32 m0, s{M0}, {i*4096}")
        a("s_nop 0")
        a(f"buffer_load_dwordx4 v{V_WA}, s[{SA}:{SA+3}], s{OFF} offen lds")
        a(f"s_add_u32 s{OFF}, s{OFF}, s{STEP}")
    def slot_adv(tag):
        a(f"s_add_u32 s{M0}, s{M0}, 16384")
        a(f"s_add_u32 s{SL}, s{SL}, 1")
        a(f"s_cmp_lg_u32 s{SL}, 3")
        a(f"s_cbranch_scc1 L_p1h_nowrap{tag}")
        a(f"s_mov_b32 s{SL}, 0")
        a(f"s_sub_u32 s{M0}, s{M0}, {3*16384}")
        a.label(f"L_p1h_nowrap{tag}")
    a(f"s_lshr_b32 s{T1}, s{STEP}, 4")
    a(f"s_mov_b32 s{T2}, s{OFF}")
    a(f"s_mov_b32 s{SC1}, s{SA}")
    a(f"s_mov_b32 s{SC1+1}, s{SA+1}")
    a(f"s_cmp_eq_u32 s{OC}, 0")
    a("s_cbranch_scc1 L_p1h_cs0")
    a(f"s_movk_i32 s{T1}, 3584")
    a(f"s_add_u32 s{T2}, s{S['CB']}, 12")
    a(f"s_lshl_b32 s{T2}, s{T2}, 7")
    a(f"s_mov_b32 s{SC1}, s{SB}")
    a(f"s_mov_b32 s{SC1+1}, s{SB+1}")
    a.label("L_p1h_cs0")
    for i in range(4): dma1(i)
    a(f"s_mul_i32 s{SC1+2}, s{T1}, 28")
    a(f"s_mul_i32 s{T0}, s{SC1+2}, s{S['RB']}")
    a(f"s_add_u32 s{SC1}, s{SC1}, s{T0}")
    a(f"s_addc_u32 s{SC1+1}, s{SC1+1}, 0")
    a(f"s_mov_b32 s{SC1+3}, 0x00020000")
    a(f"s_add_u32 s{SC2}, s{S['WV']}, s{T0}")
    a(f"s_addc_u32 s{SC2+1}, s{S['WV']+1}, 0")
    a(f"s_and_b32 s{SC2+1}, s{SC2+1}, 0xffff")
    a(f"s_mul_i32 s{SC2+2}, s{KVF}, {28*56}")
    a(f"s_mov_b32 s{SC2+3}, 0x00020000")
    a(f"s_lshl_b32 s{CSTEP}, s{T1}, 3")
    a(f"v_mul_lo_u32 v{V_C1}, v{P}, s{T1}")
    a(f"v_lshl_add_u32 v{P+1}, v{P+6}, 4, s{T2}")
    a(f"s_cmp_eq_u32 s{KVF}, 0")
    a("s_cbranch_scc1 L_p1h_cs1")
    a(f"v_and_b32 v{P+1}, 3, v{P+6}")
    a(f"v_lshlrev_b32 v{P+1}, 4, v{P+1}")
    a(f"v_min_u32 v{P+1}, 40, v{P+1}")
    a(f"v_cmp_le_u32 vcc, 4, v{P+6}")
    a(f"v_add_u32 v{P+2}, 0x100000, v{P+1}")
    a("s_nop 0")
    a(f"v_cndmask_b32 v{P+3}, v{P+2}, v{P+1}, vcc")
    a(f"v_cndmask_b32 v{P+1}, v{P+1}, v{P+2}, vcc")
    a(f"v_add_u32 v{V_C2}, v{V_C1}, v{P+3}")
    a.label("L_p1h_cs1")
    a(f"v_add_u32 v{V_C1}, v{V_C1}, v{P+1}")
    vm = ["x0"] * 4 + ["w0"] * 4
    def wait_for(*labels):
        last = max(i for i, l in enumerate(vm) if l in labels)
        a(f"s_waitcnt vmcnt({len(vm) - 1 - last})")
    def xd(c, g):
        a(f"s_add_u32 m0, s{XM0}, {P1_XN + c*16384 + g*1024}")
        a(f"s_movk_i32 s{T0}, {g*8*896 + c*128}")
        a(f"buffer_load_dwordx4 v{V_XO+(g&1)}, s[{SX}:{SX+3}], s{T0} offen lds")
        vm.append(f"x{c}")
    def wd(st, i):
        a(f"s_add_u32 m0, s{M0}, {(st % 3)*16384 + i*4096}")
        a("s_nop 0")
        a(f"buffer_load_dwordx4 v{V_WA}, s[{SA}:{SA+3}], s{OFF} offen lds")
        a(f"s_add_u32 s{OFF}, s{OFF}, s{STEP}")
        vm.append(f"w{st}")
    for g in range(4): xd(1, g)
    for i in range(4): wd(1, i)
    for b in range(3):
        a(f"v_bfe_u32 v{P+1}, v{V_L}, {3+b}, 1")
        a(f"v_cmp_eq_u32 s[{MSK+2*b}:{MSK+2*b+1}], 1, v{P+1}")
    wait_for("x0", "w0")
    stamp(a, 1)
    a("s_barrier")
    side = {1: [], 2: [], 3: []}
    def unp(i, dst):
        d = V_D + 4 * i
        o = []
        for r in range(4):
            o += [f"v_lshlrev_b32 v{dst+2*r}, 16, v{d+r}", f"v_and_b32 v{dst+2*r+1}, s{MASK}, v{d+r}"]
        return o
    adds = [f"v_add_f32 v{V_ACCS+r}, v{V_ACCS+r}, v{V_U+r}" for r in range(8)]
    side[2] = [unp(0, V_ACCS), unp(1, V_U), adds, unp(2, V_U), adds, unp(3, V_U), adds,
               [f"s_cmp_eq_u32 s{KVF}, 0", "s_cbranch_scc1 L_p1h_cs3"] + sum([unp(i, V_U) + adds for i in range(4, 8)], []) + ["L_p1h_cs3:"]]
    red = [[f"v_add_f32_dpp v{V_ACCS+r}, v{V_ACCS+r}, v{V_ACCS+r} row_ror:8 row_mask:0xf bank_mask:0xf" for r in range(8)]]
    for op in ("v_permlane16_swap_b32", "v_permlane32_swap_b32"):
        red.append([f"v_mov_b32 v{V_U+r}, v{V_ACCS+r}" for r in range(8)] + ["s_nop 1"])
        red.append([f"{op} v{V_ACCS+r}, v{V_U+r}" for r in range(8)] + ["s_nop 1"])
        red.append(adds)
    red.append([f"v_cndmask_b32 v{V_ACCS+2*r}, v{V_ACCS+2*r}, v{V_ACCS+2*r+1}, s[{MSK}:{MSK+1}]" for r in range(4)] +
               [f"v_cndmask_b32 v{V_ACCS+4*r}, v{V_ACCS+4*r}, v{V_ACCS+4*r+2}, s[{MSK+2}:{MSK+3}]" for r in range(2)] +
               [f"v_cndmask_b32 v{V_ACCS}, v{V_ACCS}, v{V_ACCS+4}, s[{MSK+4}:{MSK+5}]"])
    side[3] = red
    adr = [f"v_lshl_add_u32 v{P+1}, v{P+6}, 3, v{P}",
           f"s_cmp_lg_u32 s{OC}, 0", "s_cbranch_scc1 L_p1h_pg", f"s_cmp_ge_u32 s{S['CB']}, 4", "s_cbranch_scc1 L_p1h_pg",
           f"v_and_b32 v{P+3}, 24, v{P+1}", f"v_cmp_eq_u32 vcc, 24, v{P+3}", f"s_lshl_b32 s{T1}, s{KVF}, 2",
           f"v_xor_b32 v{P+3}, s{T1}, v{P+1}", f"v_cndmask_b32 v{P+1}, v{P+1}, v{P+3}, vcc",
           f"v_and_b32 v{P+3}, 0x23, v{P+1}",
           f"v_bfe_u32 v{P+4}, v{P+1}, 4, 1", f"v_lshl_add_u32 v{P+3}, v{P+4}, 2, v{P+3}",
           f"v_bfe_u32 v{P+4}, v{P+1}, 2, 2", f"v_lshl_add_u32 v{P+3}, v{P+4}, 3, v{P+3}",
           f"s_lshl_b32 s{T1}, s{MU}, 6", "s_branch L_p1h_pa",
           "L_p1h_pg:",
           f"v_and_b32 v{P+3}, 3, v{P+1}",
           f"v_bfe_u32 v{P+4}, v{P+1}, 3, 1", f"v_lshl_add_u32 v{P+3}, v{P+4}, 2, v{P+3}",
           f"v_bfe_u32 v{P+4}, v{P+1}, 2, 1", f"v_lshl_add_u32 v{P+3}, v{P+4}, 3, v{P+3}",
           f"v_lshrrev_b32 v{P+4}, 4, v{P+1}", f"v_lshl_add_u32 v{P+3}, v{P+4}, 5, v{P+3}",
           f"s_lshl_b32 s{T1}, s{MU}, 4",
           "L_p1h_pa:",
           f"v_add_u32 v{P+3}, s{T1}, v{P+3}",
           f"s_lshl_b32 s{T1}, s{S['CB']}, 4", f"s_add_u32 s{T1}, s{T1}, s{S['RB']}",
           f"s_lshl_b32 s{T2}, s{T1}, 2", f"s_add_u32 s{T2}, s{T2}, s{HW}", f"s_lshl_b32 s{T2}, s{T2}, 2",
           f"s_add_u32 s{T2}, s{T2}, {FL_CS}", f"v_mov_b32 v{P+5}, s{T2}",
           f"s_lshl_b32 s{T1}, s{T1}, 8", f"s_add_u32 s{T1}, s{T1}, s{OC}", f"s_lshl_b32 s{T1}, s{T1}, 2",
           f"s_add_u32 s{T1}, s{T1}, {WS_CS}",
           f"v_lshl_add_u32 v{P+1}, v{P+3}, 3, s{T1}"]
    side[1] = [adr,
               [f"s_lshl_b32 s{T1}, s{S['RB']}, 4", f"s_add_u32 s{T1}, s{T1}, s{S['CB']}", f"s_lshl_b32 s{T1}, s{T1}, 6",
                f"s_add_u32 s{T1}, s{T1}, {WS_ST}", f"v_lshl_add_u32 v{P+2}, v{V_L}, 3, s{T1}"]]
    allw = side[2] + side[3]
    side = {0: side[1], 1: allw[:8], 2: allw[8:]}
    def emit(grp):
        for ins in grp:
            if ins.endswith(":"): a.label(ins[:-1])
            else: a(ins)
    for s in range(14):
        if s == 0:
            a(f"v_lshlrev_b32 v{V_ST+1}, 2, v{V_L}")
            a(f"v_add_u32 v{V_ST+1}, {SCR0}, v{V_ST+1}")
            a(f"ds_read_b32 v{V_ST}, v{V_ST+1}")
            a(f"s_bfe_u32 s{T0}, s2, 0x10003")
            a(f"s_lshl_b32 s{T0}, s{T0}, 7")
            a(f"v_mov_b32 v{V_ST+2}, s{T0}")
            a(f"v_mov_b32 v{V_ST+3}, {SCRN}")
            a(f"s_mov_b32 s{T0}, 0")
            for q in range(4):
                a(f"buffer_load_dwordx4 {vr(V_D+4*q,4)}, v{V_C1}, s[{SC1}:{SC1+3}], s{T0} offen")
                a(f"s_add_u32 s{T0}, s{T0}, s{CSTEP}")
                vm.append("c")
            a(f"s_cmp_eq_u32 s{KVF}, 0")
            a("s_cbranch_scc1 L_p1h_cs2")
            a(f"s_mov_b32 s{T0}, 0")
            for q in range(4):
                a(f"buffer_load_dwordx4 {vr(V_D+16+4*q,4)}, v{V_C2}, s[{SC2}:{SC2+3}], s{T0} offen")
                a(f"s_add_u32 s{T0}, s{T0}, s{CSTEP}")
            a.label("L_p1h_cs2")
            a("s_waitcnt lgkmcnt(0)")
        if s == 1:
            a(f"s_cmp_lg_u32 s{HW}, 3")
            a("s_cbranch_scc1 L_p1h_non")
            a(f"global_load_dword v{V_ST+1}, v{V_ST+2}, s[{S['DBG']}:{S['DBG']+1}] sc1")
            a.label("L_p1h_non")
        if s == 3:
            a(f"ds_read_b32 v{V_ST+1}, v{V_ST+3}")
            a("s_waitcnt lgkmcnt(0)")
            a(f"v_readfirstlane_b32 s{NONCE}, v{V_ST+1}")
        if s == 5:
            a(f"v_mov_b32 v{V_WA}, v{V_WB}")
            a(f"s_mov_b32 s{SA}, s{SB}")
            a(f"s_mov_b32 s{SA+1}, s{SB+1}")
            a(f"s_mov_b32 s{SA+2}, s{SB+2}")
            a(f"s_add_u32 s{OFF}, s{S['CB']}, 12")
            a(f"s_lshl_b32 s{OFF}, s{OFF}, 7")
            a(f"s_mov_b32 s{STEP}, {16*3584}")
        sw = list(side.get(s, []))
        ops = []
        if s + 2 <= 13: ops += [("w", s + 2, i) for i in range(4)]
        if s + 2 <= 6: ops += [("x", s + 2, g) for g in range(4)]
        for k, (kind, n, i) in enumerate(ops):
            (wd if kind == "w" else xd)(n, i)
            if sw: emit(sw.pop(0))
        for grp in sw: emit(grp)
        if s == 2:
            a(f"global_store_dword v{P+1}, v{V_ACCS}, s[{WS}:{WS+1}] sc1")
            vm.append("p")
        if s == 0:
            a(f"s_waitcnt vmcnt(8)")
        else:
            need = [l for l in (f"w{s+1}", f"x{s+1}") if l in vm]
            if s == 3: need.append("p")
            if need: wait_for(*need)
        if s == 2:
            a(f"s_cmp_lg_u32 s{HW}, 3")
            a("s_cbranch_scc1 L_p1h_nopub")
            a(f"s_mov_b32 s{T1}, {SPIN_MAX}")
            a.label("L_p1h_nonce")
            a(f"v_readfirstlane_b32 s{NONCE}, v{V_ST+1}")
            a(f"s_sub_u32 s{T1}, s{T1}, 1")
            a(f"s_cmp_eq_u32 s{T1}, 0")
            a("s_cbranch_scc1 L_p1h_nonced")
            a(f"s_cmp_lg_u32 s{NONCE}, 0")
            a("s_cbranch_scc1 L_p1h_nonced")
            a("s_sleep 2")
            a(f"global_load_dword v{V_ST+1}, v{V_ST+2}, s[{S['DBG']}:{S['DBG']+1}] sc1")
            a("s_waitcnt vmcnt(0)")
            a("s_branch L_p1h_nonce")
            a.label("L_p1h_nonced")
            a("s_mov_b64 exec, 0xff")
            a(f"ds_write_b32 v{V_ST+3}, v{V_ST+1}")
            a(f"global_store_dwordx2 v{P+2}, {vr(V_ST,2)}, s[{WS}:{WS+1}] sc1")
            a("s_mov_b64 exec, -1")
            a("s_waitcnt lgkmcnt(0)")
            a.label("L_p1h_nopub")
        if s == 3:
            a("s_mov_b64 exec, 1")
            a(f"global_store_dword v{P+5}, v{V_ST+1}, s[{WS}:{WS+1}] sc1")
            a("s_mov_b64 exec, -1")
            vm.append("f")
        if s == 13 and S.get("RELAY") is not None:
            a(f"v_mov_b32 v{P+3}, {S['RELAY']}")
            a(f"v_mov_b32 v{P+4}, 0")
            a(f"ds_write2_b32 v{P+3}, v{P+4}, v{P+4} offset0:0 offset1:1")
            a(f"ds_write_b32 v{P+3}, v{P+4} offset:8")
            a("s_waitcnt lgkmcnt(0)")
        a("s_barrier")
        if s < 6 and S.get('HSTAMP'): stamp(a, 2 + s)

V_TA, V_TB, V_XB = 2, 4, 6
V_SR = 10
V_GA = 12
V_CT = 16
V_AF, V_BF = 32, 48
V_ACC = 64
V_G = 192
V_CS = 192
V_MB = 208
V_EO = 216

def p1_rowstats(a, S):
    W, T0, T1 = S["W"], S["T0"], S["T1"]
    P = V_CT
    R = V_AF
    for r in range(8):
        a(f"v_mov_b32 v{R+r}, 0")
    a(f"s_lshl_b32 s{T0}, s{S['RB']}, 7")
    a(f"s_lshl_b32 s{T1}, s{S['CB']}, 3")
    a(f"s_add_u32 s{T0}, s{T0}, s{T1}")
    a(f"s_lshl_b32 s{T1}, s{W}, 1")
    a(f"s_add_u32 s{T0}, s{T0}, s{T1}")
    a(f"s_mul_i32 s{T0}, s{T0}, 896")
    a(f"v_lshlrev_b32 v{P}, 4, v{V_L}")
    a(f"v_add_u32 v{P}, s{T0}, v{P}")
    a("s_waitcnt lgkmcnt(0)")
    a("s_mov_b32 exec_hi, 0x00ffffff")
    a(f"global_load_dwordx4 {vr(R,4)}, v{P}, s[{S['X']}:{S['X']+1}]")
    a(f"global_load_dwordx4 {vr(R+4,4)}, v{P}, s[{S['X']}:{S['X']+1}] offset:896")
    a("s_mov_b64 exec, -1")
    a(f"s_or_b32 s{T1}, s2, s{W}")
    a(f"s_cmp_lg_u32 s{T1}, 0")
    a("s_cbranch_scc1 L_p1c_nononce")
    a(f"s_memrealtime s[{S['sb']}:{S['sb']+1}]")
    a(f"v_lshlrev_b32 v{P+1}, 7, v{V_L}")
    a("s_waitcnt lgkmcnt(0)")
    a(f"s_or_b32 s{T1}, s{S['sb']}, 1")
    a(f"v_mov_b32 v{P+2}, s{T1}")
    a("s_mov_b64 exec, 3")
    a(f"global_store_dword v{P+1}, v{P+2}, s[{S['DBG']}:{S['DBG']+1}] sc1")
    a("s_mov_b64 exec, -1")
    a.label("L_p1c_nononce")

def p1_rowstats2(a, S):
    W, T0, T1 = S["W"], S["T0"], S["T1"]
    R = V_AF
    vs = [V_BF, V_BF + 2]; vq = [V_BF + 1, V_BF + 3]; t = V_BF + 4
    a(f"s_mov_b32 s{T0}, 0x3f803f80")
    a(f"s_mov_b32 s{T1}, 0xffff0000")
    for r in range(4):
        a(f"v_mov_b32 v{V_BF+r}, 0")
    a("s_waitcnt vmcnt(1)" if False else "s_waitcnt vmcnt(0)")
    for i in range(4):
        for g in range(2):
            x = R + 4 * g + i
            a(f"v_dot2_f32_bf16 v{vq[g]}, v{x}, v{x}, v{vq[g]}")
            a(f"v_dot2_f32_bf16 v{vs[g]}, v{x}, s{T0}, v{vs[g]}")
    a("s_nop 2")
    for dpp in ("quad_perm:[1,0,3,2]", "quad_perm:[2,3,0,1]", "row_half_mirror", "row_mirror"):
        for r in range(4):
            a(f"v_add_f32_dpp v{V_BF+r}, v{V_BF+r}, v{V_BF+r} {dpp} row_mask:0xf bank_mask:0xf")
    for op in ("v_permlane16_swap_b32", "v_permlane32_swap_b32"):
        for r in range(4):
            a(f"v_mov_b32 v{t+r}, v{V_BF+r}")
        a("s_nop 1")
        for r in range(4):
            a(f"{op} v{V_BF+r}, v{t+r}")
        a("s_nop 1")
        for r in range(4):
            a(f"v_add_f32 v{V_BF+r}, v{V_BF+r}, v{t+r}")
    a(f"v_cmp_eq_u32 vcc, 1, v{V_L}")
    a("s_nop 1")
    a(f"v_cndmask_b32 v{vs[0]}, v{vs[0]}, v{vs[1]}, vcc")
    a(f"v_cndmask_b32 v{vq[0]}, v{vq[0]}, v{vq[1]}, vcc")
    s, q = vs[0], vq[0]
    k = hex(f32bits(1.0 / 448))
    a(f"v_mul_f32 v{s}, {k}, v{s}")
    a(f"v_mul_f32 v{q}, {k}, v{q}")
    a(f"v_fma_f32 v{q}, -v{s}, v{s}, v{q}")
    a(f"v_max_f32 v{q}, 0, v{q}")
    a(f"v_cvt_pk_bf16_f32 v{q}, v{q}, v{q}")
    a(f"v_and_b32 v{q}, s{T1}, v{q}")
    a(f"v_add_f32 v{q}, {hex(f32bits(1e-5))}, v{q}")
    a(f"v_cvt_pk_bf16_f32 v{q}, v{q}, v{q}")
    a(f"v_and_b32 v{q}, s{T1}, v{q}")
    a(f"v_sqrt_f32 v{q}, v{q}")
    a(f"s_lshl_b32 s{T0}, s{W}, 3")
    a(f"v_cvt_pk_bf16_f32 v{s}, v{s}, v{q}")
    a(f"v_lshlrev_b32 v{t}, 2, v{V_L}")
    a(f"v_add_u32 v{t}, s{T0}, v{t}")
    a(f"v_add_u32 v{t}, {SCR0}, v{t}")
    a("s_mov_b64 exec, 3")
    a(f"ds_write_b32 v{t}, v{s}")
    a("s_mov_b64 exec, -1")

def p1_compute_setup(a, S):
    W, T0, T1, T2 = S["W"], S["T0"], S["T1"], S["T2"]
    sb = S["sb"]
    C = dict(IT=sb, SL=sb + 1, FLAG=sb + 2, RT=sb + 3, FWD=sb + 4, WRAP=sb + 5, M1=sb + 6, M2=sb + 8)
    P = V_CT
    a(f"v_bfe_u32 v{P}, v{V_L}, 2, 2")
    a(f"v_lshrrev_b32 v{P+1}, 5, v{V_L}")
    a(f"v_bfe_u32 v{P+2}, v{V_L}, 4, 1")
    a(f"v_and_b32 v{P+3}, 1, v{V_L}")
    a(f"v_bfe_u32 v{P+4}, v{V_L}, 1, 1")
    a(f"v_bfe_u32 v{P+5}, v{V_L}, 3, 1")
    a(f"v_lshlrev_b32 v{P+6}, 3, v{P+4}")
    a(f"v_add_u32 v{P+6}, {P1_W}, v{P+6}")
    a(f"v_lshl_add_u32 v{P+7}, v{P}, 7, v{P+6}")
    a(f"v_lshl_add_u32 v{P+7}, v{P+1}, 11, v{P+7}")
    a(f"s_and_b32 s{T0}, s{W}, 2")
    a(f"v_lshl_add_u32 v{P+8}, v{P+2}, 10, v{P+7}")
    a(f"v_lshl_add_u32 v{P+8}, v{P+3}, 4, v{P+8}")
    a(f"v_lshl_add_u32 v{P+9}, v{P+2}, 1, v{P+5}")
    a(f"v_xor_b32 v{P+9}, s{T0}, v{P+9}")
    a(f"v_lshl_add_u32 v{V_TB}, v{P+9}, 5, v{P+8}")
    a(f"v_xor_b32 v{V_TB+1}, 32, v{V_TB}")
    a(f"v_mov_b32 v{V_TA}, v{V_TB}")
    a(f"v_mov_b32 v{V_TA+1}, v{V_TB+1}")
    a(f"s_cmp_ge_u32 s{S['CB']}, 4")
    a("s_cbranch_scc1 L_p1c_go")
    a(f"s_lshl_b32 s{T1}, s{S['CB']}, 2")
    a(f"s_add_u32 s{T1}, s{T1}, s{T0}")
    a(f"s_cmp_eq_u32 s{T1}, 14")
    a("s_cbranch_scc1 L_p1c_kvs")
    a(f"s_lshl_b32 s{T1}, s{T0}, 9")
    a(f"v_add_u32 v{P+8}, s{T1}, v{P+7}")
    a(f"v_lshl_add_u32 v{P+8}, v{P+2}, 4, v{P+8}")
    a(f"v_lshl_add_u32 v{P+8}, v{P+3}, 5, v{P+8}")
    a(f"v_lshl_add_u32 v{V_TA}, v{P+5}, 6, v{P+8}")
    a(f"v_xor_b32 v{V_TA+1}, 64, v{V_TA}")
    a("s_branch L_p1c_go")
    a.label("L_p1c_kvs")
    a(f"v_lshl_add_u32 v{P+8}, v{P}, 6, v{P+6}")
    a(f"v_lshl_add_u32 v{P+8}, v{P+1}, 9, v{P+8}")
    a(f"v_lshl_add_u32 v{P+8}, v{P+3}, 5, v{P+8}")
    a(f"v_lshl_add_u32 v{P+8}, v{P+2}, 4, v{P+8}")
    a(f"v_and_b32 v{P+9}, 19, v{V_L}")
    a(f"v_cmp_eq_u32 vcc, 17, v{P+9}")
    a(f"v_add_u32 v{P+9}, 1024, v{P+8}")
    a(f"v_add_u32 v{P+10}, 1032, v{P+8}")
    a(f"v_cndmask_b32 v{V_TA}, v{P+9}, v{P+10}, vcc")
    a(f"v_add_u32 v{V_TA+1}, 2048, v{V_TA}")
    a.label("L_p1c_go")
    a(f"v_and_b32 v{P}, 31, v{V_L}")
    a(f"v_lshlrev_b32 v{P}, 7, v{P}")
    a(f"s_and_b32 s{T1}, s{W}, 1")
    a(f"s_lshl_b32 s{T1}, s{T1}, 13")
    a(f"v_add_u32 v{P}, s{T1}, v{P}")
    a(f"v_bfe_u32 v{P+2}, v{V_L}, 1, 3")
    a(f"v_xor_b32 v{P+1}, v{P+1}, v{P+2}")
    for i in range(4):
        a(f"v_xor_b32 v{P+2}, {2*i}, v{P+1}")
        a(f"v_lshl_add_u32 v{V_XB+i}, v{P+2}, 4, v{P}")
    a(f"s_lshl_b32 s{C['RT']}, s{S['RB']}, 2")
    a(f"s_and_b32 s{T1}, s{W}, 1")
    a(f"s_lshl_b32 s{T1}, s{T1}, 1")
    a(f"s_add_u32 s{C['RT']}, s{C['RT']}, s{T1}")
    a(f"v_lshlrev_b32 v{P}, 4, v{V_L}")
    a(f"v_and_b32 v{P+4}, 31, v{V_L}")
    a(f"v_lshrrev_b32 v{P+5}, 5, v{V_L}")
    a(f"v_lshlrev_b32 v{P+6}, 4, v{P+4}")
    a(f"v_lshl_add_u32 v{P+6}, v{P+5}, 10, v{P+6}")
    a(f"s_lshl_b32 s{T0}, s{C['RT']}, 8")
    a(f"s_add_u32 s{T0}, s{T0}, {WS_ST}")
    a(f"v_lshl_add_u32 v{P+7}, v{P+4}, 3, s{T0}")
    a(f"s_and_b32 s{T0}, s{W}, 2")
    a(f"s_lshl_b32 s{T0}, s{T0}, 8")
    a(f"s_lshl_b32 s{T1}, s{S['CB']}, 14")
    a(f"s_add_u32 s{T1}, s{T1}, s{T0}")
    a(f"s_add_u32 s{T1}, s{T1}, {WS_CS + 4096}")
    a(f"v_lshl_add_u32 v{V_GA}, v{V_L}, 3, s{T1}")
    a(f"v_add_u32 v{V_GA+1}, 8192, v{V_GA}")
    a(f"s_lshl_b32 s{T1}, s{S['CB']}, 8")
    a(f"s_add_u32 s{T1}, s{T1}, {FL_CS}")
    a(f"v_lshl_add_u32 v{V_GA+2}, v{V_L}, 2, s{T1}")
    a(f"v_mov_b32 v{P+12}, {SCRN}")
    a(f"s_mov_b32 s{C['FWD']}, 16384")
    a(f"s_mov_b32 s{C['WRAP']}, {(-2*16384) & 0xffffffff}")
    a(f"s_mov_b32 s{C['SL']}, 0")
    a(f"s_mov_b32 s{C['FLAG']}, 0")
    for r in range(128):
        a(f"v_mov_b32 v{V_ACC+r}, 0")
    return C

POLL_AT = int(os.environ.get("POLL_AT", "3"))
EPI_AT = int(os.environ.get("EPI_AT", "6"))

def p1_compute(a, S, C, sc=" sc1"):
    W, T0, T1, T2 = S["W"], S["T0"], S["T1"], S["T2"]
    WS, NONCE = S["WS"], S["NONCE"]
    P = V_CT
    def acc(t, b, ps=0): return V_ACC + 64 * ps + 16 * (t + 2 * b)
    def reads(buf, j, kv=False):
        out = []
        for b in range(2):
            out.append(f"ds_read_b128 {vr(V_BF+8*buf+4*b,4)}, v{V_XB+j} offset:{4096*b}")
        for t in range(2):
            for hf in range(2):
                out.append(f"ds_read_b64_tr_b16 {vr(V_AF+8*buf+4*t+2*hf,2)}, v{V_TA+t} offset:{j*4096 + hf*(256 if kv else 512)}")
        return out
    def poll_ins():
        return [f"global_load_dwordx2 {vr(P+8,2)}, v{P+7}, s[{WS}:{WS+1}] sc1",
                f"global_load_dwordx2 {vr(P+10,2)}, v{P+7}, s[{WS}:{WS+1}] offset:256 sc1",
                f"global_load_dword v{V_GA+3}, v{V_GA+2}, s[{WS}:{WS+1}] sc1"]
    def gather_ins():
        return [f"global_load_dwordx2 {vr(V_G+2*q,2)}, v{V_GA+(q>>3)}, s[{WS}:{WS+1}] offset:{1024*(q&7) - 4096}" for q in range(16)]
    def flag(addr_s):
        a("s_waitcnt vmcnt(0)")
        a(f"v_mov_b32 v{P+1}, s{addr_s}")
        a(f"v_mov_b32 v{P+2}, s{NONCE}")
        a("s_mov_b64 exec, 1")
        a(f"global_store_dword v{P+1}, v{P+2}, s[{WS}:{WS+1}] sc1")
        a("s_mov_b64 exec, -1")
    a("s_waitcnt lgkmcnt(0)")
    a("s_barrier")
    stamp(a, 1)
    def loop(tag, kv, ps):
        a(f"s_mov_b32 s{C['IT']}, 7")
        a.label(f"L_p1c_loop{tag}")
        for j in range(4):
            cur, nxt = j & 1, (j & 1) ^ 1
            a("s_waitcnt lgkmcnt(0)")
            if j == 3:
                a("s_barrier")
            jj = (j + 1) & 3
            rd = reads(nxt, jj, kv)
            fills = [rd[0:3], rd[3:6], [], []]
            fills[2] += [f"v_add_u32 v{V_XB+jj}, s{C['FWD']}, v{V_XB+jj}"]
            if j == 2:
                fills[2] += [f"s_add_u32 s{C['SL']}, s{C['SL']}, 1",
                             f"s_cmp_eq_u32 s{C['SL']}, 3",
                             f"s_cselect_b32 s{T0}, s{C['WRAP']}, s{C['FWD']}",
                             f"s_cselect_b32 s{C['SL']}, 0, s{C['SL']}"]
                fills[3] += [f"v_add_u32 v{V_TA}, s{T0}, v{V_TA}", f"v_add_u32 v{V_TA+1}, s{T0}, v{V_TA+1}"]
            k = 0
            for b in range(2):
                for t in range(2):
                    A_, B_ = vr(V_AF + 8 * cur + 4 * t, 4), vr(V_BF + 8 * cur + 4 * b, 4)
                    if kv and t == 1:
                        A_, B_ = B_, A_
                    a(f"{MFMA} {vr(acc(t,b,ps),16)}, {A_}, {B_}, {vr(acc(t,b,ps),16)}")
                    for ins in fills[k]:
                        a(ins)
                    k += 1
        if ps == 0:
            a(f"s_cmp_lg_u32 s{C['IT']}, 5")
            a(f"s_cbranch_scc1 L_p1c_nn{tag}")
            a(f"ds_read_b32 v{P+13}, v{P+12}")
            a.label(f"L_p1c_nn{tag}")
            a(f"s_cmp_lg_u32 s{C['IT']}, {POLL_AT}")
            a(f"s_cbranch_scc1 L_p1c_np{tag}")
            for ins in poll_ins(): a(ins)
            a.label(f"L_p1c_np{tag}")
        if ps == 1:
            a(f"s_cmp_eq_u32 s{C['IT']}, {EPI_AT}")
            a("s_cbranch_scc1 L_p1c_epia")
            a(f"s_cmp_eq_u32 s{C['FLAG']}, 0")
            a(f"s_cbranch_scc1 L_p1c_back")
            a(f"s_cmp_gt_u32 s{C['IT']}, {EPI_AT-2}")
            a(f"s_cbranch_scc1 L_p1c_back")
            a("s_waitcnt vmcnt(0)")
            a(f"v_lshl_add_u32 v{P+1}, v{V_L}, 8, s{C['FLAG']}")
            a(f"v_mov_b32 v{P+2}, s{NONCE}")
            a(f"s_mov_b32 exec_lo, s{C['M1']}")
            a("s_mov_b32 exec_hi, 0")
            a(f"global_store_dword v{P+1}, v{P+2}, s[{WS}:{WS+1}] sc1")
            a("s_mov_b64 exec, -1")
            a(f"s_mov_b32 s{C['FLAG']}, 0")
            a.label("L_p1c_back")
        a(f"s_sub_u32 s{C['IT']}, s{C['IT']}, 1")
        a(f"s_cmp_lg_u32 s{C['IT']}, 0")
        a(f"s_cbranch_scc1 L_p1c_loop{tag}")
    def pass_entry(kv):
        for ins in reads(0, 0, kv):
            a(ins)
        a(f"v_add_u32 v{V_XB}, s{C['FWD']}, v{V_XB}")
    a(f"s_lshl_b32 s{T1}, s{S['CB']}, 2")
    a(f"s_and_b32 s{T0}, s{W}, 2")
    a(f"s_add_u32 s{T1}, s{T1}, s{T0}")
    a(f"s_cmp_eq_u32 s{T1}, 14")
    a("s_cbranch_scc0 L_p1c_passa")
    pass_entry(True)
    loop("v", True, 0)
    a("s_branch L_p1c_mid")
    a.label("L_p1c_passa")
    pass_entry(False)
    loop("a", False, 0)
    a.label("L_p1c_mid")
    stamp(a, 2)
    a("s_waitcnt lgkmcnt(0)")
    a(f"v_add_u32 v{V_TA}, 16384, v{V_TB}")
    a(f"v_add_u32 v{V_TA+1}, 16384, v{V_TB+1}")
    for i in range(4):
        a(f"v_add_u32 v{V_XB+i}, {(-(8 if i == 0 else 7)*16384) & 0xffffffff}, v{V_XB+i}")
    pass_entry(False)
    a(f"s_mov_b32 s{T2}, {SPIN_MAX}")
    a.label("L_p1c_ck")
    a("s_waitcnt vmcnt(0)")
    a(f"v_min3_u32 v{P+14}, v{P+13}, v{P+9}, v{P+11}")
    a(f"v_max3_u32 v{P+15}, v{P+13}, v{P+9}, v{P+11}")
    a(f"v_min_u32 v{P+14}, v{P+14}, v{V_GA+3}")
    a(f"v_max_u32 v{P+15}, v{P+15}, v{V_GA+3}")
    a(f"v_cmp_ne_u32 vcc, v{P+14}, v{P+15}")
    a(f"v_cmp_eq_u32 s[{C['M2']}:{C['M2']+1}], 0, v{P+14}")
    a("s_nop 1")
    a(f"s_or_b64 vcc, vcc, s[{C['M2']}:{C['M2']+1}]")
    a(f"s_cbranch_scc0 L_p1c_ok")
    a(f"s_sub_u32 s{T2}, s{T2}, 1")
    a(f"s_cmp_eq_u32 s{T2}, 0")
    a(f"s_cbranch_scc1 L_p1c_ok")
    a("s_sleep 4")
    for ins in poll_ins(): a(ins)
    a(f"s_branch L_p1c_ck")
    a.label("L_p1c_ok")
    for ins in gather_ins(): a(ins)
    a(f"v_readfirstlane_b32 s{NONCE}, v{P+13}")
    loop("b", False, 1)
    if S.get("HSTAMP"): stamp(a, 5)
    a(f"s_add_u32 s{T1}, s{S['CB']}, 12")
    def corr(kv, ps):
        for b in range(2):
            for t in range(2):
                A_, B_ = vr(V_CS + 8 * ps + 4 * t, 4), vr(V_MB + 4 * b, 4)
                if kv and t == 1:
                    A_, B_ = B_, A_
                a(f"{MFMA} {vr(acc(t,b,ps),16)}, {A_}, {B_}, {vr(acc(t,b,ps),16)}")
    def gu_epilogue(ps):
        corr(False, ps)
        a(f"s_lshl_b32 s{T1}, s{T1}, 2")
        a(f"s_and_b32 s{T0}, s{W}, 2")
        a(f"s_add_u32 s{T1}, s{T1}, s{T0}")
        a(f"s_mul_i32 s{T0}, s{C['RT']}, 112")
        a(f"s_add_u32 s{T0}, s{T0}, s{T1}")
        a(f"s_lshl_b32 s{T0}, s{T0}, 10")
        a(f"s_add_u32 s{T0}, s{T0}, {WS_H}")
        a(f"v_add_u32 v{P+1}, s{T0}, v{P}")
        a(f"v_add_u32 v{P+2}, {112*1024}, v{P+1}")
        a("s_nop 3")
        for b in range(2):
            for t in range(2):
                c = acc(t, b, ps); o = V_EO + 4 * (t + 2 * b)
                for r in range(8):
                    a(f"v_max_f32 v{c+r}, 0, v{c+r}")
                for r in range(8):
                    a(f"v_mul_f32 v{c+r}, v{c+r}, v{c+8+r}")
                for r in range(4):
                    a(f"v_cvt_pk_bf16_f32 v{o+r}, v{c+2*r}, v{c+2*r+1}")
                a(f"global_store_dwordx4 v{P+1+b}, {vr(o,4)}, s[{WS}:{WS+1}] offset:{1024*t}{sc}")
    gu_epilogue(1)
    a("s_branch L_p1c_done")
    a.label("L_p1c_epia")
    stamp(a, 3)
    a("s_waitcnt vmcnt(0)")
    for ps in range(2):
        a(f"v_add_f32 v{P+14+ps}, v{V_G+ps}, v{V_G+2+ps}")
    for q in range(2, 16):
        for ps in range(2):
            a(f"v_add_f32 v{P+14+ps}, v{P+14+ps}, v{V_G+2*q+ps}")
    for ps in range(2):
        c = V_CS + 8 * ps; s_ = P + 14 + ps
        a(f"v_and_b32 v{c+1}, 0xffff0000, v{s_}")
        a(f"v_sub_f32 v{c+2}, v{s_}, v{c+1}")
        a(f"v_and_b32 v{c+3}, 0xffff0000, v{c+2}")
        a(f"v_sub_f32 v{c+2}, v{c+2}, v{c+3}")
        a(f"v_lshrrev_b32 v{c}, 16, v{c+1}")
        a(f"v_or_b32 v{c}, v{c}, v{c+3}")
        a(f"v_lshrrev_b32 v{c+1}, 16, v{c+2}")
        for r in (2, 3, 4, 5, 6, 7):
            a(f"v_mov_b32 v{c+r}, 0")
    for b in range(2):
        m = V_MB + 4 * b
        a(f"v_and_b32 v{m+1}, 0xffff, v{P+8+2*b}")
        a(f"v_xor_b32 v{m+1}, 0x8000, v{m+1}")
        a(f"v_lshl_or_b32 v{m}, v{m+1}, 16, v{m+1}")
        a(f"v_mov_b32 v{m+2}, 0")
        a(f"v_mov_b32 v{m+3}, 0")
        a(f"v_and_b32 v{V_SR+b}, 0xffff0000, v{P+8+2*b}")
        a(f"v_rcp_f32 v{V_SR+b}, v{V_SR+b}")
    for ps in range(2):
        c = V_CS + 8 * ps
        a(f"v_permlane32_swap_b32 v{c}, v{c+4}")
        a(f"v_permlane32_swap_b32 v{c+1}, v{c+5}")
    a("s_mov_b32 exec_lo, 0")
    for b in range(2):
        a(f"v_mov_b32 v{V_MB+4*b}, 0")
        a(f"v_mov_b32 v{V_MB+4*b+1}, 0")
    a("s_mov_b64 exec, -1")
    a(f"s_cmp_lt_u32 s{S['CB']}, 4")
    a("s_cbranch_scc1 L_p1c_epiq")
    a(f"s_sub_u32 s{T1}, s{S['CB']}, 4")
    gu_epilogue(0)
    if S.get("HSTAMP"): stamp(a, 4)
    a("s_branch L_p1c_back")
    a.label("L_p1c_epiq")
    a(f"s_cmp_lg_u32 s{S['CB']}, 3")
    a("s_cbranch_scc1 L_p1c_epiq2")
    a(f"s_cmp_ge_u32 s{W}, 2")
    a("s_cbranch_scc1 L_p1c_epikv")
    a.label("L_p1c_epiq2")
    corr(False, 0)
    a(f"s_mul_i32 s{T0}, s{C['RT']}, {56*512}")
    a(f"s_lshl_b32 s{T1}, s{S['CB']}, 13")
    a(f"s_add_u32 s{T0}, s{T0}, s{T1}")
    a(f"s_and_b32 s{T1}, s{W}, 2")
    a(f"s_lshl_b32 s{T1}, s{T1}, 11")
    a(f"s_add_u32 s{T0}, s{T0}, s{T1}")
    a(f"s_add_u32 s{T0}, s{T0}, {WS_Q}")
    a(f"v_add_u32 v{P+1}, s{T0}, v{P+6}")
    a(f"v_add_u32 v{P+2}, {56*512}, v{P+1}")
    for b in range(2):
        a(f"v_mul_f32 v{P+8+b}, {hex(f32bits(QSCALE))}, v{V_SR+b}")
    a("s_nop 1")
    for b in range(2):
        for t in range(2):
            c = acc(t, b); o = V_EO + 8 * (t + 2 * b)
            for r in range(16):
                a(f"v_mul_f32 v{c+r}, v{c+r}, v{P+8+b}")
            for r in range(8):
                a(f"v_cvt_pk_bf16_f32 v{o+r}, v{c+2*r}, v{c+2*r+1}")
            a(f"global_store_dwordx4 v{P+1+b}, {vr(o,4)}, s[{WS}:{WS+1}] offset:{2048*t}{sc}")
            a(f"global_store_dwordx4 v{P+1+b}, {vr(o+4,4)}, s[{WS}:{WS+1}] offset:{2048*t+512}{sc}")
    a(f"s_lshl_b32 s{T0}, s{C['RT']}, 7")
    a(f"s_lshl_b32 s{T1}, s{S['CB']}, 3")
    a(f"s_add_u32 s{T0}, s{T0}, s{T1}")
    a(f"s_and_b32 s{T1}, s{W}, 2")
    a(f"s_lshl_b32 s{T1}, s{T1}, 1")
    a(f"s_add_u32 s{T0}, s{T0}, s{T1}")
    a(f"s_add_u32 s{C['FLAG']}, s{T0}, {FL_Q}")
    a(f"s_mov_b32 s{C['M1']}, 1")
    if S.get("HSTAMP"): stamp(a, 4)
    a("s_branch L_p1c_back")
    a.label("L_p1c_epikv")
    M1, M2 = C["M1"], C["M2"]
    corr(True, 0)
    a(f"v_cmp_eq_u32 s[{M1}:{M1+1}], 1, v{P+5}")
    a(f"v_lshlrev_b32 v{P+14}, 4, v{P+5}")
    a(f"s_mul_i32 s{T0}, s{C['RT']}, {KVT}")
    a(f"s_add_u32 s{T0}, s{T0}, {WS_KV + 2048}")
    a(f"v_mov_b32 v{P+8}, 0x3f803f80")
    a(f"v_mov_b32 v{P+9}, 0x00003f80")
    a(f"v_mov_b32 v{P+10}, 0")
    a(f"v_mov_b32 v{P+11}, 1024")
    a(f"v_mov_b32 v{P+13}, -1024")
    a(f"v_cmp_eq_u32 vcc, 28, v{P+4}")
    a(f"v_cmp_le_u32 s[{M2}:{M2+1}], 28, v{P+4}")
    a(f"v_cndmask_b32 v{P+11}, v{P+11}, v{P+13}, s[{M1}:{M1+1}]")
    a(f"v_cndmask_b32 v{P+13}, v{P+10}, v{P+8}, vcc")
    for b in range(2):
        a(f"v_add_u32 v{P+1}, s{T0}, v{P+6}")
        a(f"v_add_u32 v{P+2}, s{T0}, v{P}")
        a(f"v_add_u32 v{P+3}, v{P+11}, v{P+1}")
        c = acc(0, b); o = V_EO + 16 * b
        for r in range(16):
            a(f"v_mul_f32 v{c+r}, v{c+r}, v{V_SR+b}")
        for r in range(8):
            a(f"v_cvt_pk_bf16_f32 v{o+r}, v{c+2*r}, v{c+2*r+1}")
        for r in range(16):
            off = 4 * ((r & 3) + 8 * (r >> 2))
            a(f"ds_bpermute_b32 v{c+r}, v{P+14}, v{V_SR+b} offset:{off}")
        a(f"v_cndmask_b32 v{o+6}, v{o+6}, v{P+8}, s[{M1}:{M1+1}]")
        a(f"v_cndmask_b32 v{o+7}, v{o+7}, v{P+9}, s[{M1}:{M1+1}]")
        a(f"global_store_dwordx4 v{P+1}, {vr(o,4)}, s[{WS}:{WS+1}] offset:-2048{sc}")
        a(f"global_store_dwordx4 v{P+1}, {vr(o+4,4)}, s[{WS}:{WS+1}] offset:-1536{sc}")
        for q in range(3):
            cs = q + 1
            a(f"global_store_dwordx2 v{P+1}, {vr(o+2*q,2)}, s[{WS}:{WS+1}] offset:{(cs>>1)*512 + (cs&1)*8}{sc}")
        a(f"global_store_dwordx2 v{P+3}, {vr(o+6,2)}, s[{WS}:{WS+1}]{sc}")
        ck = c
        c = acc(1, b); o = V_EO + 16 * b + 8
        a("s_waitcnt lgkmcnt(0)")
        for r in range(16):
            a(f"v_mul_f32 v{c+r}, v{c+r}, v{ck+r}")
        for r in range(8):
            a(f"v_cvt_pk_bf16_f32 v{o+r}, v{c+2*r}, v{c+2*r+1}")
        for r in range(8):
            a(f"v_cndmask_b32 v{o+r}, v{o+r}, v{P+13}, s[{M2}:{M2+1}]")
        a(f"global_store_dwordx4 v{P+2}, {vr(o,4)}, s[{WS}:{WS+1}] offset:2048{sc}")
        a(f"global_store_dwordx4 v{P+2}, {vr(o+4,4)}, s[{WS}:{WS+1}] offset:3072{sc}")
        a(f"s_add_u32 s{T0}, s{T0}, {KVT}")
    a(f"s_lshl_b32 s{T0}, s{C['RT']}, 1")
    a(f"s_add_u32 s{C['FLAG']}, s{T0}, {FL_KV}")
    a(f"s_mov_b32 s{C['M1']}, -1")
    if S.get("HSTAMP"): stamp(a, 4)
    a("s_branch L_p1c_back")
    a.label("L_p1c_done")
    a(f"s_lshl_b32 s{T0}, s{C['RT']}, 6")
    a(f"s_lshl_b32 s{T1}, s{S['CB']}, 3")
    a(f"s_add_u32 s{T0}, s{T0}, s{T1}")
    a(f"s_and_b32 s{T1}, s{W}, 2")
    a(f"s_lshl_b32 s{T1}, s{T1}, 1")
    a(f"s_add_u32 s{T0}, s{T0}, s{T1}")
    a(f"s_add_u32 s{T0}, s{T0}, {FL_H}")
    return flag


def k1n(a):
    name = "k1_kernel"
    kernel_head(a, name)
    S = dict(X=4, WQ=6, WK=8, WV=10, WG=12, WU=14, DBG=16, WS=18, RB=20, CB=21, W=22, T0=23, T1=24, T2=25, T3=26,
             NONCE=27, sb=32, HSTAMP=1)
    a("s_cmp_ge_u32 s2, 256")
    a("s_cbranch_scc1 L_k1_end")
    stamp(a, 0)
    a(f"s_load_dwordx4 s[4:7], s[0:1], 0")
    a(f"s_load_dwordx4 s[8:11], s[0:1], 16")
    a(f"s_load_dwordx4 s[12:15], s[0:1], 48")
    a(f"s_load_dwordx4 s[16:19], s[0:1], 80")
    a("v_lshrrev_b32 v1, 6, v0")
    p1_ids(a, S["RB"], S["CB"], S["T0"], S["T1"], S["T2"])
    a(f"v_readfirstlane_b32 s{S['W']}, v1")
    a(f"v_and_b32 v{V_L}, 63, v0")
    a("s_nop 3")
    a(f"s_cmp_ge_u32 s{S['W']}, 4")
    a("s_cbranch_scc1 L_k1_helper")
    p1_rowstats(a, S)
    C = p1_compute_setup(a, S)
    p1_rowstats2(a, S)
    flag = p1_compute(a, S, C)
    stamp(a, 6)
    flag(S["T0"])
    stamp_flush(a, 7, "k1a")
    a("s_endpgm")
    a.label("L_k1_helper")
    p1_helper(a, S)
    stamp_flush(a, 8, "k1h", kidx=4, tid=256)
    a.label("L_k1_end")
    a("s_endpgm")
    kernel_desc(a, name, 256, 0)
    return (name, 256, 512, P1_LDS)
```

```python
from gen import *
import p1
from p1 import WS_ST, FL_KV, FL_Q, FL_H, FL_O, SPIN_MAX

L_RING = 0
L_RED  = 65536
L_ATT  = 114688

def poll(a, tag, vaddr, vtmp, S, s_cnt, first_issued=False, sleep=1):
    WS = S["WS"]
    a(f"s_mov_b32 s{s_cnt}, {SPIN_MAX}")
    if not first_issued:
        a(f"global_load_dword v{vtmp}, v{vaddr}, s[{WS}:{WS+1}] sc1")
    a.label(f"L_poll{tag}")
    a("s_waitcnt vmcnt(0)")
    a(f"v_cmp_ne_u32 vcc, s{S['NONCE']}, v{vtmp}")
    a(f"s_sub_u32 s{s_cnt}, s{s_cnt}, 1")
    a(f"s_cmp_eq_u32 s{s_cnt}, 0")
    a(f"s_cbranch_scc1 L_polld{tag}")
    a(f"s_cbranch_vccz L_polld{tag}")
    if sleep:
        a(f"s_sleep {sleep}")
    a(f"global_load_dword v{vtmp}, v{vaddr}, s[{WS}:{WS+1}] sc1")
    a(f"s_branch L_poll{tag}")
    a.label(f"L_polld{tag}")

L_RELAY = L_RED

def relay_set(a, S, idx, v0_, v1_):
    a(f"v_mov_b32 v{v0_}, {L_RELAY + 4*idx}")
    a(f"v_mov_b32 v{v1_}, 1")
    a(f"ds_write_b32 v{v0_}, v{v1_}")

def relay_wait(a, tag, S, idx, v0_, v1_, s_cnt, s_t):
    a(f"v_mov_b32 v{v0_}, {L_RELAY + 4*idx}")
    a(f"s_mov_b32 s{s_cnt}, {SPIN_MAX * 16}")
    a.label(f"L_rw{tag}")
    a(f"ds_read_b32 v{v1_}, v{v0_}")
    a("s_waitcnt lgkmcnt(0)")
    a(f"v_readfirstlane_b32 s{s_t}, v{v1_}")
    a(f"s_sub_u32 s{s_cnt}, s{s_cnt}, 1")
    a(f"s_cmp_eq_u32 s{s_cnt}, 0")
    a(f"s_cbranch_scc1 L_rwd{tag}")
    a(f"s_cmp_lg_u32 s{s_t}, 0")
    a(f"s_cbranch_scc1 L_rwd{tag}")
    a("s_sleep 1")
    a(f"s_branch L_rw{tag}")
    a.label(f"L_rwd{tag}")

def put_flag(a, S, s_addr, v0_, v1_):
    WS = S["WS"]
    a(f"v_mov_b32 v{v0_}, s{s_addr}")
    a(f"v_mov_b32 v{v1_}, s{S['NONCE']}")
    a("s_mov_b64 exec, 1")
    a(f"global_store_dword v{v0_}, v{v1_}, s[{WS}:{WS+1}] sc1")
    a("s_mov_b64 exec, -1")

def attention(a, S, s_hflag):
    S_W, S_WS = S["W"], S["WS"]
    sb = S["sb"] + 4
    V_LANE, V_KO, V_VO = 1, 2, 3
    V_T = 4; V_M = 12; V_Q = 16; V_O = 48; V_S = 112; V_P = 144; V_KV = 160
    S_SRD = sb
    S_OFF, S_IT, S_PASS, S_T0, S_T1, S_PAR = sb + 4, sb + 5, sb + 6, sb + 7, sb + 8, sb + 9
    S_EX = sb + 10
    S_RT, S_HG = sb + 12, sb + 13
    def Qf(g, t): return vr(V_Q + 8 * g + 4 * t, 4)
    def Kf(b, t): return vr(V_KV + 16 * b + 4 * t, 4)
    def Vf(b, t): return vr(V_KV + 16 * b + 8 + 4 * t, 4)
    def O(g): return vr(V_O + 16 * g, 16)
    def Sx(i): return vr(V_S + 16 * i, 16)
    a(f"s_lshr_b32 s{S_RT}, s2, 2")
    a(f"s_and_b32 s{S_HG}, s2, 3")
    a(f"s_and_b32 s{S_PAR}, s{S_HG}, 1")
    a(f"s_mul_i32 s{S_T0}, s{S_W}, {16*KVT}")
    a(f"s_add_u32 s{S_T0}, s{S_T0}, {WS_KV}")
    a(f"s_add_u32 s{S_SRD}, s{S_WS}, s{S_T0}")
    a(f"s_addc_u32 s{S_SRD+1}, s{S_WS+1}, 0")
    a(f"s_and_b32 s{S_SRD+1}, s{S_SRD+1}, 0xffff")
    a(f"s_mov_b32 s{S_SRD+2}, {16*KVT}")
    a(f"s_mov_b32 s{S_SRD+3}, 0x00020000")
    a(f"v_lshlrev_b32 v{V_KO}, 4, v{V_LANE}")
    a(f"v_add_u32 v{V_VO}, 4096, v{V_KO}")
    a(f"s_lshr_b32 s{S_T0}, s{S_HG}, 1")
    a(f"s_mul_i32 s{S_T0}, s{S_T0}, 28")
    a(f"s_mul_i32 s{S_T1}, s{S_PAR}, 3")
    a(f"s_add_u32 s{S_T0}, s{S_T0}, s{S_T1}")
    a(f"s_mul_i32 s{S_T1}, s{S_RT}, 56")
    a(f"s_add_u32 s{S_T0}, s{S_T0}, s{S_T1}")
    a(f"s_lshl_b32 s{S_T0}, s{S_T0}, 9")
    a(f"s_add_u32 s{S_T0}, s{S_T0}, {WS_Q}")
    for g in range(4):
        a(f"s_xor_b32 s{S_T1}, s{S_W}, {g}")
        a(f"s_mul_i32 s{S_T1}, s{S_T1}, {7*512}")
        a(f"s_add_u32 s{S_T1}, s{S_T1}, s{S_T0}")
        a(f"v_add_u32 v{V_T+4+g}, s{S_T1}, v{V_KO}")
    a(f"s_lshl_b32 s{S_T0}, s{S_PAR}, 11")
    a(f"v_add_u32 v{V_KO}, s{S_T0}, v{V_KO}")
    a(f"s_cmp_eq_u32 s{S_PAR}, 0")
    a(f"s_cselect_b32 s{S_EX}, 0, -1")
    a(f"s_cselect_b32 s{S_EX+1}, -1, 0")
    a(f"s_mov_b32 s{S_PASS}, 0")
    relay_wait(a, "kv", S, 0, V_T, V_T + 1, S_IT, S_T0)
    stamp(a, 1)
    for g in range(4):
        for t in range(2):
            a(f"global_load_dwordx4 {Qf(g,t)}, v{V_T+4+g}, s[{S_WS}:{S_WS+1}] offset:{1024*t}")
    def load_k(b):
        for t in range(2):
            a(f"buffer_load_dwordx4 {Kf(b,t)}, v{V_KO}, s[{S_SRD}:{S_SRD+3}], s{S_OFF} offen offset:{1024*t}")
    def load_v(b):
        for t in range(2):
            a(f"buffer_load_dwordx4 {Vf(b,t)}, v{V_VO}, s[{S_SRD}:{S_SRD+3}], s{S_OFF} offen offset:{1024*t}")
    def set_pads(src):
        a(f"s_mov_b64 exec, s[{S_EX}:{S_EX+1}]")
        a(f"s_cmp_eq_u32 s{S_PAR}, 0")
        lab = set_pads.n; set_pads.n += 1
        a(f"s_cbranch_scc0 L_at_padodd{lab}")
        for g in range(4):
            r0, r1 = src(g)
            a(f"v_mov_b32 v{V_Q+8*g+6}, {r0}")
            a(f"v_mov_b32 v{V_Q+8*g+7}, {r1}")
        a(f"s_branch L_at_paddone{lab}")
        a.label(f"L_at_padodd{lab}")
        for g in range(4):
            r0, r1 = src(g)
            a(f"v_mov_b32 v{V_Q+8*g+0}, {r0}")
            a(f"v_mov_b32 v{V_Q+8*g+1}, {r1}")
        a.label(f"L_at_paddone{lab}")
        a("s_mov_b64 exec, -1")
    set_pads.n = 0
    def qk(i, g, b):
        return [f"{MFMA} {Sx(i)}, {Kf(b,0)}, {Qf(g,0)}, 0",
                f"{MFMA} {Sx(i)}, {Kf(b,1)}, {Qf(g,1)}, {Sx(i)}"]
    def max_into(g, base, first):
        b = base
        if first:
            a(f"v_max3_f32 v{V_M+g}, v{b}, v{b+1}, v{b+2}")
            rest = list(range(3, 16))
        else:
            rest = list(range(0, 16))
        while len(rest) >= 2:
            a(f"v_max3_f32 v{V_M+g}, v{V_M+g}, v{b+rest[0]}, v{b+rest[1]}")
            rest = rest[2:]
        if rest:
            a(f"v_max_f32 v{V_M+g}, v{V_M+g}, v{b+rest[0]}")
    def first_loads():
        a(f"s_mov_b32 s{S_OFF}, 0")
        for b in range(3):
            load_k(b); load_v(b)
            a(f"s_add_u32 s{S_OFF}, s{S_OFF}, {KVT}")
    first_loads()
    a("s_waitcnt vmcnt(20)")
    stamp(a, 2)
    put_flag(a, S, s_hflag, V_T, V_T + 1)
    a("s_waitcnt vmcnt(13)")
    set_pads(lambda g: ("0", "0"))
    a("s_waitcnt vmcnt(11)")
    stamp(a, 3)
    a("s_nop 1")
    for g in range(4):
        a(f"{MFMA} {O(g)}, {Kf(0,0)}, {Qf(g,0)}, 0")
        a(f"{MFMA} {O(g)}, {Kf(0,1)}, {Qf(g,1)}, {O(g)}")
    a("s_nop 5")
    for g in range(4):
        max_into(g, V_O + 16 * g, True)
    a.label("L_at_setmax")
    for g in range(4):
        a(f"v_mov_b32 v{V_T+g}, v{V_M+g}")
    a("s_nop 1")
    for g in range(4):
        a(f"v_permlane32_swap_b32 v{V_M+g}, v{V_T+g}")
    a("s_nop 1")
    for g in range(4):
        a(f"v_max_f32 v{V_M+g}, v{V_M+g}, v{V_T+g}")
    for g in range(4):
        hi, r, mid = V_S + 4 * g, V_S + 4 * g + 1, V_S + 4 * g + 2
        a(f"v_and_b32 v{hi}, 0xffff0000, v{V_M+g}")
        a(f"v_sub_f32 v{r}, v{V_M+g}, v{hi}")
        a(f"v_and_b32 v{mid}, 0xffff0000, v{r}")
        a(f"v_sub_f32 v{r}, v{r}, v{mid}")
        a(f"v_lshrrev_b32 v{hi}, 16, v{hi}")
        a(f"v_or_b32 v{hi}, v{hi}, v{mid}")
        a(f"v_xor_b32 v{hi}, 0x80008000, v{hi}")
        a(f"v_lshrrev_b32 v{r}, 16, v{r}")
        a(f"v_xor_b32 v{r}, 0x8000, v{r}")
    set_pads(lambda g: (f"v{V_S+4*g}", f"v{V_S+4*g+1}"))
    a("s_nop 0")
    for ins in qk(0, 0, 0):
        a(ins)
    for r in range(64):
        a(f"v_mov_b32 v{V_O+r}, 0")
    for r in range(8):
        a(f"v_mov_b32 v{V_P+8+r}, 0")
        a(f"v_mov_b32 v{V_KV+48+8+r}, 0")
    a(f"s_mov_b32 s{S_IT}, 4")
    stamp(a, 5)
    a.label("L_at_main")
    for u in range(16):
        kt, g = u >> 2, u & 3
        cur, nxt = u & 1, (u & 1) ^ 1
        nkt, ng = ((u + 1) >> 2) & 3, (u + 1) & 3
        pkt, pg = ((u - 1) >> 2) & 3, (u - 1) & 3
        if g == 3:
            a("s_waitcnt vmcnt(10)")
        if g == 1:
            a("s_waitcnt vmcnt(8)")
        q = qk(nxt, ng, nkt)
        pp = V_P + 8 * nxt
        pv = [f"{MFMA} {O(pg)}, {Vf(pkt,0)}, {vr(pp,4)}, {O(pg)}",
              f"{MFMA} {O(pg)}, {Vf(pkt,1)}, {vr(pp+4,4)}, {O(pg)}"]
        sb_ = V_S + 16 * cur
        ex = [f"v_exp_f32 v{sb_+i}, v{sb_+i}" for i in range(16)]
        cv = [f"v_cvt_pk_bf16_f32 v{V_P+8*cur+i}, v{sb_+2*i}, v{sb_+2*i+1}" for i in range(8)]
        mf = [q[0], q[1], pv[0], pv[1]]
        for k in range(4):
            a(mf[k])
            for ins in ex[4*k:4*k+4]:
                a(ins)
            if k:
                for ins in cv[2*k-2:2*k]:
                    a(ins)
        for ins in cv[6:8]:
            a(ins)
        if g == 1:
            load_k((kt + 3) & 3); load_v((kt + 3) & 3)
            a(f"s_add_u32 s{S_OFF}, s{S_OFF}, {KVT}")
    a(f"s_sub_u32 s{S_IT}, s{S_IT}, 1")
    a(f"s_cmp_lg_u32 s{S_IT}, 0")
    a("s_cbranch_scc1 L_at_main")
    pp = V_P + 8
    a(f"{MFMA} {O(3)}, {Vf(3,0)}, {vr(pp,4)}, {O(3)}")
    a(f"{MFMA} {O(3)}, {Vf(3,1)}, {vr(pp+4,4)}, {O(3)}")
    stamp(a, 6)
    for i in range(4):
        a(f"v_add_f32 v{V_T+i}, v{V_O+i}, v{V_O+4+i}")
    for r in range(8, 64):
        a(f"v_add_f32 v{V_T+(r&3)}, v{V_T+(r&3)}, v{V_O+r}")
    a(f"v_add_f32 v{V_T}, v{V_T}, v{V_T+1}")
    a(f"v_add_f32 v{V_T+2}, v{V_T+2}, v{V_T+3}")
    a(f"v_add_f32 v{V_T}, v{V_T}, v{V_T+2}")
    a(f"v_mov_b32 v{V_T+1}, 0x207")
    a(f"v_cmp_class_f32 vcc, v{V_T}, v{V_T+1}")
    a(f"s_cmp_lg_u32 s{S_PASS}, 0")
    a("s_cbranch_scc1 L_at_reduce")
    a("s_cbranch_vccz L_at_reduce")
    a(f"s_mov_b32 s{S_PASS}, 1")
    a("s_waitcnt vmcnt(0)")
    set_pads(lambda g: ("0", "0"))
    for g in range(4):
        a(f"v_mov_b32 v{V_M+g}, 0xff800000")
    a(f"s_mov_b32 s{S_OFF}, 0")
    a(f"s_mov_b32 s{S_IT}, 16")
    a.label("L_at_slow")
    load_k(0)
    a(f"s_add_u32 s{S_OFF}, s{S_OFF}, {KVT}")
    a("s_waitcnt vmcnt(0)")
    for g in range(4):
        for ins in qk(0, g, 0):
            a(ins)
        a("s_nop 15")
        max_into(g, V_S, False)
    a(f"s_sub_u32 s{S_IT}, s{S_IT}, 1")
    a(f"s_cmp_lg_u32 s{S_IT}, 0")
    a("s_cbranch_scc1 L_at_slow")
    first_loads()
    a("s_waitcnt vmcnt(10)")
    a("s_branch L_at_setmax")
    a.label("L_at_reduce")
    a("s_mov_b32 exec_lo, 0")
    for g in range(1, 4):
        a(f"v_mov_b32 v{V_O+16*g+13}, v{V_M+g}")
    a("s_mov_b64 exec, -1")
    a(f"v_lshlrev_b32 v{V_T}, 4, v{V_LANE}")
    for g in range(1, 4):
        a(f"s_xor_b32 s{S_T0}, s{S_W}, {g}")
        a(f"s_mul_i32 s{S_T0}, s{S_T0}, 12288")
        a(f"s_add_u32 s{S_T0}, s{S_T0}, {L_ATT + (g-1)*4096}")
        a(f"v_add_u32 v{V_T+1}, s{S_T0}, v{V_T}")
        for qd in range(4):
            a(f"ds_write_b128 v{V_T+1}, {vr(V_O+16*g+4*qd,4)} offset:{1024*qd}")
    a(f"s_mul_i32 s{S_T0}, s{S_W}, 12288")
    a(f"s_add_u32 s{S_T0}, s{S_T0}, {L_ATT}")
    a(f"v_add_u32 v{V_T+1}, s{S_T0}, v{V_T}")
    a(f"s_lshr_b32 s{S_T0}, s{S_HG}, 1")
    a(f"s_lshl_b32 s{S_T0}, s{S_T0}, 3")
    a(f"s_lshl_b32 s{S_T1}, s{S_W}, 1")
    a(f"s_add_u32 s{S_T0}, s{S_T0}, s{S_T1}")
    a(f"s_add_u32 s{S_T0}, s{S_T0}, s{S_PAR}")
    a(f"s_lshl_b32 s{S_T0}, s{S_T0}, 11")
    a(f"s_lshl_b32 s{S_T1}, s{S_RT}, 15")
    a(f"s_add_u32 s{S_T0}, s{S_T0}, s{S_T1}")
    a(f"s_add_u32 s{S_T0}, s{S_T0}, {WS_O}")
    a(f"v_and_b32 v{V_T}, 31, v{V_LANE}")
    a(f"v_lshlrev_b32 v{V_T}, 4, v{V_T}")
    a(f"v_lshrrev_b32 v{V_T+2}, 5, v{V_LANE}")
    a(f"v_lshl_add_u32 v{V_T}, v{V_T+2}, 10, v{V_T}")
    a(f"v_add_u32 v{V_T}, s{S_T0}, v{V_T}")
    a(f"s_lshl_b32 s{S_T0}, s2, 2")
    a(f"s_add_u32 s{S_T0}, s{S_T0}, s{S_W}")
    a(f"s_lshl_b32 s{S_T0}, s{S_T0}, 2")
    a(f"s_add_u32 s{S_T0}, s{S_T0}, {FL_O}")
    a("s_waitcnt lgkmcnt(0)")
    a("s_barrier")
    for g in range(1, 4):
        for qd in (3, 0, 1, 2):
            a(f"ds_read_b128 {vr(V_O+16*g+4*qd,4)}, v{V_T+1} offset:{(g-1)*4096 + 1024*qd}")
    a("s_waitcnt lgkmcnt(3)")
    for g in range(1, 4):
        a(f"v_mov_b32 v{V_M+g}, v{V_O+16*g+13}")
        a(f"v_mov_b32 v{V_T+4+g}, v{V_O+16*g+13}")
    a("s_nop 1")
    for g in range(1, 4):
        a(f"v_permlane32_swap_b32 v{V_T+4+g}, v{V_M+g}")
    a("s_nop 1")
    a(f"v_max3_f32 v{V_T+4}, v{V_M}, v{V_M+1}, v{V_M+2}")
    a(f"v_max_f32 v{V_T+4}, v{V_T+4}, v{V_M+3}")
    for sw in range(4):
        a(f"v_sub_f32 v{V_M+sw}, v{V_M+sw}, v{V_T+4}")
    for sw in range(4):
        a(f"v_exp_f32 v{V_M+sw}, v{V_M+sw}")
    a("s_waitcnt lgkmcnt(0)")
    for r in range(16):
        a(f"v_mul_f32 v{V_O+r}, v{V_O+r}, v{V_M}")
    for sw in range(1, 4):
        for r in range(16):
            a(f"v_fmac_f32 v{V_O+r}, v{V_O+16*sw+r}, v{V_M+sw}")
    a(f"v_mov_b32 v{V_T+4}, v{V_O+12}")
    a(f"v_mov_b32 v{V_T+5}, v{V_O+12}")
    a("s_nop 1")
    a(f"v_permlane32_swap_b32 v{V_T+4}, v{V_T+5}")
    a("s_nop 1")
    a(f"v_rcp_f32 v{V_T+5}, v{V_T+5}")
    a(f"v_cmp_eq_u32 vcc, 1, v{V_T+2}")
    for r in range(16):
        a(f"v_mul_f32 v{V_O+r}, v{V_O+r}, v{V_T+5}")
    for r in range(8):
        a(f"v_cvt_pk_bf16_f32 v{V_S+r}, v{V_O+2*r}, v{V_O+2*r+1}")
    a(f"v_mov_b32 v{V_T+4}, 0")
    a(f"v_cndmask_b32 v{V_S+6}, v{V_S+6}, v{V_T+4}, vcc")
    a(f"v_cndmask_b32 v{V_S+7}, v{V_S+7}, v{V_T+4}, vcc")
    a(f"global_store_dwordx4 v{V_T}, {vr(V_S,4)}, s[{S_WS}:{S_WS+1}] sc1")
    a(f"global_store_dwordx4 v{V_T}, {vr(V_S+4,4)}, s[{S_WS}:{S_WS+1}] offset:512 sc1")
    a("s_waitcnt vmcnt(0)")
    put_flag(a, S, S_T0, V_T + 4, V_T + 5)

class Gemm:
    def __init__(self, a, R, NK, U, S_WSRD, S_WOFF, wstep, S_BSRD, S_BOFF, S_LB):
        self.__dict__.update(locals())
        self.vm = []
    def wait(self, *labels):
        vm = self.vm
        last = max(i for i, l in enumerate(vm) if l in labels)
        self.a(f"s_waitcnt vmcnt({len(vm) - 1 - last})")
    def issue_w(self, k):
        a, R, j = self.a, self.R, k % self.U
        for p in range(2):
            a(f"s_add_u32 m0, s{self.S_LB}, {j*2048 + p*1024}")
            a(f"s_add_u32 s{self.S_WOFF+1}, s{self.S_WOFF}, {8*896}" if p else "s_nop 0")
            a(f"buffer_load_dwordx4 v{R['wo']}, s[{self.S_WSRD}:{self.S_WSRD+3}], s{self.S_WOFF+p} offen lds")
            self.vm.append(f"w{k}")
        a(f"s_add_u32 s{self.S_WOFF}, s{self.S_WOFF}, {self.wstep(k)}")
    def issue_b(self, k):
        a, R, j = self.a, self.R, k % self.U
        for b in range(2):
            a(f"buffer_load_dwordx4 {vr(R['bf']+8*j+4*b,4)}, v{R['bo']+b}, s[{self.S_BSRD}:{self.S_BSRD+3}], s{self.S_BOFF} offen offset:{1024*(k&3)}")
            self.vm.append(f"b{k}")
        if k & 3 == 3:
            a(f"s_add_u32 s{self.S_BOFF}, s{self.S_BOFF}, 4096")
    def reads(self, k):
        a, R, j = self.a, self.R, k % self.U
        for t in range(2):
            for hf in range(2):
                a(f"ds_read_b64_tr_b16 {vr(R['af']+8*(k&1)+4*t+2*hf,2)}, v{R['tr']+t} offset:{j*2048 + hf*512}")
    def run(self):
        a, R, NK, U = self.a, self.R, self.NK, self.U
        ACC, AF, BF = R["acc"], R["af"], R["bf"]
        self.reads(0)
        for k in range(NK):
            need = [l for l in (f"b{k}", f"w{k+1}") if l in self.vm]
            self.wait(*need)
            a("s_waitcnt lgkmcnt(0)")
            if k + 1 < NK:
                self.reads(k + 1)
            j = k % U
            for b in range(2):
                for t in range(2):
                    i = t + 2 * b
                    c = "0" if k == 0 else vr(ACC + 16 * i, 16)
                    a(f"{MFMA} {vr(ACC+16*i,16)}, {vr(AF+8*(k&1)+4*t,4)}, {vr(BF+8*j+4*b,4)}, {c}")
            if k + U < NK:
                self.issue_w(k + U); self.issue_b(k + U)

def bwaves(a, S):
    R = dict(lane=1, tmp=2, wo=8, st=9, tr=10, bo=12, fl=14, acc=16, af=80, bf=96)
    U = 8
    V_XG = R["bf"] + 8 * U
    V_OA = V_XG + 16
    S_WS = S["WS"]
    sb = S["sb"]
    S_WSRD, S_BSRD = sb, sb + 4
    S_WOFF, S_BOFF, S_LB, S_IT, S_T0, S_T1, S_RB, S_CB, S_W, S_RTO = sb + 8, sb + 10, sb + 11, sb + 12, sb + 13, sb + 14, sb + 15, sb + 16, sb + 17, sb + 18
    a(f"s_sub_u32 s{S_W}, s{S['W']}, 4")
    a(f"s_cmp_lg_u32 s{S_W}, 1")
    a("s_cbranch_scc1 L_b_nokv")
    a(f"s_lshr_b32 s{S_T0}, s2, 3")
    a(f"s_lshl_b32 s{S_T0}, s{S_T0}, 8")
    a(f"s_add_u32 s{S_T0}, s{S_T0}, {FL_KV}")
    a(f"v_min_u32 v2, 38, v1")
    a(f"v_lshl_add_u32 v2, v2, 2, s{S_T0}")
    poll(a, "kv", 2, 3, S, S_IT, sleep=4)
    relay_set(a, S, 0, 2, 3)
    a("s_waitcnt lgkmcnt(0)")
    a.label("L_b_nokv")
    a("s_cmp_ge_u32 s2, 224")
    a("s_cbranch_scc1 L_end")
    tile_ids(a, S_RB, S_CB, S_T0, S_T1)
    gemm_setup(a, R, S_W, S_T0)
    srd(a, S_WSRD, S["WD"], S["WD"] + 1, 0, 1792 * 896)
    srd(a, S_BSRD, S_WS, S_WS + 1, WS_H, 64 * 112 * 1024)
    a(f"s_lshl_b32 s{S_LB}, s{S_W}, 14")
    a(f"v_add_u32 v{R['tr']}, s{S_LB}, v{R['tr']}")
    a(f"v_add_u32 v{R['tr']+1}, s{S_LB}, v{R['tr']+1}")
    a(f"s_mul_i32 s{S_WOFF}, s{S_W}, {448*896}")
    a(f"s_lshl_b32 s{S_T0}, s{S_CB}, 7")
    a(f"s_add_u32 s{S_WOFF}, s{S_WOFF}, s{S_T0}")
    G = Gemm(a, R, 28, U, S_WSRD, S_WOFF, lambda k: 16 * 896, S_BSRD, S_BOFF, S_LB)
    for k in range(U):
        G.issue_w(k)
    a(f"s_lshr_b32 s{S_RTO}, s{S_W}, 1")
    a(f"s_lshl_b32 s{S_T1}, s{S_RB}, 1")
    a(f"s_add_u32 s{S_RTO}, s{S_RTO}, s{S_T1}")
    a(f"s_xor_b32 s{S_T1}, s{S_RTO}, 1")
    a(f"s_mul_i32 s{S_T0}, s{S_RTO}, {112*1024}")
    a(f"s_mul_i32 s{S_T1}, s{S_T1}, {112*1024}")
    a(f"v_lshlrev_b32 v{R['tmp']}, 4, v{R['lane']}")
    a(f"v_add_u32 v{R['bo']}, s{S_T0}, v{R['tmp']}")
    a(f"v_add_u32 v{R['bo']+1}, s{S_T1}, v{R['tmp']}")
    a(f"s_mul_i32 s{S_BOFF}, s{S_W}, {28*1024}")
    a(f"v_and_b32 v{R['st']}, 31, v{R['lane']}")
    a(f"s_lshl_b32 s{S_T0}, s{S_RB}, 7")
    a(f"s_add_u32 s{S_T0}, s{S_T0}, {FL_H}")
    a(f"v_lshl_add_u32 v{R['fl']}, v{R['st']}, 2, s{S_T0}")
    a(f"s_cmp_lg_u32 s{S_W}, 0")
    a("s_cbranch_scc1 L_b_hw")
    a("s_sleep 24")
    poll(a, "h", R["fl"], R["fl"] + 1, S, S_IT, sleep=12)
    relay_set(a, S, 1, R["tmp"] + 2, R["tmp"] + 3)
    a.label("L_b_hw")
    relay_wait(a, "h", S, 1, R["tmp"] + 2, R["tmp"] + 3, S_IT, S_T0)
    a("s_waitcnt vmcnt(0)")
    G.vm = []
    stamp(a, 2)
    a(f"s_lshl_b32 s{S_T1}, s{S_RTO}, 8")
    a(f"s_add_u32 s{S_T1}, s{S_T1}, {WS_ST}")
    a(f"v_lshl_add_u32 v{R['st']}, v{R['st']}, 3, s{S_T1}")
    a(f"global_load_dword v{R['st']}, v{R['st']}, s[{S_WS}:{S_WS+1}] sc1")
    for k in range(U):
        G.issue_b(k)
    G.run()
    stamp(a, 3)
    gemm_reduce_write(a, R, S_W, S_T0, L_RED)
    a("s_waitcnt lgkmcnt(0)")
    srd(a, S_WSRD, S["WO"], S["WO"] + 1, 0, 448 * 896)
    srd(a, S_BSRD, S_WS, S_WS + 1, WS_O, 64 * 32 * 1024)
    a(f"s_mul_i32 s{S_WOFF}, s{S_W}, {112*896}")
    a(f"s_lshl_b32 s{S_T0}, s{S_CB}, 7")
    a(f"s_add_u32 s{S_WOFF}, s{S_WOFF}, s{S_T0}")
    G2 = Gemm(a, R, 8, U, S_WSRD, S_WOFF, lambda k: (16 if k % 2 == 0 else 12) * 896, S_BSRD, S_BOFF, S_LB)
    for k in range(8):
        G2.issue_w(k)
    a(f"s_lshl_b32 s{S_T0}, s{S_RTO}, 15")
    a(f"v_add_u32 v{R['bo']}, s{S_T0}, v{R['tmp']}")
    a(f"v_xor_b32 v{R['bo']+1}, 0x8000, v{R['bo']}")
    a(f"s_lshl_b32 s{S_BOFF}, s{S_W}, 13")
    a(f"v_and_b32 v{V_OA}, 31, v{R['lane']}")
    a(f"s_lshl_b32 s{S_T0}, s{S_RTO}, 5")
    a(f"v_add_u32 v{V_OA}, s{S_T0}, v{V_OA}")
    a(f"v_mul_u32_u24 v{V_OA}, 896, v{V_OA}")
    a(f"v_lshrrev_b32 v{V_OA+1}, 5, v{R['lane']}")
    a(f"v_lshl_add_u32 v{V_OA}, v{V_OA+1}, 5, v{V_OA}")
    a(f"s_lshl_b32 s{S_T0}, s{S_CB}, 1")
    a(f"s_and_b32 s{S_T1}, s{S_W}, 1")
    a(f"s_add_u32 s{S_T0}, s{S_T0}, s{S_T1}")
    a(f"s_lshl_b32 s{S_T0}, s{S_T0}, 6")
    a(f"v_add_u32 v{V_OA}, s{S_T0}, v{V_OA}")
    a(f"global_load_dwordx4 {vr(V_XG,4)}, v{V_OA}, s[{S['X']}:{S['X']+1}]")
    a(f"global_load_dwordx4 {vr(V_XG+4,4)}, v{V_OA}, s[{S['X']}:{S['X']+1}] offset:16")
    a(f"v_add_u32 v{R['fl']}, {FL_O - FL_H}, v{R['fl']}")
    a("s_barrier")
    stamp(a, 4)
    gemm_reduce_read(a, R)
    ACC = R["acc"]; T = R["af"]
    a(f"v_and_b32 v{R['st']}, 0xffff0000, v{R['st']}")
    a(f"v_mul_f32 v{R['st']}, v{R['st']}, v{R['st']}")
    a(f"v_rcp_f32 v{R['st']}, v{R['st']}")
    a("s_nop 0")
    for r in range(16):
        a(f"v_mul_f32 v{ACC+r}, v{ACC+r}, v{R['st']}")
    for r in range(16):
        a(f"v_mul_f32 v{T+r}, {hex(f32bits(-math.log2(math.e)))}, v{ACC+r}")
    for r in range(16):
        a(f"v_exp_f32 v{T+r}, v{T+r}")
    for r in range(16):
        a(f"v_add_f32 v{T+r}, 1.0, v{T+r}")
    for r in range(16):
        a(f"v_rcp_f32 v{T+r}, v{T+r}")
    a("s_nop 0")
    for r in range(16):
        a(f"v_mul_f32 v{ACC+r}, v{ACC+r}, v{T+r}")
    for r in range(8):
        a(f"v_cvt_pk_bf16_f32 v{V_XG+8+r}, v{ACC+2*r}, v{ACC+2*r+1}")
    a(f"s_cmp_lg_u32 s{S_W}, 0")
    a("s_cbranch_scc1 L_b_ow")
    poll(a, "o", R["fl"], R["fl"] + 1, S, S_IT, sleep=2)
    a.label("L_b_ow")
    a("s_waitcnt vmcnt(0)")
    a("s_barrier")
    G2.vm = []
    stamp(a, 5)
    for k in range(8):
        G2.issue_b(k)
    G2.run()
    stamp(a, 6)
    P = R["tmp"]
    a(f"v_add_u32 v{P+1}, s{S_LB}, v{P}")
    a("s_nop 7")
    a("s_nop 3")
    for i in range(1, 4):
        for q in range(4):
            a(f"ds_write_b128 v{P+1}, {vr(ACC+16*i+4*q,4)} offset:{(i-1)*4096 + 1024*q}")
    a("s_waitcnt lgkmcnt(0)")
    a("s_barrier")
    for i in range(1, 4):
        a(f"v_xor_b32 v{P+2}, {i << 14}, v{P+1}")
        for q in range(4):
            a(f"ds_read_b128 {vr(ACC+16*i+4*q,4)}, v{P+2} offset:{(i-1)*4096 + 1024*q}")
    for i in range(1, 4):
        a(f"s_waitcnt lgkmcnt({12 - 4*i})")
        for r in range(16):
            a(f"v_add_f32 v{ACC+r}, v{ACC+r}, v{ACC+16*i+r}")
    for r in range(8):
        a(f"v_lshlrev_b32 v{T}, 16, v{V_XG+r}")
        a(f"v_and_b32 v{T+1}, 0xffff0000, v{V_XG+r}")
        a(f"v_lshlrev_b32 v{T+2}, 16, v{V_XG+8+r}")
        a(f"v_and_b32 v{T+3}, 0xffff0000, v{V_XG+8+r}")
        a(f"v_fmac_f32 v{T}, v{ACC+2*r}, v{T+2}")
        a(f"v_fmac_f32 v{T+1}, v{ACC+2*r+1}, v{T+3}")
        a(f"v_cvt_pk_bf16_f32 v{T+8+r}, v{T}, v{T+1}")
    a(f"global_store_dwordx4 v{V_OA}, {vr(T+8,4)}, s[{S['OUT']}:{S['OUT']+1}]")
    a(f"global_store_dwordx4 v{V_OA}, {vr(T+12,4)}, s[{S['OUT']}:{S['OUT']+1}] offset:16")

def kf(a):
    name = NAME + "_kernel"
    kernel_head(a, name)
    S = dict(X=4, WQ=6, WK=8, WV=10, WO=12, WG=16, WU=18, WD=20, OUT=22, DBG=24, WS=26, RB=28, CB=29, W=30,
             T0=31, T1=32, T2=33, T3=34, NONCE=35, sb=36, RELAY=L_RELAY)
    a("s_cmp_ge_u32 s2, 256")
    a("s_cbranch_scc1 L_end")
    stamp(a, 0)
    a("s_load_dwordx16 s[4:19], s[0:1], 0")
    a("s_load_dwordx8 s[20:27], s[0:1], 64")
    a("v_lshrrev_b32 v1, 6, v0")
    p1.p1_ids(a, S["RB"], S["CB"], S["T0"], S["T1"], S["T2"])
    a(f"v_readfirstlane_b32 s{S['W']}, v1")
    a(f"v_and_b32 v1, 63, v0")
    a("s_nop 3")
    a(f"s_cmp_ge_u32 s{S['W']}, 4")
    a("s_cbranch_scc1 L_helper")
    p1.p1_rowstats(a, S)
    C = p1.p1_compute_setup(a, S)
    p1.p1_rowstats2(a, S)
    p1.p1_compute(a, S, C)
    a(f"s_mov_b32 s{S['sb']}, s{S['T0']}")
    stamp(a, 4)
    attention(a, S, S["sb"])
    stamp(a, 7)
    stamp_flush(a, 8, "fa")
    a("s_endpgm")
    a.label("L_helper")
    p1.p1_helper(a, S)
    bwaves(a, S)
    stamp(a, 7)
    stamp_flush(a, 8, "fb", kidx=4, tid=256)
    a.label("L_end")
    a("s_endpgm")
    kernel_desc(a, name, 256, 0)
    return (name, 256, 512, p1.P1_LDS)
```

```python
import sys, math, struct

NAME = "recurrent_scan__grouped_kv_mqa__glu_gated_reglu__prompt"

WS_Q  = 0x0000000
WS_KV = 0x0200000
WS_H  = 0x0400000
WS_O  = 0x0C00000
WS_D  = 0x1000000

QSCALE = math.log2(math.e) / math.sqrt(28.0)

def f32bits(x):
    return struct.unpack("<I", struct.pack("<f", x))[0]

class Asm:
    def __init__(self):
        self.L = []
    def __call__(self, s):
        self.L.append("  " + s)
    def label(self, s):
        self.L.append(s + ":")
    def c(self, s):
        self.L.append("  ; " + s)
    def raw(self, s):
        self.L.append(s)
    def text(self):
        return "\n".join(self.L) + "\n"

def vr(b, n=1):
    return f"v{b}" if n == 1 else f"v[{b}:{b+n-1}]"
def ar(b, n=1):
    return f"a{b}" if n == 1 else f"a[{b}:{b+n-1}]"
def sr(b, n=1):
    return f"s{b}" if n == 1 else f"s[{b}:{b+n-1}]"

def kernel_head(a, name):
    a.raw(".text")
    a.raw(f".globl {name}")
    a.raw(".p2align 8")
    a.raw(f".type {name},@function")
    a.label(name)

def kernel_desc(a, name, vgpr, agpr, sgpr=102):
    acc = (vgpr + 3) // 4 * 4
    a.raw('.section .rodata,"a"')
    a.raw(".p2align 6")
    a.raw(f".amdhsa_kernel {name}")
    a.raw(f"  .amdhsa_next_free_vgpr {acc + agpr if agpr else vgpr}")
    a.raw(f"  .amdhsa_next_free_sgpr {sgpr}")
    a.raw(f"  .amdhsa_accum_offset {acc}")
    a.raw("  .amdhsa_group_segment_fixed_size 0")
    a.raw("  .amdhsa_kernarg_size 96")
    a.raw("  .amdhsa_user_sgpr_count 2")
    a.raw("  .amdhsa_user_sgpr_kernarg_segment_ptr 1")
    a.raw("  .amdhsa_system_sgpr_workgroup_id_x 1")
    a.raw(".end_amdhsa_kernel")

MFMA = "v_mfma_f32_32x32x16_bf16"
import os
STAMP = int(os.environ.get("STAMP", "0"))
STAMP_WG = int(os.environ.get("STAMP_WG", "0"))
WS_DBG = 0x1800000
def stamp(a, i):
    if STAMP:
        a(f"s_memtime s[{76+2*i}:{77+2*i}]")
        if i == 0:
            a("s_memrealtime s[94:95]")
def stamp_flush(a, n, tag, vtmp=1, kidx=0, tid=0):
    if not STAMP:
        return
    assert n <= 8
    a("s_waitcnt lgkmcnt(0) vmcnt(0)")
    a(f"s_memtime s[{76+2*n}:{77+2*n}]")
    a("s_memrealtime s[96:97]")
    a(f"s_load_dwordx2 s[4:5], s[0:1], 88")
    a("s_waitcnt lgkmcnt(0)")
    a(f"v_cmp_eq_u32 vcc, {tid}, v0")
    a("s_and_saveexec_b64 s[98:99], vcc")
    a(f"s_cbranch_execz L_nostamp{tag}")
    a(f"s_lshl_b32 s100, s2, 6")
    a(f"s_add_u32 s100, s100, {WS_DBG + kidx*65536}")
    a(f"v_mov_b32 v{vtmp+1}, s100")
    a(f"v_mov_b32 v{vtmp}, s94")
    a(f"global_store_dword v{vtmp+1}, v{vtmp}, s[4:5]")
    a(f"v_mov_b32 v{vtmp}, s96")
    a(f"global_store_dword v{vtmp+1}, v{vtmp}, s[4:5] offset:4")
    for i in range(1, n + 1):
        a(f"s_sub_u32 s100, s{76+2*i}, s76")
        a(f"v_mov_b32 v{vtmp}, s100")
        a(f"global_store_dword v{vtmp+1}, v{vtmp}, s[4:5] offset:{4+4*i}")
    a.label(f"L_nostamp{tag}")

K1_KPS   = 4
K1_NST   = 7
K1_NSLOT = 5
K1_R1    = 16384
K1_SLOT  = 32768
K1_LDS   = K1_NSLOT * K1_SLOT
XAHEAD   = 4
KVT      = 6144

def k1(a):
    name = "k1_kernel"
    kernel_head(a, name)
    V_TA = 1
    V_STR = 9
    V_RINV, V_NEGM = 10, 11
    V_A0, V_A1 = 12, 14
    V_T = 16
    V_XN = 24
    V_X = 32
    V_ACC = 144
    V_XO = V_T
    V_XA = V_T + 4
    V_S0, V_S1, V_Q0, V_Q1 = 24, 25, 26, 27
    V_LANE = 28
    P = V_ACC
    def acc(t):
        return vr(V_ACC + 16 * t, 16) if t < 7 else ar(64, 16)
    def frag(buf, t, half=None):
        b = buf * 32 + t * 4
        return ar(b, 4) if half is None else ar(b + 2 * half, 2)
    S_X, S_WQ, S_WK, S_WV, S_WG, S_WU, S_WS = 4, 6, 8, 10, 12, 14, 16
    S_RB, S_CB, S_W, S_T0, S_T1, S_T2, S_T3 = 20, 21, 22, 23, 24, 25, 26
    S_MASK, S_ONES = 27, 29
    S_IT, S_IDX, S_M0, S_DSLOT, S_WRAP, S_FWD = 30, 31, 32, 33, 34, 35

    a("s_cmp_ge_u32 s2, 256")
    a("s_cbranch_scc1 L_k1_end")
    stamp(a, 0)
    a(f"s_load_dwordx4 s[4:7], s[0:1], 0")
    a(f"s_load_dwordx4 s[8:11], s[0:1], 16")
    a(f"s_load_dwordx4 s[12:15], s[0:1], 48")
    a(f"s_load_dwordx2 s[16:17], s[0:1], 88")
    a(f"s_and_b32 s{S_T0}, s2, 7")
    a(f"s_lshr_b32 s{S_T1}, s2, 3")
    a(f"s_and_b32 s{S_RB}, s{S_T0}, 1")
    a(f"s_lshl_b32 s{S_RB}, s{S_RB}, 3")
    a(f"s_and_b32 s{S_T2}, s{S_T1}, 7")
    a(f"s_add_u32 s{S_RB}, s{S_RB}, s{S_T2}")
    a(f"s_lshr_b32 s{S_CB}, s{S_T0}, 1")
    a(f"s_lshl_b32 s{S_CB}, s{S_CB}, 2")
    a(f"s_lshr_b32 s{S_T2}, s{S_T1}, 3")
    a(f"s_add_u32 s{S_CB}, s{S_CB}, s{S_T2}")
    a(f"v_lshrrev_b32 v{P}, 6, v0")
    a(f"v_and_b32 v{V_LANE}, 63, v0")
    a(f"v_readfirstlane_b32 s{S_W}, v{P}")
    a(f"s_mov_b32 s{S_MASK}, 0xffff0000")
    a(f"s_mov_b32 s{S_ONES}, 0x3f803f80")
    a(f"s_lshl_b32 s{S_T0}, s{S_RB}, 7")
    a(f"s_lshl_b32 s{S_T1}, s{S_W}, 5")
    a(f"s_add_u32 s{S_T0}, s{S_T0}, s{S_T1}")
    a(f"v_lshrrev_b32 v{P}, 3, v{V_LANE}")
    a(f"v_add_u32 v{P+1}, s{S_T0}, v{P}")
    a(f"v_mul_u32_u24 v{P+1}, 896, v{P+1}")
    a(f"v_lshrrev_b32 v{P+2}, 1, v{P}")
    a(f"v_and_b32 v{P+3}, 7, v{V_LANE}")
    a(f"v_xor_b32 v{P+2}, v{P+2}, v{P+3}")
    a(f"v_xor_b32 v{P+3}, 4, v{P+2}")
    a(f"v_lshl_add_u32 v{V_XO}, v{P+2}, 4, v{P+1}")
    a(f"v_lshl_add_u32 v{V_XO+1}, v{P+3}, 4, v{P+1}")
    a(f"v_add_u32 v{V_XO+1}, {8*896}, v{V_XO+1}")
    a(f"v_add_u32 v{V_XO+2}, {16*896}, v{V_XO}")
    a(f"v_add_u32 v{V_XO+3}, {16*896}, v{V_XO+1}")
    a(f"s_lshl_b32 s{S_M0}, s{S_W}, 10")
    def piece_addr(n):
        return (n >> 3) * K1_SLOT + (n & 1) * K1_R1 + ((n >> 1) & 3) * 4096
    def x_dma(c):
        for g in range(4):
            a(f"s_add_u32 m0, s{S_M0}, {piece_addr(12 + 4*c + g) - 128*c}")
            a("s_nop 0")
            a(f"global_load_lds_dwordx4 v{V_XO+g}, s[{S_X}:{S_X+1}] offset:{128*c}")
    a("s_waitcnt lgkmcnt(0)")
    for c in range(XAHEAD):
        x_dma(c)
    a(f"v_lshrrev_b32 v{P}, 4, v{V_LANE}")
    a(f"v_bfe_u32 v{P+1}, v{V_LANE}, 1, 3")
    a(f"v_lshlrev_b32 v{P+2}, 1, v{P}")
    a(f"v_xor_b32 v{P+1}, v{P+1}, v{P+2}")
    a(f"s_lshl_b32 s{S_T1}, s{S_W}, 2")
    a(f"v_add_u32 v{P+3}, s{S_T1}, v{P}")
    a(f"v_and_b32 v{P+4}, 1, v{V_LANE}")
    a(f"v_bfe_u32 v{P+5}, v{V_LANE}, 2, 2")
    a(f"v_lshlrev_b32 v{P+6}, 8, v{P+5}")
    a(f"v_lshrrev_b32 v{P+7}, 5, v{V_LANE}")
    a(f"v_lshl_add_u32 v{P+6}, v{P+7}, 11, v{P+6}")
    a(f"v_lshlrev_b32 v{P+5}, 1, v{P+5}")
    a(f"v_bfe_u32 v{P+7}, v{V_LANE}, 4, 1")
    a(f"v_and_b32 v{P+8}, 1, v{V_LANE}")
    a(f"v_bfe_u32 v{P+9}, v{V_LANE}, 1, 1")
    a(f"v_lshl_add_u32 v{P+6}, v{P+9}, 3, v{P+6}")
    a(f"s_cmp_ge_u32 s{S_CB}, 14")
    a("s_cbranch_scc1 L_k1_qsetup")
    a(f"v_lshl_add_u32 v{P+6}, v{P+7}, 14, v{P+6}")
    a(f"v_lshl_add_u32 v{P+6}, v{P+8}, 4, v{P+6}")
    a(f"v_add_u32 v{P+5}, v{P+5}, v{P+7}")
    for t in range(8):
        a(f"v_xor_b32 v{P+10}, {t}, v{P+5}")
        a(f"v_lshl_add_u32 v{V_TA+t}, v{P+10}, 5, v{P+6}")
    a(f"v_mul_u32_u24 v{P+3}, 3584, v{P+3}")
    a(f"v_lshl_add_u32 v{P+3}, v{P+4}, 4, v{P+3}")
    a(f"s_lshl_b32 s{S_T1}, s{S_CB}, 8")
    a(f"v_add_u32 v{P+3}, s{S_T1}, v{P+3}")
    a(f"v_lshl_add_u32 v{P+10}, v{P+1}, 5, v{P+3}")
    a(f"v_xor_b32 v{P+1}, 1, v{P+1}")
    a(f"v_lshl_add_u32 v{P+11}, v{P+1}, 5, v{P+3}")
    a(f"v_mov_b32 v{V_A0+1}, s{S_WG+1}")
    a(f"v_add_co_u32 v{V_A0}, vcc, s{S_WG}, v{P+10}")
    a(f"v_addc_co_u32 v{V_A0+1}, vcc, 0, v{V_A0+1}, vcc")
    a(f"v_mov_b32 v{V_A1+1}, s{S_WU+1}")
    a(f"v_add_co_u32 v{V_A1}, vcc, s{S_WU}, v{P+11}")
    a(f"v_addc_co_u32 v{V_A1+1}, vcc, 0, v{V_A1+1}, vcc")
    a(f"v_mov_b32 v{V_STR}, {16*3584}")
    a("s_branch L_k1_dma0")
    a.label("L_k1_qsetup")
    a(f"v_lshl_add_u32 v{P+6}, v{P+7}, 4, v{P+6}")
    a(f"v_add_u32 v{P+5}, v{P+5}, v{P+8}")
    for t in range(4):
        a(f"v_xor_b32 v{P+10}, {2*t}, v{P+5}")
        a(f"v_lshl_add_u32 v{V_TA+t}, v{P+10}, 5, v{P+6}")
        a(f"v_add_u32 v{V_TA+4+t}, {K1_R1}, v{V_TA+t}")
    a(f"v_mul_u32_u24 v{P+10}, 896, v{P+3}")
    a(f"v_lshl_add_u32 v{P+10}, v{P+1}, 5, v{P+10}")
    a(f"v_lshl_add_u32 v{P+10}, v{P+4}, 4, v{P+10}")
    a(f"s_sub_u32 s{S_T1}, s{S_CB}, 14")
    a(f"s_lshl_b32 s{S_T1}, s{S_T1}, 9")
    a(f"v_add_u32 v{P+10}, s{S_T1}, v{P+10}")
    a(f"v_mov_b32 v{V_A0+1}, s{S_WQ+1}")
    a(f"v_add_co_u32 v{V_A0}, vcc, s{S_WQ}, v{P+10}")
    a(f"v_addc_co_u32 v{V_A0+1}, vcc, 0, v{V_A0+1}, vcc")
    a(f"v_add_co_u32 v{V_A1}, vcc, 0x100, v{V_A0}")
    a(f"v_addc_co_u32 v{V_A1+1}, vcc, 0, v{V_A0+1}, vcc")
    a(f"v_mov_b32 v{V_STR}, {16*896}")
    a(f"s_cmp_eq_u32 s{S_CB}, 14")
    a("s_cbranch_scc1 L_k1_dma0")
    a(f"v_mul_u32_u24 v{P+10}, 56, v{P+3}")
    a(f"v_lshl_add_u32 v{P+11}, v{P+4}, 3, v{P+10}")
    a(f"v_add_u32 v{P+11}, 32, v{P+11}")
    a(f"v_lshl_add_u32 v{P+10}, v{P+4}, 4, v{P+10}")
    a(f"v_and_b32 v{P+12}, 1, v{P+1}")
    a(f"v_cmp_eq_u32 vcc, 1, v{P+12}")
    a(f"v_mov_b32 v{P+12}, s{S_WK}")
    a(f"v_mov_b32 v{P+13}, s{S_WK+1}")
    a(f"v_cndmask_b32 v{P+10}, v{P+10}, v{P+11}, vcc")
    a(f"v_mov_b32 v{P+14}, s{S_WV}")
    a(f"v_mov_b32 v{P+15}, s{S_WV+1}")
    a(f"v_cmp_le_u32 vcc, 6, v{P+1}")
    a("s_nop 1")
    a(f"v_cndmask_b32 v{P+12}, v{P+12}, v{P+14}, vcc")
    a(f"v_cndmask_b32 v{P+13}, v{P+13}, v{P+15}, vcc")
    a(f"v_add_co_u32 v{P+12}, vcc, v{P+12}, v{P+10}")
    a(f"v_addc_co_u32 v{P+13}, vcc, 0, v{P+13}, vcc")
    a(f"v_cmp_le_u32 vcc, 4, v{P+1}")
    a(f"v_mov_b32 v{P+14}, {16*56}")
    a("s_nop 0")
    a(f"v_cndmask_b32 v{V_A1}, v{V_A1}, v{P+12}, vcc")
    a(f"v_cndmask_b32 v{V_A1+1}, v{V_A1+1}, v{P+13}, vcc")
    a(f"v_cndmask_b32 v{V_STR}, v{V_STR}, v{P+14}, vcc")
    a(f"v_and_b32 v{P+10}, 19, v{V_LANE}")
    a(f"v_cmp_eq_u32 vcc, 17, v{P+10}")
    a(f"v_add_u32 v{P+11}, 8, v{V_TA+6}")
    a(f"v_add_u32 v{P+12}, 8, v{V_TA+7}")
    a(f"v_cndmask_b32 v{V_TA+6}, v{V_TA+6}, v{P+11}, vcc")
    a(f"v_cndmask_b32 v{V_TA+7}, v{V_TA+7}, v{P+12}, vcc")
    a.label("L_k1_dma0")
    a(f"s_cmp_ge_u32 s{S_CB}, 14")
    a(f"s_movk_i32 s{S_T0}, {16*896}")
    a(f"s_mov_b32 s{S_T3}, {16*3584}")
    a(f"s_cselect_b32 s{S_T3}, s{S_T0}, s{S_T3}")

    def dma_unit(imm):
        a(f"s_add_u32 m0, s{S_M0}, {imm}")
        a("s_nop 0")
        a(f"global_load_lds_dwordx4 v[{V_A0}:{V_A0+1}], off")
        a(f"s_add_u32 m0, s{S_M0}, {imm + K1_R1}")
        a(f"v_add_co_u32 v{V_A0}, vcc, s{S_T3}, v{V_A0}")
        a(f"v_addc_co_u32 v{V_A0+1}, vcc, 0, v{V_A0+1}, vcc")
        a(f"global_load_lds_dwordx4 v[{V_A1}:{V_A1+1}], off")
        a(f"v_add_co_u32 v{V_A1}, vcc, v{V_A1}, v{V_STR}")
        a(f"v_addc_co_u32 v{V_A1+1}, vcc, 0, v{V_A1+1}, vcc")
    stamp(a, 1)
    a(f"v_bfe_u32 v{P}, v{V_LANE}, 4, 1")
    a(f"v_lshlrev_b32 v{P}, 12, v{P}")
    a(f"v_bfe_u32 v{P+1}, v{V_LANE}, 3, 1")
    a(f"v_lshl_add_u32 v{P}, v{P+1}, 14, v{P}")
    a(f"v_and_b32 v{P+1}, 7, v{V_LANE}")
    a(f"v_lshl_add_u32 v{P}, v{P+1}, 7, v{P}")
    a(f"v_add_u32 v{P}, s{S_M0}, v{P}")
    a(f"v_bfe_u32 v{P+1}, v{V_LANE}, 1, 3")
    a(f"v_lshrrev_b32 v{P+2}, 5, v{V_LANE}")
    a(f"v_xor_b32 v{P+1}, v{P+1}, v{P+2}")
    for i in range(4):
        a(f"v_xor_b32 v{P+2}, {2*i}, v{P+1}")
        a(f"v_lshl_add_u32 v{V_XA+i}, v{P+2}, 4, v{P}")
    for r in range(V_ACC, 256):
        a(f"v_mov_b32 v{r}, 0")
    for r in range(64, 80):
        a(f"v_accvgpr_write_b32 a{r}, 0")
    for r in (V_S0, V_S1, V_Q0, V_Q1):
        a(f"v_mov_b32 v{r}, 0")
    stamp(a, 2)
    def stats(c):
        if c < 6:
            a("s_waitcnt lgkmcnt(4)")
        for i in range(16):
            x = V_X + 16 * c + i
            a(f"v_dot2_f32_bf16 v{V_Q0 + (i&1)}, v{x}, v{x}, v{V_Q0 + (i&1)}")
            a(f"v_dot2_f32_bf16 v{V_S0 + (i&1)}, v{x}, s{S_ONES}, v{V_S0 + (i&1)}")
    xbase = 0
    groups = [("x", c) for c in range(XAHEAD, 7)] + [("w", n) for n in range(0, 12, 4)]
    issued = 4 * XAHEAD
    for c in range(7):
        cb_ = piece_addr(12 + 4 * c)
        if cb_ - xbase > 65535 - 32768:
            for i in range(4):
                a(f"v_add_u32 v{V_XA+i}, {cb_ - xbase}, v{V_XA+i}")
            xbase = cb_
        a(f"s_waitcnt vmcnt({issued - 4*(c+1)})")
        for i in range(4):
            a(f"ds_read_b128 {vr(V_X+16*c+4*i,4)}, v{V_XA+i} offset:{cb_ - xbase}")
        if groups:
            kind, n = groups.pop(0)
            if kind == "x":
                x_dma(n)
            else:
                dma_unit(piece_addr(n)); dma_unit(piece_addr(n + 2))
            issued += 4
        if c > 0:
            stats(c - 1)
    assert not groups
    a("s_waitcnt lgkmcnt(0)")
    dma_unit(piece_addr(12)); dma_unit(piece_addr(14))
    stats(6)
    a("s_nop 2")
    a(f"v_add_f32 v{V_S0}, v{V_S0}, v{V_S1}")
    a(f"v_add_f32 v{V_Q0}, v{V_Q0}, v{V_Q1}")
    a(f"v_mov_b32 v{V_S1}, v{V_S0}")
    a(f"v_mov_b32 v{V_Q1}, v{V_Q0}")
    a("s_nop 1")
    a(f"v_permlane32_swap_b32 v{V_S0}, v{V_S1}")
    a(f"v_permlane32_swap_b32 v{V_Q0}, v{V_Q1}")
    a("s_nop 1")
    a(f"v_add_f32 v{V_S0}, v{V_S0}, v{V_S1}")
    a(f"v_add_f32 v{V_Q0}, v{V_Q0}, v{V_Q1}")
    a(f"v_mul_f32 v{V_S0}, {hex(f32bits(1.0/448))}, v{V_S0}")
    a(f"v_mul_f32 v{V_Q0}, {hex(f32bits(1.0/448))}, v{V_Q0}")
    a(f"v_fma_f32 v{V_Q0}, -v{V_S0}, v{V_S0}, v{V_Q0}")
    a(f"v_max_f32 v{V_Q0}, 0, v{V_Q0}")
    a(f"v_cvt_pk_bf16_f32 v{V_S1}, v{V_S0}, v{V_Q0}")
    a(f"v_lshlrev_b32 v{V_NEGM}, 16, v{V_S1}")
    a(f"v_xor_b32 v{V_NEGM}, 0x80000000, v{V_NEGM}")
    a(f"v_and_b32 v{V_Q0}, 0xffff0000, v{V_S1}")
    a(f"v_add_f32 v{V_Q0}, {hex(f32bits(1e-5))}, v{V_Q0}")
    a(f"v_cvt_pk_bf16_f32 v{V_Q0}, v{V_Q0}, v{V_Q0}")
    a(f"v_and_b32 v{V_Q0}, 0xffff0000, v{V_Q0}")
    a(f"v_sqrt_f32 v{V_Q0}, v{V_Q0}")
    a("s_nop 0")
    a(f"v_cvt_pk_bf16_f32 v{V_Q0}, v{V_Q0}, v{V_Q0}")
    a(f"v_and_b32 v{V_Q0}, 0xffff0000, v{V_Q0}")
    a(f"v_rcp_f32 v{V_RINV}, v{V_Q0}")
    a("s_nop 0")
    a(f"v_mul_f32 v{V_NEGM}, v{V_NEGM}, v{V_RINV}")

    def norm_ops(buf):
        g1 = [f"s_set_gpr_idx_on s{S_IDX}, gpr_idx(SRC1)"]
        for i in range(2):
            g1.append(f"v_lshlrev_b32 v{V_T+2*i}, 16, v{V_X+i}")
            g1.append(f"v_and_b32 v{V_T+2*i+1}, s{S_MASK}, v{V_X+i}")
        g1.append("s_set_gpr_idx_off")
        g2 = [f"s_set_gpr_idx_on s{S_IDX}, gpr_idx(SRC1)"]
        for i in range(2, 4):
            g2.append(f"v_lshlrev_b32 v{V_T+2*i}, 16, v{V_X+i}")
            g2.append(f"v_and_b32 v{V_T+2*i+1}, s{S_MASK}, v{V_X+i}")
        g2.append("s_set_gpr_idx_off")
        g2.append(f"s_add_u32 s{S_IDX}, s{S_IDX}, 4")
        f = [f"v_fma_f32 v{V_T+i}, v{V_T+i}, v{V_RINV}, v{V_NEGM}" for i in range(8)]
        cv = [f"v_cvt_pk_bf16_f32 v{V_XN+4*buf+i}, v{V_T+2*i}, v{V_T+2*i+1}" for i in range(4)]
        return g1, g2, f[0:4], f[4:8], cv

    def tr_reads(buf, j):
        out = []
        for t in range(8):
            for half in range(2):
                out.append(f"ds_read_b64_tr_b16 {frag(buf,t,half)}, v{V_TA+t} offset:{j*4096 + half*1024}")
        return out

    stamp(a, 3)
    a(f"s_waitcnt vmcnt(8)")
    a("s_barrier")
    for ins in tr_reads(0, 0):
        a(ins)
    a(f"s_mov_b32 s{S_IDX}, 0")
    for g in norm_ops(0):
        for ins in g:
            a(ins)
        a("s_nop 1")
    stamp(a, 4)
    a(f"s_mov_b32 s{S_IT}, 0")
    a(f"s_mov_b32 s{S_WRAP}, {(-(K1_NSLOT-1)*K1_SLOT) & 0xffffffff}")
    a(f"s_mov_b32 s{S_FWD}, {K1_SLOT}")
    a(f"s_add_u32 s{S_M0}, s{S_M0}, {2*K1_SLOT}")

    def main_loop(tag, swapv):
        a.label(f"L_k1_main{tag}")
        for j in range(K1_KPS):
            cur, nxt = j & 1, (j & 1) ^ 1
            last = (j == K1_KPS - 1)
            a("s_waitcnt lgkmcnt(0)")
            if last:
                a(f"s_cmp_le_u32 s{S_IT}, {K1_NST-3}")
                a(f"s_cbranch_scc1 L_k1_w{tag}")
                a("s_waitcnt vmcnt(0)")
                a.label(f"L_k1_w{tag}")
                a(f"s_waitcnt vmcnt(6)")
                a("s_barrier")
                a(f"s_cmp_eq_u32 s{S_IT}, {K1_NSLOT-1}")
                a(f"s_cselect_b32 s{S_T0}, s{S_WRAP}, s{S_FWD}")
            rd = tr_reads(nxt, 0 if last else j + 1)
            if last:
                rd2 = []
                for t in range(8):
                    rd2.append(f"v_add_u32 v{V_TA+t}, s{S_T0}, v{V_TA+t}")
                    rd2 += rd[2*t:2*t+2]
                rdg = [rd2[0:6], rd2[6:9], rd2[9:12], rd2[12:15], rd2[15:18], rd2[18:21], rd2[21:24]]
            else:
                rdg = [rd[0:4], rd[4:6], rd[6:8], rd[8:10], rd[10:12], rd[12:14], rd[14:16]]
            g1, g2, g3, g4, g5 = norm_ops(nxt)
            EXP = os.environ.get("EXP", "")
            if "nonorm" in EXP:
                g1, g2, g3, g4, g5 = [], [], [], [], []
            if "nord" in EXP:
                rdg = [[x for x in g if "ds_read" not in x] for g in rdg]
            fill = [rdg[0], g1 + rdg[1], g2 + rdg[2], g3 + rdg[3], g4 + rdg[4], g5 + rdg[5], rdg[6], []]
            for t in range(8):
                A_, B_ = frag(cur, t), vr(V_XN + 4 * cur, 4)
                if swapv and t == 7:
                    A_, B_ = B_, A_
                a(f"{MFMA} {acc(t)}, {A_}, {B_}, {acc(t)}")
                for ins in fill[t]:
                    a(ins)
                if t == 6:
                    a(f"s_cmp_gt_u32 s{S_IT}, {K1_NST-3}")
                    a(f"s_cbranch_scc1 L_k1_nodma{tag}{j}")
                    dma_unit(j * 4096)
                    if last:
                        a(f"s_cmp_eq_u32 s{S_IT}, {K1_NSLOT-3}")
                        a(f"s_cselect_b32 s{S_T1}, s{S_WRAP}, s{S_FWD}")
                        a(f"s_add_u32 s{S_M0}, s{S_M0}, s{S_T1}")
                    a.label(f"L_k1_nodma{tag}{j}")
        a(f"s_add_u32 s{S_IT}, s{S_IT}, 1")
        a(f"s_cmp_lt_u32 s{S_IT}, {K1_NST}")
        a(f"s_cbranch_scc1 L_k1_main{tag}")

    a(f"s_cmp_eq_u32 s{S_CB}, 15")
    a("s_cbranch_scc1 L_k1_mainv")
    main_loop("a", False)
    a("s_branch L_k1_epi")
    main_loop("v", True)
    a.label("L_k1_epi")
    stamp(a, 5)
    a("s_waitcnt lgkmcnt(0)")
    a(f"v_and_b32 v{V_LANE}, 63, v0")
    a(f"s_lshl_b32 s{S_T0}, s{S_RB}, 2")
    a(f"s_add_u32 s{S_T0}, s{S_T0}, s{S_W}")
    a("s_nop 15")
    V_A7 = V_X
    for r in range(16):
        a(f"v_accvgpr_read_b32 v{V_A7+r}, a{64+r}")
    def accv(t):
        return V_ACC + 16 * t if t < 7 else V_A7
    V_O = V_X + 16
    a(f"s_cmp_ge_u32 s{S_CB}, 14")
    a("s_cbranch_scc1 L_k1_epiq")
    a(f"s_mul_i32 s{S_T0}, s{S_T0}, 112")
    a(f"s_lshl_b32 s{S_T1}, s{S_CB}, 3")
    a(f"s_add_u32 s{S_T0}, s{S_T0}, s{S_T1}")
    a(f"s_lshl_b32 s{S_T0}, s{S_T0}, 10")
    a(f"s_add_u32 s{S_T0}, s{S_T0}, {WS_H + 4096}")
    a(f"v_lshlrev_b32 v{V_T}, 4, v{V_LANE}")
    a(f"v_add_u32 v{V_T}, s{S_T0}, v{V_T}")
    for t in range(8):
        b = accv(t)
        o = V_O + 4 * t
        for r in range(8):
            a(f"v_max_f32 v{b+r}, 0, v{b+r}")
        for r in range(8):
            a(f"v_mul_f32 v{b+r}, v{b+r}, v{b+8+r}")
        for r in range(4):
            a(f"v_cvt_pk_bf16_f32 v{o+r}, v{b+2*r}, v{b+2*r+1}")
        a(f"global_store_dwordx4 v{V_T}, {vr(o,4)}, s[{S_WS}:{S_WS+1}] offset:{t*1024 - 4096}")
    stamp(a, 6)
    stamp_flush(a, 7, "k1a")
    a("s_endpgm")
    a.label("L_k1_epiq")
    a(f"s_mul_i32 s{S_T1}, s{S_T0}, {56*512}")
    a(f"s_sub_u32 s{S_T2}, s{S_CB}, 14")
    a(f"s_lshl_b32 s{S_T2}, s{S_T2}, 14")
    a(f"s_add_u32 s{S_T1}, s{S_T1}, s{S_T2}")
    a(f"s_add_u32 s{S_T1}, s{S_T1}, {WS_Q + 4096}")
    a(f"v_and_b32 v{V_T+4}, 31, v{V_LANE}")
    a(f"v_lshrrev_b32 v{V_T+5}, 5, v{V_LANE}")
    a(f"v_lshlrev_b32 v{V_T+6}, 4, v{V_T+4}")
    a(f"v_lshl_add_u32 v{V_T+6}, v{V_T+5}, 10, v{V_T+6}")
    a(f"v_add_u32 v{V_T}, s{S_T1}, v{V_T+6}")
    a(f"v_add_u32 v{V_T+1}, 8192, v{V_T}")
    a(f"v_mov_b32 v{V_T+2}, {hex(f32bits(QSCALE))}")
    def q_tile(t):
        b = accv(t)
        o = V_O + 8 * t
        for r in range(8):
            a(f"v_pk_mul_f32 {vr(b+2*r,2)}, {vr(b+2*r,2)}, {vr(V_T+2,2)} op_sel_hi:[1,0]")
        for r in range(8):
            a(f"v_cvt_pk_bf16_f32 v{o+r}, v{b+2*r}, v{b+2*r+1}")
        va = V_T + (t >> 2)
        off = (t & 3) * 2048 - 4096
        a(f"global_store_dwordx4 v{va}, {vr(o,4)}, s[{S_WS}:{S_WS+1}] offset:{off}")
        a(f"global_store_dwordx4 v{va}, {vr(o+4,4)}, s[{S_WS}:{S_WS+1}] offset:{off+512}")
    for t in range(6):
        q_tile(t)
    a(f"s_cmp_eq_u32 s{S_CB}, 15")
    a("s_cbranch_scc1 L_k1_epikv")
    q_tile(6)
    q_tile(7)
    stamp(a, 6)
    stamp_flush(a, 7, "k1b")
    a("s_endpgm")
    a.label("L_k1_epikv")
    a(f"s_mul_i32 s{S_T0}, s{S_T0}, {KVT}")
    a(f"s_add_u32 s{S_T0}, s{S_T0}, {WS_KV + 2048}")
    a(f"v_add_u32 v{V_T+2}, s{S_T0}, v{V_T+6}")
    b = accv(6); o = V_O + 48
    for r in range(8):
        a(f"v_cvt_pk_bf16_f32 v{o+r}, v{b+2*r}, v{b+2*r+1}")
    a(f"v_mov_b32 v{V_T+3}, 0x3f803f80")
    a(f"v_mov_b32 v{V_T+7}, 0x00003f80")
    a(f"v_cmp_eq_u32 vcc, 1, v{V_T+5}")
    a("s_nop 1")
    a(f"v_cndmask_b32 v{o+6}, v{o+6}, v{V_T+3}, vcc")
    a(f"v_cndmask_b32 v{o+7}, v{o+7}, v{V_T+7}, vcc")
    a(f"v_mov_b32 v{V_T+7}, 0")
    a(f"global_store_dwordx4 v{V_T+2}, {vr(o,4)}, s[{S_WS}:{S_WS+1}] offset:-2048")
    a(f"global_store_dwordx4 v{V_T+2}, {vr(o+4,4)}, s[{S_WS}:{S_WS+1}] offset:-1536")
    for q in range(3):
        cs = q + 1
        a(f"global_store_dwordx2 v{V_T+2}, {vr(o+2*q,2)}, s[{S_WS}:{S_WS+1}] offset:{(cs>>1)*512 + (cs&1)*8}")
    a(f"v_mov_b32 v{V_T+3}, 1024")
    a(f"v_mov_b32 v{V_T+1}, -1024")
    a(f"v_cndmask_b32 v{V_T+3}, v{V_T+3}, v{V_T+1}, vcc")
    a(f"v_add_u32 v{V_T+3}, v{V_T+3}, v{V_T+2}")
    a(f"global_store_dwordx2 v{V_T+3}, {vr(o+6,2)}, s[{S_WS}:{S_WS+1}]")
    b = accv(7); o = V_O + 56
    for r in range(8):
        a(f"v_cvt_pk_bf16_f32 v{o+r}, v{b+2*r}, v{b+2*r+1}")
    a(f"v_mov_b32 v{V_T+3}, 0x3f803f80")
    a(f"v_cmp_eq_u32 vcc, 28, v{V_T+4}")
    a("s_nop 1")
    a(f"v_cndmask_b32 v{V_T+3}, v{V_T+7}, v{V_T+3}, vcc")
    a(f"v_cmp_le_u32 vcc, 28, v{V_T+4}")
    a("s_nop 1")
    for r in range(8):
        a(f"v_cndmask_b32 v{o+r}, v{o+r}, v{V_T+3}, vcc")
    a(f"v_lshlrev_b32 v{V_T+2}, 4, v{V_LANE}")
    a(f"v_add_u32 v{V_T+2}, s{S_T0}, v{V_T+2}")
    a(f"global_store_dwordx4 v{V_T+2}, {vr(o,4)}, s[{S_WS}:{S_WS+1}] offset:2048")
    a(f"global_store_dwordx4 v{V_T+2}, {vr(o+4,4)}, s[{S_WS}:{S_WS+1}] offset:3072")
    stamp(a, 6)
    stamp_flush(a, 7, "k1c")
    a.label("L_k1_end")
    a("s_endpgm")
    kernel_desc(a, name, 256, 80)
    return (name, 256, 256, K1_LDS)


AT_LDS = 4 * 4 * 4096 + 4 * 4 * 256

def attn_body(a, S_W, S_WS, S_RT, S_HG, sb, ldsbase=0):
    V_LANE, V_KO, V_VO = 1, 2, 3
    V_T = 4
    V_M = 12
    V_Q = 16
    V_O = 48
    V_S = 112
    V_P = 144
    V_KV = 160
    S_SRD = sb
    S_OFF, S_IT, S_PASS, S_T0, S_T1, S_PAR = sb + 4, sb + 5, sb + 6, sb + 7, sb + 8, sb + 9
    S_EX = sb + 10
    def Qf(g, t): return vr(V_Q + 8 * g + 4 * t, 4)
    def Kf(b, t): return vr(V_KV + 16 * b + 4 * t, 4)
    def Vf(b, t): return vr(V_KV + 16 * b + 8 + 4 * t, 4)
    def O(g): return vr(V_O + 16 * g, 16)
    def S(i): return vr(V_S + 16 * i, 16)

    a(f"v_and_b32 v{V_LANE}, 63, v0")
    a(f"s_and_b32 s{S_PAR}, s{S_HG}, 1")
    a(f"s_mul_i32 s{S_T0}, s{S_W}, {16*KVT}")
    a(f"s_add_u32 s{S_T0}, s{S_T0}, {WS_KV}")
    a(f"s_add_u32 s{S_SRD}, s{S_WS}, s{S_T0}")
    a(f"s_addc_u32 s{S_SRD+1}, s{S_WS+1}, 0")
    a(f"s_and_b32 s{S_SRD+1}, s{S_SRD+1}, 0xffff")
    a(f"s_mov_b32 s{S_SRD+2}, {16*KVT}")
    a(f"s_mov_b32 s{S_SRD+3}, 0x00020000")
    a(f"v_lshlrev_b32 v{V_KO}, 4, v{V_LANE}")
    a(f"v_add_u32 v{V_VO}, 4096, v{V_KO}")
    a(f"s_lshr_b32 s{S_T0}, s{S_HG}, 1")
    a(f"s_mul_i32 s{S_T0}, s{S_T0}, 28")
    a(f"s_mul_i32 s{S_T1}, s{S_PAR}, 3")
    a(f"s_add_u32 s{S_T0}, s{S_T0}, s{S_T1}")
    a(f"s_mul_i32 s{S_T1}, s{S_RT}, 56")
    a(f"s_add_u32 s{S_T0}, s{S_T0}, s{S_T1}")
    a(f"s_lshl_b32 s{S_T0}, s{S_T0}, 9")
    a(f"s_add_u32 s{S_T0}, s{S_T0}, {WS_Q}")
    a(f"v_add_u32 v{V_T}, s{S_T0}, v{V_KO}")
    for g in range(4):
        if g:
            a(f"v_add_u32 v{V_T}, {7*512}, v{V_T}")
        for t in range(2):
            a(f"global_load_dwordx4 {Qf(g,t)}, v{V_T}, s[{S_WS}:{S_WS+1}] offset:{1024*t}")
    a(f"s_lshl_b32 s{S_T0}, s{S_PAR}, 11")
    a(f"v_add_u32 v{V_KO}, s{S_T0}, v{V_KO}")
    def load_k(b):
        for t in range(2):
            a(f"buffer_load_dwordx4 {Kf(b,t)}, v{V_KO}, s[{S_SRD}:{S_SRD+3}], s{S_OFF} offen offset:{1024*t}")
    def load_v(b):
        for t in range(2):
            a(f"buffer_load_dwordx4 {Vf(b,t)}, v{V_VO}, s[{S_SRD}:{S_SRD+3}], s{S_OFF} offen offset:{1024*t}")
    a(f"s_cmp_eq_u32 s{S_PAR}, 0")
    a(f"s_cselect_b32 s{S_EX}, 0, -1")
    a(f"s_cselect_b32 s{S_EX+1}, -1, 0")
    a(f"s_mov_b32 s{S_PASS}, 0")

    def set_pads(src):
        a(f"s_mov_b64 exec, s[{S_EX}:{S_EX+1}]")
        a(f"s_cmp_eq_u32 s{S_PAR}, 0")
        lab = set_pads.n; set_pads.n += 1
        a(f"s_cbranch_scc0 L_at_padodd{lab}")
        for g in range(4):
            r0, r1 = src(g)
            a(f"v_mov_b32 v{V_Q+8*g+6}, {r0}")
            a(f"v_mov_b32 v{V_Q+8*g+7}, {r1}")
        a(f"s_branch L_at_paddone{lab}")
        a.label(f"L_at_padodd{lab}")
        for g in range(4):
            r0, r1 = src(g)
            a(f"v_mov_b32 v{V_Q+8*g+0}, {r0}")
            a(f"v_mov_b32 v{V_Q+8*g+1}, {r1}")
        a.label(f"L_at_paddone{lab}")
        a("s_mov_b64 exec, -1")
    set_pads.n = 0

    def qk(i, g, b):
        return [f"{MFMA} {S(i)}, {Kf(b,0)}, {Qf(g,0)}, 0",
                f"{MFMA} {S(i)}, {Kf(b,1)}, {Qf(g,1)}, {S(i)}"]
    def max_into(g, i, first):
        b = V_S + 16 * i
        if first:
            a(f"v_max3_f32 v{V_M+g}, v{b}, v{b+1}, v{b+2}")
            rest = list(range(3, 16))
        else:
            rest = list(range(0, 16))
        while len(rest) >= 2:
            a(f"v_max3_f32 v{V_M+g}, v{V_M+g}, v{b+rest[0]}, v{b+rest[1]}")
            rest = rest[2:]
        if rest:
            a(f"v_max_f32 v{V_M+g}, v{V_M+g}, v{b+rest[0]}")

    def first_loads():
        a(f"s_mov_b32 s{S_OFF}, 0")
        for b in range(3):
            load_k(b); load_v(b)
            a(f"s_add_u32 s{S_OFF}, s{S_OFF}, {KVT}")
    first_loads()
    a("s_waitcnt vmcnt(12)")
    set_pads(lambda g: ("0", "0"))
    a("s_waitcnt vmcnt(10)")
    a("s_nop 1")
    for g in range(4):
        for ins in qk(g & 1, g, 0):
            a(ins)
        if g:
            max_into(g - 1, (g - 1) & 1, True)
        else:
            a("s_nop 7")
        a("s_nop 7")
    a("s_nop 7")
    max_into(3, 1, True)
    a.label("L_at_setmax")
    for g in range(4):
        a(f"v_mov_b32 v{V_T+g}, v{V_M+g}")
    a("s_nop 1")
    for g in range(4):
        a(f"v_permlane32_swap_b32 v{V_M+g}, v{V_T+g}")
    a("s_nop 1")
    for g in range(4):
        a(f"v_max_f32 v{V_M+g}, v{V_M+g}, v{V_T+g}")
    for g in range(4):
        hi, r, mid = V_S + 4 * g, V_S + 4 * g + 1, V_S + 4 * g + 2
        a(f"v_and_b32 v{hi}, 0xffff0000, v{V_M+g}")
        a(f"v_sub_f32 v{r}, v{V_M+g}, v{hi}")
        a(f"v_and_b32 v{mid}, 0xffff0000, v{r}")
        a(f"v_sub_f32 v{r}, v{r}, v{mid}")
        a(f"v_lshrrev_b32 v{hi}, 16, v{hi}")
        a(f"v_or_b32 v{hi}, v{hi}, v{mid}")
        a(f"v_xor_b32 v{hi}, 0x80008000, v{hi}")
        a(f"v_lshrrev_b32 v{r}, 16, v{r}")
        a(f"v_xor_b32 v{r}, 0x8000, v{r}")
    set_pads(lambda g: (f"v{V_S+4*g}", f"v{V_S+4*g+1}"))
    for r in range(64):
        a(f"v_mov_b32 v{V_O+r}, 0")
    for r in range(8):
        a(f"v_mov_b32 v{V_P+8+r}, 0")
        a(f"v_mov_b32 v{V_KV+48+8+r}, 0")
    for ins in qk(0, 0, 0):
        a(ins)
    a(f"s_mov_b32 s{S_IT}, 4")
    a("s_nop 7")
    stamp(a, 1)
    a.label("L_at_main")
    for u in range(16):
        kt, g = u >> 2, u & 3
        cur, nxt = u & 1, (u & 1) ^ 1
        nkt, ng = ((u + 1) >> 2) & 3, (u + 1) & 3
        pkt, pg = ((u - 1) >> 2) & 3, (u - 1) & 3
        if g == 3:
            a("s_waitcnt vmcnt(10)")
        if g == 1:
            a("s_waitcnt vmcnt(8)")
        q = qk(nxt, ng, nkt)
        pp = V_P + 8 * nxt
        pv = [f"{MFMA} {O(pg)}, {Vf(pkt,0)}, {vr(pp,4)}, {O(pg)}",
              f"{MFMA} {O(pg)}, {Vf(pkt,1)}, {vr(pp+4,4)}, {O(pg)}"]
        sb_ = V_S + 16 * cur
        ex = [f"v_exp_f32 v{sb_+i}, v{sb_+i}" for i in range(16)]
        cv = [f"v_cvt_pk_bf16_f32 v{V_P+8*cur+i}, v{sb_+2*i}, v{sb_+2*i+1}" for i in range(8)]
        mf = [q[0], q[1], pv[0], pv[1]]
        for k in range(4):
            a(mf[k])
            for ins in ex[4*k:4*k+4]:
                a(ins)
            if k:
                for ins in cv[2*k-2:2*k]:
                    a(ins)
        for ins in cv[6:8]:
            a(ins)
        if g == 1:
            load_k((kt + 3) & 3); load_v((kt + 3) & 3)
            a(f"s_add_u32 s{S_OFF}, s{S_OFF}, {KVT}")
    a(f"s_sub_u32 s{S_IT}, s{S_IT}, 1")
    a(f"s_cmp_lg_u32 s{S_IT}, 0")
    a("s_cbranch_scc1 L_at_main")
    pp = V_P + 8
    a(f"{MFMA} {O(3)}, {Vf(3,0)}, {vr(pp,4)}, {O(3)}")
    a(f"{MFMA} {O(3)}, {Vf(3,1)}, {vr(pp+4,4)}, {O(3)}")
    stamp(a, 2)
    a(f"v_pk_add_f32 {vr(V_T,2)}, {vr(V_O,2)}, {vr(V_O+2,2)}")
    a(f"v_pk_add_f32 {vr(V_T+2,2)}, {vr(V_O+4,2)}, {vr(V_O+6,2)}")
    for r in range(8, 64, 4):
        if r == 48:
            a("s_nop 7")
        a(f"v_pk_add_f32 {vr(V_T,2)}, {vr(V_T,2)}, {vr(V_O+r,2)}")
        a(f"v_pk_add_f32 {vr(V_T+2,2)}, {vr(V_T+2,2)}, {vr(V_O+r+2,2)}")
    a(f"v_pk_add_f32 {vr(V_T,2)}, {vr(V_T,2)}, {vr(V_T+2,2)}")
    a(f"v_add_f32 v{V_T}, v{V_T}, v{V_T+1}")
    a(f"v_mov_b32 v{V_T+1}, 0x207")
    a(f"v_cmp_class_f32 vcc, v{V_T}, v{V_T+1}")
    a(f"s_cmp_lg_u32 s{S_PASS}, 0")
    a("s_cbranch_scc1 L_at_reduce")
    a("s_cbranch_vccz L_at_reduce")
    a(f"s_mov_b32 s{S_PASS}, 1")
    a("s_waitcnt vmcnt(0)")
    set_pads(lambda g: ("0", "0"))
    for g in range(4):
        a(f"v_mov_b32 v{V_M+g}, 0xff800000")
    a(f"s_mov_b32 s{S_OFF}, 0")
    a(f"s_mov_b32 s{S_IT}, 16")
    a.label("L_at_slow")
    load_k(0)
    a(f"s_add_u32 s{S_OFF}, s{S_OFF}, {KVT}")
    a("s_waitcnt vmcnt(0)")
    for g in range(4):
        for ins in qk(0, g, 0):
            a(ins)
        a("s_nop 15")
        max_into(g, 0, False)
    a(f"s_sub_u32 s{S_IT}, s{S_IT}, 1")
    a(f"s_cmp_lg_u32 s{S_IT}, 0")
    a("s_cbranch_scc1 L_at_slow")
    first_loads()
    a("s_waitcnt vmcnt(10)")
    a("s_branch L_at_setmax")
    a.label("L_at_reduce")
    a(f"v_lshlrev_b32 v{V_T}, 4, v{V_LANE}")
    a(f"s_lshl_b32 s{S_T0}, s{S_W}, 14")
    a(f"s_add_u32 s{S_T0}, s{S_T0}, {ldsbase}")
    a(f"v_add_u32 v{V_T+1}, s{S_T0}, v{V_T}")
    a(f"v_lshlrev_b32 v{V_T+2}, 2, v{V_LANE}")
    a(f"s_lshl_b32 s{S_T0}, s{S_W}, 10")
    a(f"s_add_u32 s{S_T0}, s{S_T0}, {ldsbase + 65536}")
    a(f"v_add_u32 v{V_T+3}, s{S_T0}, v{V_T+2}")
    for g in range(4):
        a(f"ds_write_b32 v{V_T+3}, v{V_M+g} offset:{256*g}")
        for qd in range(4):
            a(f"ds_write_b128 v{V_T+1}, {vr(V_O+16*g+4*qd,4)} offset:{4096*g + 1024*qd}")
    a(f"s_lshl_b32 s{S_T0}, s{S_W}, 12")
    a(f"s_add_u32 s{S_T0}, s{S_T0}, {ldsbase}")
    a(f"v_add_u32 v{V_T+1}, s{S_T0}, v{V_T}")
    a(f"s_lshl_b32 s{S_T0}, s{S_W}, 8")
    a(f"s_add_u32 s{S_T0}, s{S_T0}, {ldsbase + 65536}")
    a(f"v_add_u32 v{V_T+3}, s{S_T0}, v{V_T+2}")
    a("s_waitcnt lgkmcnt(0)")
    a("s_barrier")
    for sw in range(4):
        a(f"ds_read_b32 v{V_M+sw}, v{V_T+3} offset:{1024*sw}")
    for sw in range(4):
        for qd in range(4):
            a(f"ds_read_b128 {vr(V_O+16*sw+4*qd,4)}, v{V_T+1} offset:{16384*sw + 1024*qd}")
    a(f"s_lshr_b32 s{S_T0}, s{S_HG}, 1")
    a(f"s_lshl_b32 s{S_T0}, s{S_T0}, 3")
    a(f"s_lshl_b32 s{S_T1}, s{S_W}, 1")
    a(f"s_add_u32 s{S_T0}, s{S_T0}, s{S_T1}")
    a(f"s_add_u32 s{S_T0}, s{S_T0}, s{S_PAR}")
    a(f"s_lshl_b32 s{S_T0}, s{S_T0}, 11")
    a(f"s_lshl_b32 s{S_T1}, s{S_RT}, 15")
    a(f"s_add_u32 s{S_T0}, s{S_T0}, s{S_T1}")
    a(f"s_add_u32 s{S_T0}, s{S_T0}, {WS_O}")
    a(f"v_and_b32 v{V_T}, 31, v{V_LANE}")
    a(f"v_lshlrev_b32 v{V_T}, 4, v{V_T}")
    a(f"v_lshrrev_b32 v{V_T+2}, 5, v{V_LANE}")
    a(f"v_lshl_add_u32 v{V_T}, v{V_T+2}, 10, v{V_T}")
    a(f"v_add_u32 v{V_T}, s{S_T0}, v{V_T}")
    a("s_waitcnt lgkmcnt(15)")
    a("s_waitcnt lgkmcnt(12)")
    a(f"v_max3_f32 v{V_T+4}, v{V_M}, v{V_M+1}, v{V_M+2}")
    a(f"v_max_f32 v{V_T+4}, v{V_T+4}, v{V_M+3}")
    for sw in range(4):
        a(f"v_sub_f32 v{V_M+sw}, v{V_M+sw}, v{V_T+4}")
    for sw in range(4):
        a(f"v_exp_f32 v{V_M+sw}, v{V_M+sw}")
    a("s_nop 0")
    for r in range(16):
        a(f"v_mul_f32 v{V_O+r}, v{V_O+r}, v{V_M}")
    for sw in range(1, 4):
        a(f"s_waitcnt lgkmcnt({12 - 4*sw})")
        for r in range(16):
            a(f"v_fmac_f32 v{V_O+r}, v{V_O+16*sw+r}, v{V_M+sw}")
    a(f"v_mov_b32 v{V_T+4}, v{V_O+12}")
    a(f"v_mov_b32 v{V_T+5}, v{V_O+12}")
    a("s_nop 1")
    a(f"v_permlane32_swap_b32 v{V_T+4}, v{V_T+5}")
    a("s_nop 1")
    a(f"v_rcp_f32 v{V_T+5}, v{V_T+5}")
    a(f"v_cmp_eq_u32 vcc, 1, v{V_T+2}")
    for r in range(16):
        a(f"v_mul_f32 v{V_O+r}, v{V_O+r}, v{V_T+5}")
    for r in range(8):
        a(f"v_cvt_pk_bf16_f32 v{V_S+r}, v{V_O+2*r}, v{V_O+2*r+1}")
    a(f"v_mov_b32 v{V_T+4}, 0")
    a(f"v_cndmask_b32 v{V_S+6}, v{V_S+6}, v{V_T+4}, vcc")
    a(f"v_cndmask_b32 v{V_S+7}, v{V_S+7}, v{V_T+4}, vcc")
    a(f"global_store_dwordx4 v{V_T}, {vr(V_S,4)}, s[{S_WS}:{S_WS+1}]")
    a(f"global_store_dwordx4 v{V_T}, {vr(V_S+4,4)}, s[{S_WS}:{S_WS+1}] offset:512")

def k2(a):
    name = "k2_kernel"
    kernel_head(a, name)
    a("s_cmp_ge_u32 s2, 256")
    a("s_cbranch_scc1 L_k2_end")
    stamp(a, 0)
    a("s_load_dwordx2 s[4:5], s[0:1], 88")
    a("v_lshrrev_b32 v1, 6, v0")
    a("s_lshr_b32 s7, s2, 2")
    a("v_readfirstlane_b32 s6, v1")
    a("s_and_b32 s8, s2, 3")
    a("s_waitcnt lgkmcnt(0)")
    attn_body(a, 6, 4, 7, 8, 12)
    stamp(a, 3)
    stamp_flush(a, 4, "k2", kidx=1)
    a.label("L_k2_end")
    a("s_endpgm")
    kernel_desc(a, name, 224, 0)
    return (name, 256, 256, AT_LDS)


def gemm_setup(a, R, S_W, S_T0):
    L, P = R["lane"], R["tmp"]
    a(f"v_and_b32 v{L}, 63, v0")
    a(f"v_lshrrev_b32 v{P}, 3, v{L}")
    a(f"v_mul_u32_u24 v{R['wo']}, 896, v{P}")
    a(f"v_bfe_u32 v{P+1}, v{L}, 4, 1")
    a(f"v_lshlrev_b32 v{P+1}, 2, v{P+1}")
    a(f"v_and_b32 v{P+2}, 7, v{L}")
    a(f"v_xor_b32 v{P+1}, v{P+1}, v{P+2}")
    a(f"v_lshl_add_u32 v{R['wo']}, v{P+1}, 4, v{R['wo']}")
    a(f"v_lshrrev_b32 v{P}, 5, v{L}")
    a(f"v_lshlrev_b32 v{P}, 10, v{P}")
    a(f"v_bfe_u32 v{P+1}, v{L}, 2, 2")
    a(f"v_lshl_add_u32 v{P}, v{P+1}, 7, v{P}")
    a(f"v_and_b32 v{P+1}, 1, v{L}")
    a(f"v_lshl_add_u32 v{P}, v{P+1}, 5, v{P}")
    a(f"v_bfe_u32 v{P+1}, v{L}, 4, 1")
    a(f"v_lshl_add_u32 v{P}, v{P+1}, 4, v{P}")
    a(f"v_bfe_u32 v{P+1}, v{L}, 1, 1")
    a(f"v_lshl_add_u32 v{P}, v{P+1}, 3, v{P}")
    a(f"v_bfe_u32 v{P+1}, v{L}, 3, 1")
    a(f"s_and_b32 s{S_T0}, s{S_W}, 1")
    a(f"v_xor_b32 v{P+1}, s{S_T0}, v{P+1}")
    a(f"v_lshl_add_u32 v{R['tr']}, v{P+1}, 6, v{P}")
    a(f"v_xor_b32 v{R['tr']+1}, 64, v{R['tr']}")

def gemm_run(a, R, tag, U, NIT, S_WSRD, S_WOFF, wstep, S_BSRD, S_BOFF, S_LB, S_IT):
    ACC, AF, BF = R["acc"], R["af"], R["bf"]
    def issue(j):
        for p in range(2):
            a(f"s_add_u32 m0, s{S_LB}, {j*2048 + p*1024}")
            if p:
                a(f"s_add_u32 s{S_WOFF+1}, s{S_WOFF}, {8*896}")
            else:
                a("s_nop 0")
            a(f"buffer_load_dwordx4 v{R['wo']}, s[{S_WSRD}:{S_WSRD+3}], s{S_WOFF+p} offen lds")
        a(f"s_add_u32 s{S_WOFF}, s{S_WOFF}, {wstep(j)}")
        for b in range(2):
            a(f"buffer_load_dwordx4 {vr(BF+8*j+4*b,4)}, v{R['bo']+b}, s[{S_BSRD}:{S_BSRD+3}], s{S_BOFF} offen")
        a(f"s_add_u32 s{S_BOFF}, s{S_BOFF}, 1024")
    def reads(j, buf):
        for t in range(2):
            for hf in range(2):
                a(f"ds_read_b64_tr_b16 {vr(AF+8*buf+4*t+2*hf,2)}, v{R['tr']+t} offset:{j*2048 + hf*512}")
    def mfmas(j, buf):
        for b in range(2):
            for t in range(2):
                i = t + 2 * b
                a(f"{MFMA} {vr(ACC+16*i,16)}, {vr(AF+8*buf+4*t,4)}, {vr(BF+8*j+4*b,4)}, {vr(ACC+16*i,16)}")
    for j in range(U):
        issue(j)
    for r in range(64):
        a(f"v_mov_b32 v{ACC+r}, 0")
    a(f"s_waitcnt vmcnt({4*U - 2})")
    reads(0, 0)
    assert NIT == 1 or U % 2 == 0 or True
    par = 0
    if NIT > 1:
        assert U % 2 == 0, "loop needs even U for A double buffer"
        a(f"s_mov_b32 s{S_IT}, {NIT-1}")
        a.label(f"L_{tag}_loop")
        for j in range(U):
            a(f"s_waitcnt vmcnt({4*U - 6})")
            a("s_waitcnt lgkmcnt(0)")
            reads((j + 1) % U, (j + 1) & 1)
            mfmas(j, j & 1)
            issue(j)
        a(f"s_sub_u32 s{S_IT}, s{S_IT}, 1")
        a(f"s_cmp_lg_u32 s{S_IT}, 0")
        a(f"s_cbranch_scc1 L_{tag}_loop")
    for j in range(U):
        if j + 1 < U:
            a(f"s_waitcnt vmcnt({4*(U-j-2) + 2})")
            a("s_waitcnt lgkmcnt(0)")
            reads(j + 1, (j + 1) & 1)
        else:
            a("s_waitcnt vmcnt(0) lgkmcnt(0)")
        mfmas(j, j & 1)

def gemm_reduce_write(a, R, S_W, S_T0, red_base):
    P = R["tmp"]
    a(f"v_lshlrev_b32 v{P}, 4, v{R['lane']}")
    a("s_nop 7")
    a("s_nop 3")
    for i in range(1, 4):
        a(f"s_xor_b32 s{S_T0}, s{S_W}, {i}")
        a(f"s_mul_i32 s{S_T0}, s{S_T0}, 12288")
        a(f"s_add_u32 s{S_T0}, s{S_T0}, {red_base + (i-1)*4096}")
        a(f"v_add_u32 v{P+1}, s{S_T0}, v{P}")
        for q in range(4):
            a(f"ds_write_b128 v{P+1}, {vr(R['acc']+16*i+4*q,4)} offset:{1024*q}")
    a(f"s_mul_i32 s{S_T0}, s{S_W}, 12288")
    a(f"s_add_u32 s{S_T0}, s{S_T0}, {red_base}")
    a(f"v_add_u32 v{P+1}, s{S_T0}, v{P}")

def gemm_reduce_read(a, R):
    P, ACC = R["tmp"], R["acc"]
    for i in range(1, 4):
        for q in range(4):
            a(f"ds_read_b128 {vr(ACC+16*i+4*q,4)}, v{P+1} offset:{(i-1)*4096 + 1024*q}")
    for i in range(1, 4):
        a(f"s_waitcnt lgkmcnt({12 - 4*i})")
        for r in range(16):
            a(f"v_add_f32 v{ACC+r}, v{ACC+r}, v{ACC+16*i+r}")

def srd(a, S, base_lo, base_hi, off_s, nbytes):
    a(f"s_add_u32 s{S}, s{base_lo}, {off_s}")
    a(f"s_addc_u32 s{S+1}, s{base_hi}, 0")
    a(f"s_and_b32 s{S+1}, s{S+1}, 0xffff")
    a(f"s_mov_b32 s{S+2}, {nbytes}")
    a(f"s_mov_b32 s{S+3}, 0x00020000")

GR = dict(lane=1, tmp=2, wo=8, st=9, tr=10, bo=12, acc=16, af=80, bf=96)

def tile_ids(a, S_RB, S_CB, S_T0, S_T1):
    a(f"s_and_b32 s{S_T0}, s2, 7")
    a(f"s_lshr_b32 s{S_T1}, s2, 3")
    a(f"s_and_b32 s{S_RB}, s{S_T1}, 3")
    a(f"s_lshl_b32 s{S_T0}, s{S_T0}, 2")
    a(f"s_add_u32 s{S_RB}, s{S_RB}, s{S_T0}")
    a(f"s_lshr_b32 s{S_CB}, s{S_T1}, 2")

DN_U = 4
def down_body(a, S_W, S_WS, S_WD, S_RB, S_CB, sb, ldsbase, barrier):
    R = GR
    S_WSRD, S_BSRD = sb, sb + 4
    S_WOFF, S_BOFF, S_LB, S_IT, S_T0, S_T1 = sb + 8, sb + 10, sb + 11, sb + 12, sb + 13, sb + 14
    gemm_setup(a, R, S_W, S_T0)
    srd(a, S_WSRD, S_WD, S_WD + 1, 0, 1792 * 896)
    srd(a, S_BSRD, S_WS, S_WS + 1, WS_H, 64 * 112 * 1024)
    a(f"s_mul_i32 s{S_LB}, s{S_W}, {DN_U*2048}")
    a(f"s_add_u32 s{S_LB}, s{S_LB}, {ldsbase}")
    a(f"v_add_u32 v{R['tr']}, s{S_LB}, v{R['tr']}")
    a(f"v_add_u32 v{R['tr']+1}, s{S_LB}, v{R['tr']+1}")
    a(f"s_mul_i32 s{S_WOFF}, s{S_W}, {448*896}")
    a(f"s_lshl_b32 s{S_T0}, s{S_CB}, 7")
    a(f"s_add_u32 s{S_WOFF}, s{S_WOFF}, s{S_T0}")
    a(f"s_lshr_b32 s{S_T0}, s{S_W}, 1")
    a(f"s_lshl_b32 s{S_T1}, s{S_RB}, 1")
    a(f"s_add_u32 s{S_T0}, s{S_T0}, s{S_T1}")
    a(f"s_lshl_b32 s{S_T1}, s{S_T0}, 8")
    a(f"s_add_u32 s{S_T1}, s{S_T1}, {0x1200000}")
    a(f"v_and_b32 v{R['st']}, 31, v{R['lane']}")
    a(f"v_lshl_add_u32 v{R['st']}, v{R['st']}, 3, s{S_T1}")
    a(f"global_load_dword v{R['st']}, v{R['st']}, s[{S_WS}:{S_WS+1}] sc1")
    a(f"s_xor_b32 s{S_T1}, s{S_T0}, 1")
    a(f"s_mul_i32 s{S_T0}, s{S_T0}, {112*1024}")
    a(f"s_mul_i32 s{S_T1}, s{S_T1}, {112*1024}")
    a(f"v_lshlrev_b32 v{R['tmp']}, 4, v{R['lane']}")
    a(f"v_add_u32 v{R['bo']}, s{S_T0}, v{R['tmp']}")
    a(f"v_add_u32 v{R['bo']+1}, s{S_T1}, v{R['tmp']}")
    a(f"s_mul_i32 s{S_BOFF}, s{S_W}, {28*1024}")
    gemm_run(a, R, "dn", DN_U, 28 // DN_U, S_WSRD, S_WOFF, lambda j: 16 * 896, S_BSRD, S_BOFF, S_LB, S_IT)
    red = ldsbase + 4 * DN_U * 2048
    gemm_reduce_write(a, R, S_W, S_T0, red)
    a("s_waitcnt lgkmcnt(0)")
    barrier()
    gemm_reduce_read(a, R)
    ACC = R["acc"]; T = R["af"]
    a("s_waitcnt vmcnt(0)")
    a(f"v_and_b32 v{R['st']}, 0xffff0000, v{R['st']}")
    a(f"v_mul_f32 v{R['st']}, v{R['st']}, v{R['st']}")
    a(f"v_rcp_f32 v{R['st']}, v{R['st']}")
    a("s_nop 0")
    for r in range(16):
        a(f"v_mul_f32 v{ACC+r}, v{ACC+r}, v{R['st']}")
    for r in range(16):
        a(f"v_mul_f32 v{T+r}, {hex(f32bits(-math.log2(math.e)))}, v{ACC+r}")
    for r in range(16):
        a(f"v_exp_f32 v{T+r}, v{T+r}")
    for r in range(16):
        a(f"v_add_f32 v{T+r}, 1.0, v{T+r}")
    for r in range(16):
        a(f"v_rcp_f32 v{T+r}, v{T+r}")
    a(f"s_lshr_b32 s{S_T0}, s{S_W}, 1")
    a(f"s_lshl_b32 s{S_T1}, s{S_RB}, 1")
    a(f"s_add_u32 s{S_T0}, s{S_T0}, s{S_T1}")
    a(f"s_mul_i32 s{S_T0}, s{S_T0}, 14")
    a(f"s_lshl_b32 s{S_T1}, s{S_CB}, 1")
    a(f"s_add_u32 s{S_T0}, s{S_T0}, s{S_T1}")
    a(f"s_and_b32 s{S_T1}, s{S_W}, 1")
    a(f"s_add_u32 s{S_T0}, s{S_T0}, s{S_T1}")
    a(f"s_lshl_b32 s{S_T0}, s{S_T0}, 11")
    a(f"s_add_u32 s{S_T0}, s{S_T0}, {WS_D}")
    for r in range(16):
        a(f"v_mul_f32 v{ACC+r}, v{ACC+r}, v{T+r}")
    a(f"v_add_u32 v{R['tmp']}, s{S_T0}, v{R['tmp']}")
    for r in range(8):
        a(f"v_cvt_pk_bf16_f32 v{T+r}, v{ACC+2*r}, v{ACC+2*r+1}")
    a(f"global_store_dwordx4 v{R['tmp']}, {vr(T,4)}, s[{S_WS}:{S_WS+1}]")
    a(f"global_store_dwordx4 v{R['tmp']}, {vr(T+4,4)}, s[{S_WS}:{S_WS+1}] offset:1024")

def kd(a):
    name = "kd_kernel"
    kernel_head(a, name)
    a("s_cmp_ge_u32 s2, 224")
    a("s_cbranch_scc1 L_kd_end")
    stamp(a, 0)
    a("s_load_dwordx2 s[4:5], s[0:1], 88")
    a("s_load_dwordx2 s[6:7], s[0:1], 64")
    a("v_lshrrev_b32 v1, 6, v0")
    tile_ids(a, 9, 10, 11, 12)
    a("v_readfirstlane_b32 s8, v1")
    a("s_waitcnt lgkmcnt(0)")
    down_body(a, 8, 4, 6, 9, 10, 16, 0, lambda: a("s_barrier"))
    stamp_flush(a, 1, "kd", kidx=2)
    a.label("L_kd_end")
    a("s_endpgm")
    kernel_desc(a, name, 96 + 8 * DN_U, 0)
    return (name, 224, 256, 4 * DN_U * 2048 + 4 * 12288)

def k3(a):
    name = "k3_kernel"
    R = GR
    U = 8
    kernel_head(a, name)
    a("s_cmp_ge_u32 s2, 224")
    a("s_cbranch_scc1 L_k3_end")
    stamp(a, 0)
    S_WS, S_WO, S_X, S_OUT = 4, 6, 8, 10
    S_W, S_RB, S_CB = 12, 13, 14
    sb = 16
    S_WSRD, S_BSRD = sb, sb + 4
    S_WOFF, S_BOFF, S_LB, S_IT, S_T0, S_T1 = sb + 8, sb + 10, sb + 11, sb + 12, sb + 13, sb + 14
    a("s_load_dwordx2 s[4:5], s[0:1], 88")
    a("s_load_dwordx2 s[6:7], s[0:1], 32")
    a("s_load_dwordx2 s[8:9], s[0:1], 0")
    a("s_load_dwordx2 s[10:11], s[0:1], 72")
    a("v_lshrrev_b32 v1, 6, v0")
    tile_ids(a, S_RB, S_CB, S_T0, S_T1)
    a(f"v_readfirstlane_b32 s{S_W}, v1")
    a("s_nop 3")
    gemm_setup(a, R, S_W, S_T0)
    a("s_waitcnt lgkmcnt(0)")
    srd(a, S_WSRD, S_WO, S_WO + 1, 0, 448 * 896)
    srd(a, S_BSRD, S_WS, S_WS + 1, WS_O, 64 * 32 * 1024)
    a(f"s_mul_i32 s{S_LB}, s{S_W}, {U*2048}")
    a(f"v_add_u32 v{R['tr']}, s{S_LB}, v{R['tr']}")
    a(f"v_add_u32 v{R['tr']+1}, s{S_LB}, v{R['tr']+1}")
    a(f"s_mul_i32 s{S_WOFF}, s{S_W}, {112*896}")
    a(f"s_lshl_b32 s{S_T0}, s{S_CB}, 7")
    a(f"s_add_u32 s{S_WOFF}, s{S_WOFF}, s{S_T0}")
    a(f"s_lshr_b32 s{S_T0}, s{S_W}, 1")
    a(f"s_lshl_b32 s{S_T1}, s{S_RB}, 1")
    a(f"s_add_u32 s{S_T0}, s{S_T0}, s{S_T1}")
    a(f"s_xor_b32 s{S_T1}, s{S_T0}, 1")
    a(f"v_lshlrev_b32 v{R['tmp']}, 4, v{R['lane']}")
    a(f"s_lshl_b32 s{S_IT}, s{S_T0}, 15")
    a(f"v_add_u32 v{R['bo']}, s{S_IT}, v{R['tmp']}")
    a(f"s_lshl_b32 s{S_IT}, s{S_T1}, 15")
    a(f"v_add_u32 v{R['bo']+1}, s{S_IT}, v{R['tmp']}")
    a(f"s_lshl_b32 s{S_BOFF}, s{S_W}, 13")
    V_XG = R["bf"] + 8 * U
    V_OA = V_XG + 16
    a(f"v_and_b32 v{V_OA}, 31, v{R['lane']}")
    a(f"s_lshl_b32 s{S_IT}, s{S_T0}, 5")
    a(f"v_add_u32 v{V_OA}, s{S_IT}, v{V_OA}")
    a(f"v_mul_u32_u24 v{V_OA}, 896, v{V_OA}")
    a(f"v_lshrrev_b32 v{V_OA+1}, 5, v{R['lane']}")
    a(f"v_lshl_add_u32 v{V_OA}, v{V_OA+1}, 5, v{V_OA}")
    a(f"s_lshl_b32 s{S_IT}, s{S_CB}, 1")
    a(f"s_and_b32 s{S_T1}, s{S_W}, 1")
    a(f"s_add_u32 s{S_IT}, s{S_IT}, s{S_T1}")
    a(f"s_lshl_b32 s{S_T1}, s{S_IT}, 6")
    a(f"v_add_u32 v{V_OA}, s{S_T1}, v{V_OA}")
    a(f"global_load_dwordx4 {vr(V_XG,4)}, v{V_OA}, s[{S_X}:{S_X+1}]")
    a(f"global_load_dwordx4 {vr(V_XG+4,4)}, v{V_OA}, s[{S_X}:{S_X+1}] offset:16")
    a(f"s_mul_i32 s{S_T0}, s{S_T0}, 14")
    a(f"s_add_u32 s{S_T0}, s{S_T0}, s{S_IT}")
    a(f"s_lshl_b32 s{S_T0}, s{S_T0}, 11")
    a(f"s_add_u32 s{S_T0}, s{S_T0}, {WS_D}")
    a(f"v_add_u32 v{V_OA+1}, s{S_T0}, v{R['tmp']}")
    a(f"global_load_dwordx4 {vr(V_XG+8,4)}, v{V_OA+1}, s[{S_WS}:{S_WS+1}]")
    a(f"global_load_dwordx4 {vr(V_XG+12,4)}, v{V_OA+1}, s[{S_WS}:{S_WS+1}] offset:1024")
    gemm_run(a, R, "wo", U, 1, S_WSRD, S_WOFF, lambda j: (16 if j % 2 == 0 else 12) * 896, S_BSRD, S_BOFF, S_LB, S_IT)
    red = 4 * U * 2048
    gemm_reduce_write(a, R, S_W, S_T0, red)
    a("s_waitcnt lgkmcnt(0)")
    a("s_barrier")
    gemm_reduce_read(a, R)
    ACC = R["acc"]; T = R["af"]
    for r in range(8):
        a(f"v_lshlrev_b32 v{T}, 16, v{V_XG+r}")
        a(f"v_and_b32 v{T+1}, 0xffff0000, v{V_XG+r}")
        a(f"v_lshlrev_b32 v{T+2}, 16, v{V_XG+8+r}")
        a(f"v_and_b32 v{T+3}, 0xffff0000, v{V_XG+8+r}")
        a(f"v_fmac_f32 v{T}, v{ACC+2*r}, v{T+2}")
        a(f"v_fmac_f32 v{T+1}, v{ACC+2*r+1}, v{T+3}")
        a(f"v_cvt_pk_bf16_f32 v{T+8+r}, v{T}, v{T+1}")
    a(f"global_store_dwordx4 v{V_OA}, {vr(T+8,4)}, s[{S_OUT}:{S_OUT+1}]")
    a(f"global_store_dwordx4 v{V_OA}, {vr(T+12,4)}, s[{S_OUT}:{S_OUT+1}] offset:16")
    stamp_flush(a, 1, "k3", kidx=3)
    a.label("L_k3_end")
    a("s_endpgm")
    kernel_desc(a, name, V_OA + 2, 0)
    return (name, 224, 256, 4 * U * 2048 + 4 * 12288)


def build(kernels):
    a = Asm()
    infos = []
    body = Asm()
    for k in kernels:
        infos.append(k(body))
    hdr = ["; generated by work/gen.py"]
    for (name, grid, block, lds) in infos:
        if len(infos) == 1 and os.environ.get("SINGLE"):
            hdr.append(f"; @launch grid=({grid},1,1) block=({block},1,1) lds={lds}")
        else:
            hdr.append(f"; @launch kernel={name} grid=({grid},1,1) block=({block},1,1) lds={lds}")
    hdr.append('.amdgcn_target "amdgcn-amd-amdhsa--gfx950"')
    return "\n".join(hdr) + "\n" + body.text()

if __name__ == "__main__":
    out = sys.argv[1] if len(sys.argv) > 1 else "k.s"
    import p1, p2
    tab = dict(globals()); tab.update(vars(p1)); tab.update(vars(p2))
    open(out, "w").write(build([tab[k] for k in os.environ.get('KS', 'kg').split(',')]))
```

```python
from gen import *

P1_XN = 0
P1_W  = 7 * 16384
P1_LDS = 163840
SCR0 = P1_W + 2 * 16384 + 15 * 1024
SCRA = P1_W + 0 * 16384
SCRN = P1_XN + 6 * 16384
SCRB = P1_XN

WS_ST = 0x1200000
WS_FL = 0x1210000
FL_KV = WS_FL + 32768
FL_Q  = FL_KV + 128
FL_H  = WS_FL + 2048
FL_O  = WS_FL + 8192

V_L = 1

def p1_ids(a, S_RB, S_CB, S_T0, S_T1, S_T2):
    a(f"s_and_b32 s{S_T0}, s2, 7")
    a(f"s_lshr_b32 s{S_T1}, s2, 3")
    a(f"s_and_b32 s{S_RB}, s{S_T0}, 1")
    a(f"s_lshl_b32 s{S_RB}, s{S_RB}, 3")
    a(f"s_and_b32 s{S_T2}, s{S_T1}, 7")
    a(f"s_add_u32 s{S_RB}, s{S_RB}, s{S_T2}")
    a(f"s_lshr_b32 s{S_CB}, s{S_T0}, 1")
    a(f"s_lshr_b32 s{S_T2}, s{S_T1}, 3")
    a(f"s_lshl_b32 s{S_T2}, s{S_T2}, 2")
    a(f"s_add_u32 s{S_CB}, s{S_CB}, s{S_T2}")

SPIN_MAX = 200000

WS_CS = 0x1280000
WS_CQ = 0x12C0000
FL_CS = WS_FL + 16384

def p1_helper(a, S):
    V_WA, V_WB, V_XO, V_C1, V_C2, V_GA = 2, 3, 4, 6, 7, 8
    V_ACCS = 12
    V_U = 20
    V_ST = 28
    P = 32
    V_D = 40
    HW, T0, T1, T2 = S["T3"], S["T0"], S["T1"], S["T2"]
    sb = S["sb"]
    SA, SB, SX, SC1, SC2 = sb, sb + 4, sb + 8, sb + 12, sb + 16
    M0, IT, SL, OFF, STEP, XM0, MASK, CSTEP, MU, OC, KVF = [sb + 20 + i for i in range(11)]
    MSK = sb + 32
    NONCE, WS = S["NONCE"], S["WS"]
    a(f"s_sub_u32 s{HW}, s{S['W']}, 4")
    a(f"s_and_b32 s{MU}, s{HW}, 1")
    a(f"s_lshr_b32 s{OC}, s{HW}, 1")
    a(f"s_mov_b32 s{MASK}, 0xffff0000")
    a(f"s_mov_b32 s{KVF}, 0")
    a(f"v_lshrrev_b32 v{P}, 3, v{V_L}")
    a(f"v_and_b32 v{P+6}, 7, v{V_L}")
    a(f"v_lshrrev_b32 v{P+2}, 1, v{P}")
    a(f"v_xor_b32 v{P+1}, v{P+6}, v{P+2}")
    a(f"v_mul_u32_u24 v{V_XO}, 896, v{P}")
    a(f"v_lshl_add_u32 v{V_XO}, v{P+1}, 4, v{V_XO}")
    a(f"v_xor_b32 v{V_XO+1}, 64, v{V_XO}")
    a(f"s_lshl_b32 s{T0}, s{S['RB']}, 7")
    a(f"s_lshl_b32 s{XM0}, s{HW}, 5")
    a(f"s_add_u32 s{T0}, s{T0}, s{XM0}")
    a(f"s_mul_i32 s{T0}, s{T0}, 896")
    a("s_waitcnt lgkmcnt(0)")
    a(f"s_add_u32 s{SX}, s{S['X']}, s{T0}")
    a(f"s_addc_u32 s{SX+1}, s{S['X']+1}, 0")
    a(f"s_and_b32 s{SX+1}, s{SX+1}, 0xffff")
    a(f"s_mov_b32 s{SX+2}, {32*896}")
    a(f"s_mov_b32 s{SX+3}, 0x00020000")
    a(f"s_lshl_b32 s{XM0}, s{HW}, 12")
    def xdma(c):
        for g in range(4):
            a(f"s_add_u32 m0, s{XM0}, {P1_XN + c*16384 + g*1024}")
            a(f"s_movk_i32 s{T0}, {g*8*896 + c*128}")
            a(f"buffer_load_dwordx4 v{V_XO+(g&1)}, s[{SX}:{SX+3}], s{T0} offen lds")
    xdma(0)
    a(f"s_lshl_b32 s{T0}, s{OC}, 3")
    a(f"v_add_u32 v{P+7}, s{T0}, v{P}")
    a(f"v_bfe_u32 v{P+1}, v{V_L}, 1, 2")
    a(f"v_and_b32 v{P+2}, 1, v{V_L}")
    a(f"v_bfe_u32 v{P+3}, v{V_L}, 4, 1")
    a(f"s_lshl_b32 s{T0}, s{MU}, 1")
    a(f"v_add_u32 v{P+4}, s{T0}, v{P+3}")
    a(f"v_xor_b32 v{P+4}, v{P+4}, v{P+1}")
    a(f"v_mul_u32_u24 v{V_WB}, 3584, v{P+7}")
    a(f"v_lshl_add_u32 v{V_WB}, v{P+4}, 5, v{V_WB}")
    a(f"v_lshl_add_u32 v{V_WB}, v{P+2}, 4, v{V_WB}")
    a(f"s_cmp_eq_u32 s{MU}, 0")
    a(f"s_cselect_b32 s{SB}, s{S['WG']}, s{S['WU']}")
    a(f"s_cselect_b32 s{SB+1}, s{S['WG']+1}, s{S['WU']+1}")
    a(f"s_and_b32 s{SB+1}, s{SB+1}, 0xffff")
    a(f"s_mov_b32 s{SB+2}, {448*3584}")
    a(f"s_mov_b32 s{SB+3}, 0x00020000")
    a(f"s_mov_b32 s{SA+3}, 0x00020000")
    a(f"s_cmp_lt_u32 s{S['CB']}, 4")
    a("s_cbranch_scc1 L_p1h_q")
    a(f"s_mov_b32 s{SA}, s{SB}")
    a(f"s_mov_b32 s{SA+1}, s{SB+1}")
    a(f"s_mov_b32 s{SA+2}, s{SB+2}")
    a(f"v_mov_b32 v{V_WA}, v{V_WB}")
    a(f"s_sub_u32 s{OFF}, s{S['CB']}, 4")
    a(f"s_lshl_b32 s{OFF}, s{OFF}, 7")
    a(f"s_mov_b32 s{STEP}, {16*3584}")
    a("s_branch L_p1h_go")
    a.label("L_p1h_q")
    a(f"s_lshl_b32 s{T0}, s{S['CB']}, 1")
    a(f"s_add_u32 s{T0}, s{T0}, s{MU}")
    a(f"s_cmp_eq_u32 s{T0}, 7")
    a("s_cbranch_scc1 L_p1h_kv")
    a(f"v_lshlrev_b32 v{P+4}, 1, v{P+3}")
    a(f"v_xor_b32 v{P+4}, v{P+4}, v{P+1}")
    a(f"v_mul_u32_u24 v{V_WA}, 896, v{P+7}")
    a(f"v_lshl_add_u32 v{V_WA}, v{P+4}, 5, v{V_WA}")
    a(f"v_lshl_add_u32 v{V_WA}, v{P+2}, 4, v{V_WA}")
    a(f"s_mov_b32 s{SA}, s{S['WQ']}")
    a(f"s_and_b32 s{SA+1}, s{S['WQ']+1}, 0xffff")
    a(f"s_mov_b32 s{SA+2}, {448*896}")
    a(f"s_lshl_b32 s{OFF}, s{T0}, 7")
    a(f"s_movk_i32 s{STEP}, {16*896}")
    a("s_branch L_p1h_go")
    a.label("L_p1h_kv")
    a(f"v_lshrrev_b32 v{P+4}, 2, v{V_L}")
    a(f"v_mul_u32_u24 v{V_WA}, 56, v{P+4}")
    a(f"v_and_b32 v{P+1}, 3, v{V_L}")
    a(f"v_lshlrev_b32 v{P+2}, 4, v{P+1}")
    a(f"v_min_u32 v{P+2}, 40, v{P+2}")
    a(f"v_add_u32 v{V_WA}, v{V_WA}, v{P+2}")
    a(f"s_cmp_eq_u32 s{OC}, 0")
    a(f"s_cselect_b32 s{SA}, s{S['WK']}, s{S['WV']}")
    a(f"s_cselect_b32 s{SA+1}, s{S['WK']+1}, s{S['WV']+1}")
    a(f"s_cselect_b32 s{KVF}, 1, 0")
    a(f"s_and_b32 s{SA+1}, s{SA+1}, 0xffff")
    a(f"s_mov_b32 s{SA+2}, {448*56}")
    a(f"s_mov_b32 s{OFF}, 0")
    a(f"s_movk_i32 s{STEP}, {16*56}")
    a.label("L_p1h_go")
    a(f"s_lshl_b32 s{M0}, s{HW}, 10")
    a(f"s_add_u32 s{M0}, s{M0}, {P1_W}")
    def dma1(i):
        a(f"s_add_u32 m0, s{M0}, {i*4096}")
        a("s_nop 0")
        a(f"buffer_load_dwordx4 v{V_WA}, s[{SA}:{SA+3}], s{OFF} offen lds")
        a(f"s_add_u32 s{OFF}, s{OFF}, s{STEP}")
    def slot_adv(tag):
        a(f"s_add_u32 s{M0}, s{M0}, 16384")
        a(f"s_add_u32 s{SL}, s{SL}, 1")
        a(f"s_cmp_lg_u32 s{SL}, 3")
        a(f"s_cbranch_scc1 L_p1h_nowrap{tag}")
        a(f"s_mov_b32 s{SL}, 0")
        a(f"s_sub_u32 s{M0}, s{M0}, {3*16384}")
        a.label(f"L_p1h_nowrap{tag}")
    for i in range(4): dma1(i)
    vm = ["x0"] * 4 + ["w0"] * 4
    def wait_for(*labels):
        last = max(i for i, l in enumerate(vm) if l in labels)
        a(f"s_waitcnt vmcnt({len(vm) - 1 - last})")
    def xd(c, g):
        a(f"s_add_u32 m0, s{XM0}, {P1_XN + c*16384 + g*1024}")
        a(f"s_movk_i32 s{T0}, {g*8*896 + c*128}")
        a(f"buffer_load_dwordx4 v{V_XO+(g&1)}, s[{SX}:{SX+3}], s{T0} offen lds")
        vm.append(f"x{c}")
    def wd(st, i):
        a(f"s_add_u32 m0, s{M0}, {(st % 3)*16384 + i*4096}")
        a("s_nop 0")
        a(f"buffer_load_dwordx4 v{V_WA}, s[{SA}:{SA+3}], s{OFF} offen lds")
        a(f"s_add_u32 s{OFF}, s{OFF}, s{STEP}")
        vm.append(f"w{st}")
    for g in range(4): xd(1, g)
    for i in range(4): wd(1, i)
    a(f"s_bfe_u32 s{T0}, s2, 0x10003")
    a(f"s_lshl_b32 s{T0}, s{T0}, 7")
    a(f"v_mov_b32 v{V_ST+2}, s{T0}")
    a(f"v_mov_b32 v{V_ST+3}, {SCRN}")
    a(f"v_mov_b32 v{V_ST+1}, 0")
    wait_for("x0", "w0")
    stamp(a, 1)
    a(f"s_cmp_lg_u32 s{HW}, 3")
    a("s_cbranch_scc1 L_p1h_non")
    a(f"global_load_dword v{V_ST+1}, v{V_ST+2}, s[{S['DBG']}:{S['DBG']+1}] sc1")
    a.label("L_p1h_non")
    a("s_barrier")
    for s in range(14):
        if s == 2:
            a(f"ds_read_b32 v{V_ST+1}, v{V_ST+3}")
            a("s_waitcnt lgkmcnt(0)")
            a(f"v_readfirstlane_b32 s{NONCE}, v{V_ST+1}")
        if s == 5:
            a(f"v_mov_b32 v{V_WA}, v{V_WB}")
            a(f"s_mov_b32 s{SA}, s{SB}")
            a(f"s_mov_b32 s{SA+1}, s{SB+1}")
            a(f"s_mov_b32 s{SA+2}, s{SB+2}")
            a(f"s_add_u32 s{OFF}, s{S['CB']}, 12")
            a(f"s_lshl_b32 s{OFF}, s{OFF}, 7")
            a(f"s_mov_b32 s{STEP}, {16*3584}")
        if s + 2 <= 13:
            for i in range(4): wd(s + 2, i)
        if s + 2 <= 6:
            for g in range(4): xd(s + 2, g)
        need = [l for l in (f"w{s+1}", f"x{s+1}") if l in vm]
        if need: wait_for(*need)
        if s == 1:
            a(f"s_cmp_lg_u32 s{HW}, 3")
            a("s_cbranch_scc1 L_p1h_nopub")
            a(f"s_mov_b32 s{T1}, {SPIN_MAX}")
            a.label("L_p1h_nonce")
            a(f"v_readfirstlane_b32 s{NONCE}, v{V_ST+1}")
            a(f"s_sub_u32 s{T1}, s{T1}, 1")
            a(f"s_cmp_eq_u32 s{T1}, 0")
            a("s_cbranch_scc1 L_p1h_nonced")
            a(f"s_cmp_lg_u32 s{NONCE}, 0")
            a("s_cbranch_scc1 L_p1h_nonced")
            a("s_sleep 2")
            a(f"global_load_dword v{V_ST+1}, v{V_ST+2}, s[{S['DBG']}:{S['DBG']+1}] sc1")
            a("s_waitcnt vmcnt(0)")
            a("s_branch L_p1h_nonce")
            a.label("L_p1h_nonced")
            a(f"ds_write_b32 v{V_ST+3}, v{V_ST+1}")
            a("s_waitcnt lgkmcnt(0)")
            a.label("L_p1h_nopub")
        if s == 11 and S.get("RELAY") is not None:
            a(f"s_lshr_b32 s{T0}, s2, 3")
            a(f"s_lshl_b32 s{T0}, s{T0}, 8")
            a(f"s_add_u32 s{T0}, s{T0}, {FL_KV}")
            a(f"v_min_u32 v9, 38, v{V_L}")
            a(f"v_lshl_add_u32 v9, v9, 2, s{T0}")
            a(f"v_mov_b32 v10, 0")
            a(f"v_mov_b32 v{P+3}, {S['RELAY']}")
            a(f"v_mov_b32 v{P+4}, 0")
            a(f"s_mov_b32 s{T2}, 0")
        if s in (12, 13) and S.get("RELAY") is not None:
            a(f"s_cmp_lg_u32 s{HW}, 1")
            a(f"s_cbranch_scc1 L_p1h_nrl{s}")
            a("s_waitcnt vmcnt(0)")
            a(f"v_cmp_ne_u32 vcc, s{NONCE}, v10")
            a("s_nop 1")
            a(f"s_cmp_eq_u64 vcc, 0")
            a(f"s_cselect_b32 s{T2}, 1, 0")
            a(f"v_mov_b32 v{P+2}, s{T2}")
            a(f"ds_write2_b32 v{P+3}, v{P+2}, v{P+4} offset0:0 offset1:1")
            a("s_waitcnt lgkmcnt(0)")
            a.label(f"L_p1h_nrl{s}")
        if s in (11, 12) and S.get("RELAY") is not None:
            a(f"s_cmp_lg_u32 s{HW}, 1")
            a(f"s_cbranch_scc1 L_p1h_nkv{s}")
            a(f"s_cmp_lg_u32 s{T2}, 0")
            a(f"s_cbranch_scc1 L_p1h_nkv{s}")
            a(f"global_load_dword v10, v9, s[{WS}:{WS+1}] sc1")
            a.label(f"L_p1h_nkv{s}")
        a("s_barrier")
        if s < 6 and S.get('HSTAMP'): stamp(a, 2 + s)

V_TA, V_TB, V_XB = 2, 4, 6
V_SR = 10
V_GA = 12
V_CT = 16
V_AF, V_BF = 32, 48
V_ACC = 64
V_G = 216
V_CD = 192
V_CS = 192
V_MB = 208
V_EO = 216

def p1_rowstats(a, S):
    W, T0, T1 = S["W"], S["T0"], S["T1"]
    P = V_CT
    R = V_AF
    for r in range(8):
        a(f"v_mov_b32 v{R+r}, 0")
    a(f"s_lshl_b32 s{T0}, s{S['RB']}, 7")
    a(f"s_lshl_b32 s{T1}, s{S['CB']}, 3")
    a(f"s_add_u32 s{T0}, s{T0}, s{T1}")
    a(f"s_lshl_b32 s{T1}, s{W}, 1")
    a(f"s_add_u32 s{T0}, s{T0}, s{T1}")
    a(f"s_mul_i32 s{T0}, s{T0}, 896")
    a(f"v_lshlrev_b32 v{P}, 4, v{V_L}")
    a(f"v_add_u32 v{P}, s{T0}, v{P}")
    a("s_waitcnt lgkmcnt(0)")
    a("s_mov_b32 exec_hi, 0x00ffffff")
    a(f"global_load_dwordx4 {vr(R,4)}, v{P}, s[{S['X']}:{S['X']+1}]")
    a(f"global_load_dwordx4 {vr(R+4,4)}, v{P}, s[{S['X']}:{S['X']+1}] offset:896")
    a("s_mov_b64 exec, -1")
    a(f"s_or_b32 s{T1}, s2, s{W}")
    a(f"s_cmp_lg_u32 s{T1}, 0")
    a("s_cbranch_scc1 L_p1c_nononce")
    a(f"s_memrealtime s[{S['sb']}:{S['sb']+1}]")
    a(f"v_lshlrev_b32 v{P+1}, 7, v{V_L}")
    a("s_waitcnt lgkmcnt(0)")
    a(f"s_or_b32 s{T1}, s{S['sb']}, 1")
    a(f"v_mov_b32 v{P+2}, s{T1}")
    a("s_mov_b64 exec, 3")
    a(f"global_store_dword v{P+1}, v{P+2}, s[{S['DBG']}:{S['DBG']+1}] sc1")
    a("s_mov_b64 exec, -1")
    a.label("L_p1c_nononce")

def p1_csload(a, S):
    W, T0, T1 = S["W"], S["T0"], S["T1"]
    P = V_BF + 5
    T2 = S["T2"]; B0 = 64
    D = V_CD
    for r in range(12, 16):
        a(f"v_mov_b32 v{D+r}, 0")
    a(f"v_lshrrev_b32 v{P+3}, 3, v{V_L}")
    a(f"v_and_b32 v{P+4}, 7, v{V_L}")
    a(f"s_and_b32 s{T1}, s{W}, 1")
    a(f"s_cmp_eq_u32 s{T1}, 0")
    a(f"s_cselect_b32 s{B0}, s{S['WG']}, s{S['WU']}")
    a(f"s_cselect_b32 s{B0+1}, s{S['WG']+1}, s{S['WU']+1}")
    a(f"s_add_u32 s{T0}, s{S['CB']}, 12")
    a(f"s_sub_u32 s{T2}, s{S['CB']}, 4")
    a(f"s_cmp_ge_u32 s{W}, 2")
    a(f"s_cselect_b32 s{T0}, s{T0}, s{T2}")
    a(f"s_movk_i32 s{T2}, 3584")
    a(f"s_mov_b32 s{B0+2}, 0")
    a("s_cbranch_scc1 L_p1c_cs0")
    a(f"s_cmp_ge_u32 s{S['CB']}, 4")
    a("s_cbranch_scc1 L_p1c_cs0")
    a(f"s_mov_b32 s{B0}, s{S['WQ']}")
    a(f"s_mov_b32 s{B0+1}, s{S['WQ']+1}")
    a(f"s_lshl_b32 s{T0}, s{S['CB']}, 1")
    a(f"s_add_u32 s{T0}, s{T0}, s{T1}")
    a(f"s_movk_i32 s{T2}, 896")
    a(f"s_mov_b32 s{B0+2}, 1")
    a(f"s_cmp_lg_u32 s{T0}, 7")
    a("s_cbranch_scc1 L_p1c_cs0")
    a(f"s_mov_b32 s{B0+2}, 2")
    a(f"s_mul_i32 s{T0}, s{S['RB']}, {28*56}")
    a(f"v_mul_u32_u24 v{P+5}, 56, v{P+3}")
    a(f"v_and_b32 v{P+6}, 3, v{V_L}")
    a(f"v_lshlrev_b32 v{P+6}, 4, v{P+6}")
    a(f"v_min_u32 v{P+6}, 40, v{P+6}")
    a(f"v_add3_u32 v{P+5}, v{P+5}, v{P+6}, s{T0}")
    for q in range(4):
        for kv, base in ((0, S["WK"]), (1, S["WV"])):
            m = 0xf0f0f0f0 if kv else 0x0f0f0f0f
            a(f"s_mov_b32 exec_lo, {hex(m)}")
            a(f"s_mov_b32 exec_hi, {hex(m) if q < 3 else 0}")
            a(f"global_load_dwordx4 {vr(D+4*q,4)}, v{P+5}, s[{base}:{base+1}] offset:{q*8*56}")
    a("s_mov_b64 exec, -1")
    a("s_branch L_p1c_cs1")
    a.label("L_p1c_cs0")
    a(f"s_lshl_b32 s{T0}, s{T0}, 7")
    a(f"s_mul_i32 s{T1}, s{S['RB']}, 28")
    a(f"v_add_u32 v{P+5}, s{T1}, v{P+3}")
    a(f"v_mul_lo_u32 v{P+5}, v{P+5}, s{T2}")
    a(f"v_lshl_add_u32 v{P+5}, v{P+4}, 4, v{P+5}")
    a(f"v_add_u32 v{P+5}, s{T0}, v{P+5}")
    a(f"s_lshl_b32 s{T2}, s{T2}, 3")
    for q in range(4):
        if q == 3:
            a("s_mov_b32 exec_hi, 0")
        a(f"global_load_dwordx4 {vr(D+4*q,4)}, v{P+5}, s[{B0}:{B0+1}]")
        if q < 3:
            a(f"v_add_u32 v{P+5}, s{T2}, v{P+5}")
    a("s_mov_b64 exec, -1")
    a.label("L_p1c_cs1")
    A_ = D + 16
    a(f"v_lshl_add_u32 v{P+5}, v{P+4}, 3, v{P+3}")
    a(f"s_and_b32 s{T1}, s{W}, 1")
    a(f"s_cmp_eq_u32 s{B0+2}, 0")
    a("s_cbranch_scc1 L_p1c_pg")
    a(f"v_and_b32 v{P+6}, 24, v{P+5}")
    a(f"v_cmp_eq_u32 vcc, 24, v{P+6}")
    a(f"s_and_b32 s{T0}, s{B0+2}, 2")
    a(f"s_lshl_b32 s{T0}, s{T0}, 1")
    a(f"v_xor_b32 v{P+6}, s{T0}, v{P+5}")
    a(f"v_cndmask_b32 v{P+5}, v{P+5}, v{P+6}, vcc")
    a(f"v_and_b32 v{P+6}, 0x23, v{P+5}")
    a(f"v_bfe_u32 v{P+7}, v{P+5}, 4, 1")
    a(f"v_lshl_add_u32 v{P+6}, v{P+7}, 2, v{P+6}")
    a(f"v_bfe_u32 v{P+7}, v{P+5}, 2, 2")
    a(f"v_lshl_add_u32 v{P+6}, v{P+7}, 3, v{P+6}")
    a(f"s_lshl_b32 s{T1}, s{T1}, 6")
    a("s_branch L_p1c_pa")
    a.label("L_p1c_pg")
    a(f"v_and_b32 v{P+6}, 3, v{P+5}")
    a(f"v_bfe_u32 v{P+7}, v{P+5}, 3, 1")
    a(f"v_lshl_add_u32 v{P+6}, v{P+7}, 2, v{P+6}")
    a(f"v_bfe_u32 v{P+7}, v{P+5}, 2, 1")
    a(f"v_lshl_add_u32 v{P+6}, v{P+7}, 3, v{P+6}")
    a(f"v_lshrrev_b32 v{P+7}, 4, v{P+5}")
    a(f"v_lshl_add_u32 v{P+6}, v{P+7}, 5, v{P+6}")
    a(f"s_lshl_b32 s{T1}, s{T1}, 4")
    a.label("L_p1c_pa")
    a(f"v_add_u32 v{P+6}, s{T1}, v{P+6}")
    a(f"s_lshl_b32 s{T1}, s{S['CB']}, 4")
    a(f"s_add_u32 s{T1}, s{T1}, s{S['RB']}")
    a(f"s_lshl_b32 s{T0}, s{T1}, 2")
    a(f"s_add_u32 s{T0}, s{T0}, s{W}")
    a(f"s_lshl_b32 s{T0}, s{T0}, 2")
    a(f"s_add_u32 s{T0}, s{T0}, {FL_CS}")
    a(f"v_mov_b32 v{V_EO+28}, s{T0}")
    a(f"s_lshl_b32 s{T1}, s{T1}, 8")
    a(f"s_lshr_b32 s{T0}, s{W}, 1")
    a(f"s_add_u32 s{T1}, s{T1}, s{T0}")
    a(f"s_lshl_b32 s{T1}, s{T1}, 2")
    a(f"s_add_u32 s{T1}, s{T1}, {WS_CS}")
    a(f"v_lshl_add_u32 v{A_}, v{P+6}, 3, s{T1}")
    for b in range(3):
        a(f"v_bfe_u32 v{P+7}, v{V_L}, {3+b}, 1")
        a(f"v_cmp_eq_u32 s[{B0+4+2*b}:{B0+5+2*b}], 1, v{P+7}")

def p1_touch(a, S):
    W, T0, T1, T2 = S["W"], S["T0"], S["T1"], S["T2"]
    sb = 64
    P = V_BF + 8
    a(f"s_lshr_b32 s{T0}, s{S['CB']}, 2")
    a(f"s_lshl_b32 s{T0}, s{T0}, 5")
    a(f"s_lshl_b32 s{T1}, s{S['RB']}, 7")
    a(f"s_add_u32 s{T0}, s{T0}, s{T1}")
    a(f"v_and_b32 v{P}, 31, v{V_L}")
    a(f"v_add_u32 v{P}, s{T0}, v{P}")
    a(f"v_mul_u32_u24 v{P}, 896, v{P}")
    a(f"v_lshrrev_b32 v{P+1}, 5, v{V_L}")
    a(f"s_lshl_b32 s{T0}, s{W}, 1")
    a(f"v_add_u32 v{P+1}, s{T0}, v{P+1}")
    a(f"v_min_u32 v{P+1}, 6, v{P+1}")
    a(f"v_lshl_add_u32 v{P}, v{P+1}, 7, v{P}")
    a(f"global_load_dword v{V_EO+30}, v{P}, s[{S['X']}:{S['X']+1}]")
    a(f"s_and_b32 s{T0}, s{S['RB']}, 7")
    a(f"v_min_u32 v{P}, 55, v{V_L}")
    a(f"v_lshl_add_u32 v{P}, v{P}, 3, s{T0}")
    a(f"s_and_b32 s{T1}, s{W}, 1")
    a(f"s_cmp_eq_u32 s{T1}, 0")
    a(f"s_cselect_b32 s{sb}, s{S['WG']}, s{S['WU']}")
    a(f"s_cselect_b32 s{sb+1}, s{S['WG']+1}, s{S['WU']+1}")
    a(f"s_add_u32 s{T0}, s{S['CB']}, 12")
    a(f"s_sub_u32 s{T2}, s{S['CB']}, 4")
    a(f"s_cmp_ge_u32 s{W}, 2")
    a(f"s_cselect_b32 s{T0}, s{T0}, s{T2}")
    a(f"s_lshl_b32 s{T0}, s{T0}, 7")
    a(f"v_mul_u32_u24 v{P+1}, 3584, v{P}")
    a(f"s_cmp_ge_u32 s{W}, 2")
    a("s_cbranch_scc1 L_p1c_pf")
    a(f"s_cmp_ge_u32 s{S['CB']}, 4")
    a("s_cbranch_scc1 L_p1c_pf")
    a(f"s_mov_b32 s{sb}, s{S['WQ']}")
    a(f"s_mov_b32 s{sb+1}, s{S['WQ']+1}")
    a(f"s_lshl_b32 s{T0}, s{S['CB']}, 1")
    a(f"s_add_u32 s{T0}, s{T0}, s{T1}")
    a(f"s_min_u32 s{T0}, s{T0}, 6")
    a(f"s_lshl_b32 s{T0}, s{T0}, 7")
    a(f"v_mul_u32_u24 v{P+1}, 896, v{P}")
    a.label("L_p1c_pf")
    a(f"v_add_u32 v{P+1}, s{T0}, v{P+1}")
    a(f"global_load_dword v{V_EO+31}, v{P+1}, s[{sb}:{sb+1}]")

def p1_rowstats2(a, S, after=0):
    W, T0, T1 = S["W"], S["T0"], S["T1"]
    R = V_AF
    vs = [V_BF, V_BF + 2]; vq = [V_BF + 1, V_BF + 3]; t = V_BF + 4
    a(f"s_mov_b32 s{T0}, 0x3f803f80")
    a(f"s_mov_b32 s{T1}, 0xffff0000")
    for r in range(4):
        a(f"v_mov_b32 v{V_BF+r}, 0")
    a(f"s_waitcnt vmcnt({after})")
    for i in range(4):
        for g in range(2):
            x = R + 4 * g + i
            a(f"v_dot2_f32_bf16 v{vq[g]}, v{x}, v{x}, v{vq[g]}")
            a(f"v_dot2_f32_bf16 v{vs[g]}, v{x}, s{T0}, v{vs[g]}")
    a("s_nop 2")
    for dpp in ("quad_perm:[1,0,3,2]", "quad_perm:[2,3,0,1]", "row_half_mirror", "row_mirror"):
        for r in range(4):
            a(f"v_add_f32_dpp v{V_BF+r}, v{V_BF+r}, v{V_BF+r} {dpp} row_mask:0xf bank_mask:0xf")
    for op in ("v_permlane16_swap_b32", "v_permlane32_swap_b32"):
        for r in range(4):
            a(f"v_mov_b32 v{t+r}, v{V_BF+r}")
        a("s_nop 1")
        for r in range(4):
            a(f"{op} v{V_BF+r}, v{t+r}")
        a("s_nop 1")
        for r in range(4):
            a(f"v_add_f32 v{V_BF+r}, v{V_BF+r}, v{t+r}")
    a(f"v_cmp_eq_u32 vcc, 1, v{V_L}")
    a("s_nop 1")
    a(f"v_cndmask_b32 v{vs[0]}, v{vs[0]}, v{vs[1]}, vcc")
    a(f"v_cndmask_b32 v{vq[0]}, v{vq[0]}, v{vq[1]}, vcc")
    s, q = vs[0], vq[0]
    k = hex(f32bits(1.0 / 448))
    a(f"v_mul_f32 v{s}, {k}, v{s}")
    a(f"v_mul_f32 v{q}, {k}, v{q}")
    a(f"v_fma_f32 v{q}, -v{s}, v{s}, v{q}")
    a(f"v_max_f32 v{q}, 0, v{q}")
    a(f"v_cvt_pk_bf16_f32 v{q}, v{q}, v{q}")
    a(f"v_and_b32 v{q}, s{T1}, v{q}")
    a(f"v_add_f32 v{q}, {hex(f32bits(1e-5))}, v{q}")
    a(f"v_cvt_pk_bf16_f32 v{q}, v{q}, v{q}")
    a(f"v_and_b32 v{q}, s{T1}, v{q}")
    a(f"v_sqrt_f32 v{q}, v{q}")
    a(f"s_lshl_b32 s{T0}, s{S['RB']}, 4")
    a(f"v_cvt_pk_bf16_f32 v{V_EO+24}, v{s}, v{q}")
    a(f"s_add_u32 s{T0}, s{T0}, s{S['CB']}")
    a(f"s_lshl_b32 s{T0}, s{T0}, 2")
    a(f"s_add_u32 s{T0}, s{T0}, s{W}")
    a(f"s_lshl_b32 s{T0}, s{T0}, 4")
    a(f"s_add_u32 s{T0}, s{T0}, {WS_ST}")
    a(f"v_lshl_add_u32 v{V_EO+26}, v{V_L}, 3, s{T0}")

def p1_csproc(a, S):
    T0, T1 = S["T0"], S["T1"]
    a("s_waitcnt vmcnt(0)")
    D = V_CD; AC = V_CD + 20; U = V_CD + 28; B0 = 64
    a(f"s_mov_b32 s{T0}, 0x00003f80")
    a(f"s_mov_b32 s{T1}, 0x3f800000")
    for q_ in range(4):
        for r in range(4):
            c0 = "0" if q_ == 0 else f"v{AC+2*r}"
            c1 = "0" if q_ == 0 else f"v{AC+2*r+1}"
            a(f"v_dot2_f32_bf16 v{AC+2*r}, v{D+4*q_+r}, s{T0}, {c0}")
            a(f"v_dot2_f32_bf16 v{AC+2*r+1}, v{D+4*q_+r}, s{T1}, {c1}")
    a("s_nop 2")
    for r in range(8):
        a(f"v_add_f32_dpp v{AC+r}, v{AC+r}, v{AC+r} row_ror:8 row_mask:0xf bank_mask:0xf")
    for r in range(4):
        a(f"v_cndmask_b32 v{AC+r}, v{AC+2*r}, v{AC+2*r+1}, s[{B0+4}:{B0+5}]")
    for n, op, mk in ((4, "v_permlane16_swap_b32", B0 + 6), (2, "v_permlane32_swap_b32", B0 + 8)):
        for r in range(n):
            a(f"v_mov_b32 v{U+r}, v{AC+r}")
        a("s_nop 1")
        for r in range(n):
            a(f"{op} v{AC+r}, v{U+r}")
        a("s_nop 1")
        for r in range(n):
            a(f"v_add_f32 v{AC+r}, v{AC+r}, v{U+r}")
        for r in range(n // 2):
            a(f"v_cndmask_b32 v{AC+r}, v{AC+2*r}, v{AC+2*r+1}, s[{mk}:{mk+1}]")
    a(f"global_store_dword v{D+16}, v{AC}, s[{S['WS']}:{S['WS']+1}] sc1")

def p1_compute_setup(a, S):
    W, T0, T1, T2 = S["W"], S["T0"], S["T1"], S["T2"]
    sb = S["sb"]
    C = dict(EPI=sb + 10, IT=sb, SL=sb + 1, FLAG=sb + 2, RT=sb + 3, FWD=sb + 4, WRAP=sb + 5, M1=sb + 6, M2=sb + 8)
    P = V_CT
    a(f"v_bfe_u32 v{P}, v{V_L}, 2, 2")
    a(f"v_lshrrev_b32 v{P+1}, 5, v{V_L}")
    a(f"v_bfe_u32 v{P+2}, v{V_L}, 4, 1")
    a(f"v_and_b32 v{P+3}, 1, v{V_L}")
    a(f"v_bfe_u32 v{P+4}, v{V_L}, 1, 1")
    a(f"v_bfe_u32 v{P+5}, v{V_L}, 3, 1")
    a(f"v_lshlrev_b32 v{P+6}, 3, v{P+4}")
    a(f"v_add_u32 v{P+6}, {P1_W}, v{P+6}")
    a(f"v_lshl_add_u32 v{P+7}, v{P}, 7, v{P+6}")
    a(f"v_lshl_add_u32 v{P+7}, v{P+1}, 11, v{P+7}")
    a(f"s_and_b32 s{T0}, s{W}, 2")
    a(f"v_lshl_add_u32 v{P+8}, v{P+2}, 10, v{P+7}")
    a(f"v_lshl_add_u32 v{P+8}, v{P+3}, 4, v{P+8}")
    a(f"v_lshl_add_u32 v{P+9}, v{P+2}, 1, v{P+5}")
    a(f"v_xor_b32 v{P+9}, s{T0}, v{P+9}")
    a(f"v_lshl_add_u32 v{V_TB}, v{P+9}, 5, v{P+8}")
    a(f"v_xor_b32 v{V_TB+1}, 32, v{V_TB}")
    a(f"v_mov_b32 v{V_TA}, v{V_TB}")
    a(f"v_mov_b32 v{V_TA+1}, v{V_TB+1}")
    a(f"s_cmp_ge_u32 s{S['CB']}, 4")
    a("s_cbranch_scc1 L_p1c_go")
    a(f"s_lshl_b32 s{T1}, s{S['CB']}, 2")
    a(f"s_add_u32 s{T1}, s{T1}, s{T0}")
    a(f"s_cmp_eq_u32 s{T1}, 14")
    a("s_cbranch_scc1 L_p1c_kvs")
    a(f"s_lshl_b32 s{T1}, s{T0}, 9")
    a(f"v_add_u32 v{P+8}, s{T1}, v{P+7}")
    a(f"v_lshl_add_u32 v{P+8}, v{P+2}, 4, v{P+8}")
    a(f"v_lshl_add_u32 v{P+8}, v{P+3}, 5, v{P+8}")
    a(f"v_lshl_add_u32 v{V_TA}, v{P+5}, 6, v{P+8}")
    a(f"v_xor_b32 v{V_TA+1}, 64, v{V_TA}")
    a("s_branch L_p1c_go")
    a.label("L_p1c_kvs")
    a(f"v_lshl_add_u32 v{P+8}, v{P}, 6, v{P+6}")
    a(f"v_lshl_add_u32 v{P+8}, v{P+1}, 9, v{P+8}")
    a(f"v_lshl_add_u32 v{P+8}, v{P+3}, 5, v{P+8}")
    a(f"v_lshl_add_u32 v{P+8}, v{P+2}, 4, v{P+8}")
    a(f"v_and_b32 v{P+9}, 19, v{V_L}")
    a(f"v_cmp_eq_u32 vcc, 17, v{P+9}")
    a(f"v_add_u32 v{P+9}, 1024, v{P+8}")
    a(f"v_add_u32 v{P+10}, 1032, v{P+8}")
    a(f"v_cndmask_b32 v{V_TA}, v{P+9}, v{P+10}, vcc")
    a(f"v_add_u32 v{V_TA+1}, 2048, v{V_TA}")
    a.label("L_p1c_go")
    a(f"v_and_b32 v{P}, 31, v{V_L}")
    a(f"v_lshlrev_b32 v{P}, 7, v{P}")
    a(f"s_and_b32 s{T1}, s{W}, 1")
    a(f"s_lshl_b32 s{T1}, s{T1}, 13")
    a(f"v_add_u32 v{P}, s{T1}, v{P}")
    a(f"v_bfe_u32 v{P+2}, v{V_L}, 1, 3")
    a(f"v_xor_b32 v{P+1}, v{P+1}, v{P+2}")
    for i in range(4):
        a(f"v_xor_b32 v{P+2}, {2*i}, v{P+1}")
        a(f"v_lshl_add_u32 v{V_XB+i}, v{P+2}, 4, v{P}")
    a(f"s_lshl_b32 s{C['RT']}, s{S['RB']}, 2")
    a(f"s_and_b32 s{T1}, s{W}, 1")
    a(f"s_lshl_b32 s{T1}, s{T1}, 1")
    a(f"s_add_u32 s{C['RT']}, s{C['RT']}, s{T1}")
    a(f"v_lshlrev_b32 v{P}, 4, v{V_L}")
    a(f"v_and_b32 v{P+4}, 31, v{V_L}")
    a(f"v_lshrrev_b32 v{P+5}, 5, v{V_L}")
    a(f"v_lshlrev_b32 v{P+6}, 4, v{P+4}")
    a(f"v_lshl_add_u32 v{P+6}, v{P+5}, 10, v{P+6}")
    a(f"s_lshl_b32 s{T0}, s{C['RT']}, 8")
    a(f"s_add_u32 s{T0}, s{T0}, {WS_ST}")
    a(f"v_lshl_add_u32 v{P+7}, v{P+4}, 3, s{T0}")
    a(f"s_and_b32 s{T0}, s{W}, 2")
    a(f"s_lshl_b32 s{T0}, s{T0}, 8")
    a(f"s_lshl_b32 s{T1}, s{S['CB']}, 14")
    a(f"s_add_u32 s{T1}, s{T1}, s{T0}")
    a(f"s_add_u32 s{T1}, s{T1}, {WS_CS + 4096}")
    a(f"v_lshl_add_u32 v{V_GA}, v{V_L}, 3, s{T1}")
    a(f"v_add_u32 v{V_GA+1}, 8192, v{V_GA}")
    a(f"s_lshl_b32 s{T1}, s{S['CB']}, 8")
    a(f"s_add_u32 s{T1}, s{T1}, {FL_CS}")
    a(f"v_lshl_add_u32 v{V_GA+2}, v{V_L}, 2, s{T1}")
    a(f"v_mov_b32 v{P+12}, {SCRN}")
    a(f"s_mov_b32 s{C['FWD']}, 16384")
    a(f"s_mov_b32 s{C['WRAP']}, {(-2*16384) & 0xffffffff}")
    a(f"s_mov_b32 s{C['SL']}, 0")
    a(f"s_mov_b32 s{C['FLAG']}, 0")
    a(f"s_mov_b32 s{C['M1']}, 0")
    a(f"s_cmp_lt_u32 s{S['CB']}, 4")
    a(f"s_cselect_b32 s{C['EPI']}, 99, {EPI_AT}")
    for r in range(64):
        a(f"v_mov_b32 v{V_ACC+r}, 0")
    return C

POLL_AT = int(os.environ.get("POLL_AT", "4"))
EPI_AT = int(os.environ.get("EPI_AT", "2"))
FAST_AT = int(os.environ.get("FAST_AT", "3"))
FLAG_LAG = int(os.environ.get("FLAG_LAG", "1"))

def p1_compute(a, S, C, sc=" sc1", peek=None, pre=None, mid=None):
    W, T0, T1, T2 = S["W"], S["T0"], S["T1"], S["T2"]
    WS, NONCE = S["WS"], S["NONCE"]
    P = V_CT
    def acc(t, b, ps=0): return V_ACC + 64 * ps + 16 * (t + 2 * b)
    def reads(buf, j, kv=False):
        out = []
        for b in range(2):
            out.append(f"ds_read_b128 {vr(V_BF+8*buf+4*b,4)}, v{V_XB+j} offset:{4096*b}")
        for t in range(2):
            for hf in range(2):
                out.append(f"ds_read_b64_tr_b16 {vr(V_AF+8*buf+4*t+2*hf,2)}, v{V_TA+t} offset:{j*4096 + hf*(256 if kv else 512)}")
        return out
    def poll_ins():
        return [f"global_load_dwordx2 {vr(P+8,2)}, v{P+7}, s[{WS}:{WS+1}] sc1",
                f"global_load_dwordx2 {vr(P+10,2)}, v{P+7}, s[{WS}:{WS+1}] offset:256 sc1",
                f"global_load_dword v{V_GA+3}, v{V_GA+2}, s[{WS}:{WS+1}] sc1"]
    def gather_ins():
        return [f"global_load_dwordx2 {vr(V_G+2*q,2)}, v{V_GA+(q>>3)}, s[{WS}:{WS+1}] offset:{1024*(q&7) - 4096}" for q in range(16)]
    def flag(addr_s):
        a("s_waitcnt vmcnt(0)")
        a(f"v_mov_b32 v{P+1}, s{addr_s}")
        a(f"v_mov_b32 v{P+2}, s{NONCE}")
        a("s_mov_b64 exec, 1")
        a(f"global_store_dword v{P+1}, v{P+2}, s[{WS}:{WS+1}] sc1")
        a("s_mov_b64 exec, -1")
    a("s_waitcnt lgkmcnt(0)")
    a("s_barrier")
    stamp(a, 1)
    def loop(tag, kv, ps):
        a(f"s_mov_b32 s{C['IT']}, 7")
        a.label(f"L_p1c_loop{tag}")
        for j in range(4):
            cur, nxt = j & 1, (j & 1) ^ 1
            a("s_waitcnt lgkmcnt(0)")
            if j == 3:
                a("s_barrier")
            jj = (j + 1) & 3
            rd = reads(nxt, jj, kv)
            fills = [rd[0:3], rd[3:6], [], []]
            fills[2] += [f"v_add_u32 v{V_XB+jj}, s{C['FWD']}, v{V_XB+jj}"]
            if ps == 0 and j < 2:
                for kk in (2, 3):
                    z = (2 * j + kk - 2)
                    fills[kk] += [f"s_set_gpr_idx_on s{C['M1']}, gpr_idx(DST)"] + \
                                 [f"v_mov_b32 v{V_ACC+64+[0,3,6,8][z]+i}, 0" for i in range(3 if z < 2 else 2)] + ["s_set_gpr_idx_off"]
                if j == 1:
                    fills[3] += [f"s_add_u32 s{C['M1']}, s{C['M1']}, 9"]
            if j == 2:
                fills[2] += [f"s_add_u32 s{C['SL']}, s{C['SL']}, 1",
                             f"s_cmp_eq_u32 s{C['SL']}, 3",
                             f"s_cselect_b32 s{T0}, s{C['WRAP']}, s{C['FWD']}",
                             f"s_cselect_b32 s{C['SL']}, 0, s{C['SL']}"]
                fills[3] += [f"v_add_u32 v{V_TA}, s{T0}, v{V_TA}", f"v_add_u32 v{V_TA+1}, s{T0}, v{V_TA+1}"]
            k = 0
            for b in range(2):
                for t in range(2):
                    A_, B_ = vr(V_AF + 8 * cur + 4 * t, 4), vr(V_BF + 8 * cur + 4 * b, 4)
                    if kv and t == 1:
                        A_, B_ = B_, A_
                    a(f"{MFMA} {vr(acc(t,b,ps),16)}, {A_}, {B_}, {vr(acc(t,b,ps),16)}")
                    for ins in fills[k]:
                        a(ins)
                    k += 1
        if ps == 0:
            a(f"s_getpc_b64 s[{C['M2']}:{C['M2']+1}]")
            a("s_branch L_p1c_hook")
        if ps == 1:
            a(f"s_cmp_eq_u32 s{C['IT']}, {EPI_AT+4}")
            a("s_cbranch_scc1 L_p1c_bpoll")
            a(f"s_cmp_eq_u32 s{C['IT']}, {EPI_AT+2}")
            a("s_cbranch_scc1 L_p1c_bchk")
            a(f"s_cmp_eq_u32 s{C['IT']}, {EPI_AT}")
            a("s_cbranch_scc1 L_p1c_bepi")
            a(f"s_cmp_eq_u32 s{C['FLAG']}, 0")
            a(f"s_cbranch_scc1 L_p1c_back")
            if S.get("HSTAMP"): stamp(a, 1)
            a("s_waitcnt vmcnt(0)")
            if S.get("HSTAMP"): stamp(a, 2)
            a(f"v_lshl_add_u32 v{P+1}, v{V_L}, 8, s{C['FLAG']}")
            a(f"v_mov_b32 v{P+2}, s{NONCE}")
            a(f"s_mov_b32 exec_lo, s{C['M1']}")
            a("s_mov_b32 exec_hi, 0")
            a(f"global_store_dword v{P+1}, v{P+2}, s[{WS}:{WS+1}] sc1")
            a("s_mov_b64 exec, -1")
            a(f"s_mov_b32 s{C['FLAG']}, 0")
            a.label("L_p1c_back")
            if peek: peek()
        a(f"s_sub_u32 s{C['IT']}, s{C['IT']}, 1")
        a(f"s_cmp_lg_u32 s{C['IT']}, 0")
        a(f"s_cbranch_scc1 L_p1c_loop{tag}")
    def pass_entry(kv):
        for ins in reads(0, 0, kv):
            a(ins)
        a(f"v_add_u32 v{V_XB}, s{C['FWD']}, v{V_XB}")
    a(f"s_lshl_b32 s{T1}, s{S['CB']}, 2")
    a(f"s_and_b32 s{T0}, s{W}, 2")
    a(f"s_add_u32 s{T1}, s{T1}, s{T0}")
    a(f"s_cmp_eq_u32 s{T1}, 14")
    a("s_cbranch_scc0 L_p1c_passa")
    pass_entry(True)
    loop("v", True, 0)
    a("s_branch L_p1c_mid")
    a.label("L_p1c_passa")
    pass_entry(False)
    loop("a", False, 0)
    a.label("L_p1c_mid")
    stamp(a, 2)
    a("s_waitcnt lgkmcnt(0)")
    a(f"v_add_u32 v{V_TA}, 16384, v{V_TB}")
    a(f"v_add_u32 v{V_TA+1}, 16384, v{V_TB+1}")
    for i in range(4):
        a(f"v_add_u32 v{V_XB+i}, {(-(8 if i == 0 else 7)*16384) & 0xffffffff}, v{V_XB+i}")
    pass_entry(False)
    if mid: mid()
    a(f"s_mov_b32 s{C['IT']}, 8")
    a(f"s_cmp_lt_u32 s{S['CB']}, 4")
    a("s_cbranch_scc1 L_p1c_epia")
    loop("b", False, 1)
    if pre:
        a("s_waitcnt lgkmcnt(0)")
        pre()
    if S.get("HSTAMP"): stamp(a, 5)
    a(f"s_add_u32 s{T1}, s{S['CB']}, 12")
    def corr(kv, ps):
        for b in range(2):
            for t in range(2):
                A_, B_ = vr(V_CS + 8 * ps + 4 * t, 4), vr(V_MB + 4 * b, 4)
                if kv and t == 1:
                    A_, B_ = B_, A_
                a(f"{MFMA} {vr(acc(t,b,ps),16)}, {A_}, {B_}, {vr(acc(t,b,ps),16)}")
    def gu_epilogue(ps):
        corr(False, ps)
        a(f"s_lshl_b32 s{T1}, s{T1}, 2")
        a(f"s_and_b32 s{T0}, s{W}, 2")
        a(f"s_add_u32 s{T1}, s{T1}, s{T0}")
        a(f"s_mul_i32 s{T0}, s{C['RT']}, 112")
        a(f"s_add_u32 s{T0}, s{T0}, s{T1}")
        a(f"s_lshl_b32 s{T0}, s{T0}, 10")
        a(f"s_add_u32 s{T0}, s{T0}, {WS_H}")
        a(f"v_add_u32 v{P+1}, s{T0}, v{P}")
        a(f"v_add_u32 v{P+2}, {112*1024}, v{P+1}")
        a("s_nop 3")
        for b in range(2):
            for t in range(2):
                c = acc(t, b, ps); o = V_EO + 4 * (t + 2 * b)
                for r in range(8):
                    a(f"v_max_f32 v{c+r}, 0, v{c+r}")
                for r in range(8):
                    a(f"v_mul_f32 v{c+r}, v{c+r}, v{c+8+r}")
                for r in range(4):
                    a(f"v_cvt_pk_bf16_f32 v{o+r}, v{c+2*r}, v{c+2*r+1}")
                a(f"global_store_dwordx4 v{P+1+b}, {vr(o,4)}, s[{WS}:{WS+1}] offset:{1024*t}{sc}")
    gu_epilogue(1)
    a("s_branch L_p1c_done")
    RET = f"s_setpc_b64 s[{C['M2']}:{C['M2']+1}]"
    def fast_ins():
        return poll_ins()[:2] + [f"global_load_dwordx2 {vr(V_G+2*q,2)}, v{P+14+(q>>3)}, s[{WS}:{WS+1}] offset:{1024*(q&7) - 4096} sc1" for q in range(16)]
    a.label("L_p1c_hook")
    a(f"s_add_u32 s{C['M2']}, s{C['M2']}, 4")
    a(f"s_addc_u32 s{C['M2']+1}, s{C['M2']+1}, 0")
    a(f"s_cmp_lg_u32 s{C['IT']}, 6")
    a(f"s_cbranch_scc1 L_p1c_h5")
    a(f"ds_read_b32 v{P+13}, v{P+12}")
    p1_csproc(a, S)
    a("s_waitcnt lgkmcnt(0)")
    a(f"v_mov_b32 v{V_EO+25}, v{P+13}")
    a(f"v_readfirstlane_b32 s{NONCE}, v{P+13}")
    a("s_mov_b64 exec, 3")
    a(f"global_store_dwordx2 v{V_EO+26}, {vr(V_EO+24,2)}, s[{WS}:{WS+1}] sc1")
    a("s_mov_b64 exec, -1")
    a(f"s_cmp_eq_u32 s66, 0")
    a(f"s_cbranch_scc1 L_p1c_h3")
    a(f"v_mov_b32 v{V_CD+21}, v{P+13}")
    a(f"v_add_u32 v{V_CD+16}, {WS_CQ - WS_CS}, v{V_CD+16}")
    a(f"global_store_dwordx2 v{V_CD+16}, {vr(V_CD+20,2)}, s[{WS}:{WS+1}] sc1")
    a(RET)
    a.label("L_p1c_h5")
    a(f"s_cmp_lg_u32 s{C['IT']}, 4")
    a(f"s_cbranch_scc1 L_p1c_h4")
    a("s_waitcnt vmcnt(0)")
    a("s_mov_b64 exec, 1")
    a(f"global_store_dword v{V_EO+28}, v{P+13}, s[{WS}:{WS+1}] sc1")
    a("s_mov_b64 exec, -1")
    a(RET)
    a.label("L_p1c_h4")
    a(f"s_cmp_lg_u32 s{C['IT']}, {FAST_AT}")
    a(f"s_cbranch_scc1 L_p1c_h3")
    a(f"s_cmp_ge_u32 s{S['CB']}, 4")
    a(f"s_cbranch_scc1 L_p1c_h3")
    a(f"v_add_u32 v{P+14}, {WS_CQ - WS_CS}, v{V_GA}")
    a(f"v_add_u32 v{P+15}, {WS_CQ - WS_CS}, v{V_GA+1}")
    for ins in fast_ins(): a(ins)
    a.label("L_p1c_h3")
    a(RET)
    def check(tag, tags, again):
        a(f"s_mov_b32 s{T2}, {SPIN_MAX}")
        a.label(f"L_p1c_ck{tag}")
        a("s_waitcnt vmcnt(0)")
        a(f"v_xor_b32 v{P+1}, s{NONCE}, v{tags[0]}")
        for t_ in tags[1:]:
            a(f"v_xor_b32 v{P+2}, s{NONCE}, v{t_}")
            a(f"v_or_b32 v{P+1}, v{P+1}, v{P+2}")
        a(f"v_cmp_ne_u32 vcc, 0, v{P+1}")
        a(f"s_sub_u32 s{T2}, s{T2}, 1")
        a(f"s_cmp_eq_u32 s{T2}, 0")
        a(f"s_cbranch_scc1 L_p1c_ok{tag}")
        a(f"s_cbranch_vccz L_p1c_ok{tag}")
        a("s_sleep 4")
        for ins in again: a(ins)
        a(f"s_branch L_p1c_ck{tag}")
        a.label(f"L_p1c_ok{tag}")
    def csum(col):
        a(f"v_add_f32 v{P+14+col}, v{V_G+col}, v{V_G+2+col}")
        a(f"v_add_f32 v{P+3}, v{V_G+4+col}, v{V_G+6+col}")
        for q in range(4, 16, 2):
            a(f"v_add_f32 v{P+14+col}, v{P+14+col}, v{V_G+2*q+col}")
            a(f"v_add_f32 v{P+3}, v{P+3}, v{V_G+2*q+2+col}")
        a(f"v_add_f32 v{P+14+col}, v{P+14+col}, v{P+3}")
    def afrag(ps):
        c = V_CS + 8 * ps; s_ = P + 14 + ps
        a(f"v_and_b32 v{c+1}, 0xffff0000, v{s_}")
        a(f"v_sub_f32 v{c+2}, v{s_}, v{c+1}")
        a(f"v_and_b32 v{c+3}, 0xffff0000, v{c+2}")
        a(f"v_sub_f32 v{c+2}, v{c+2}, v{c+3}")
        a(f"v_lshrrev_b32 v{c}, 16, v{c+1}")
        a(f"v_or_b32 v{c}, v{c}, v{c+3}")
        a(f"v_lshrrev_b32 v{c+1}, 16, v{c+2}")
        for r in (4, 5, 2, 3, 6, 7):
            a(f"v_mov_b32 v{c+r}, 0")
        a(f"v_permlane32_swap_b32 v{c}, v{c+4}")
        a(f"v_permlane32_swap_b32 v{c+1}, v{c+5}")
    a.label("L_p1c_bpoll")
    for ins in poll_ins(): a(ins)
    a("s_branch L_p1c_back")
    a.label("L_p1c_bchk")
    check("b", [P + 9, P + 11, V_GA + 3], poll_ins())
    for ins in gather_ins(): a(ins)
    a("s_branch L_p1c_back")
    a.label("L_p1c_bepi")
    a("s_waitcnt vmcnt(0)")
    csum(1)
    a(f"s_cmp_ge_u32 s{S['CB']}, 4")
    a("s_cbranch_scc1 L_p1c_epia2")
    afrag(1)
    a("s_branch L_p1c_back")
    a.label("L_p1c_epia")
    check("a", [V_G + 2 * q + 1 for q in range(16)] + [P + 9, P + 11], fast_ins())
    a.label("L_p1c_epia2")
    stamp(a, 3)
    csum(0)
    afrag(0)
    afrag(1)
    for b in range(2):
        m = V_MB + 4 * b
        a(f"v_and_b32 v{m+1}, 0xffff, v{P+8+2*b}")
        a(f"v_xor_b32 v{m+1}, 0x8000, v{m+1}")
        a(f"v_lshl_or_b32 v{m}, v{m+1}, 16, v{m+1}")
        a(f"v_mov_b32 v{m+2}, 0")
        a(f"v_mov_b32 v{m+3}, 0")
        a(f"v_and_b32 v{V_SR+b}, 0xffff0000, v{P+8+2*b}")
        a(f"v_rcp_f32 v{V_SR+b}, v{V_SR+b}")
    a("s_mov_b32 exec_lo, 0")
    for b in range(2):
        a(f"v_mov_b32 v{V_MB+4*b}, 0")
        a(f"v_mov_b32 v{V_MB+4*b+1}, 0")
    a("s_mov_b64 exec, -1")
    a(f"s_cmp_lt_u32 s{S['CB']}, 4")
    a("s_cbranch_scc1 L_p1c_epiq")
    a(f"s_sub_u32 s{T1}, s{S['CB']}, 4")
    gu_epilogue(0)
    if S.get("HSTAMP"): stamp(a, 4)
    a("s_branch L_p1c_back")
    a.label("L_p1c_epiq")
    a(f"s_cmp_lg_u32 s{S['CB']}, 3")
    a("s_cbranch_scc1 L_p1c_epiq2")
    a(f"s_cmp_ge_u32 s{W}, 2")
    a("s_cbranch_scc1 L_p1c_epikv")
    a.label("L_p1c_epiq2")
    corr(False, 0)
    a(f"s_mul_i32 s{T0}, s{C['RT']}, {56*512}")
    a(f"s_lshl_b32 s{T1}, s{S['CB']}, 13")
    a(f"s_add_u32 s{T0}, s{T0}, s{T1}")
    a(f"s_and_b32 s{T1}, s{W}, 2")
    a(f"s_lshl_b32 s{T1}, s{T1}, 11")
    a(f"s_add_u32 s{T0}, s{T0}, s{T1}")
    a(f"s_add_u32 s{T0}, s{T0}, {WS_Q}")
    a(f"v_add_u32 v{P+1}, s{T0}, v{P+6}")
    a(f"v_add_u32 v{P+2}, {56*512}, v{P+1}")
    for b in range(2):
        a(f"v_mul_f32 v{P+8+b}, {hex(f32bits(QSCALE))}, v{V_SR+b}")
    a("s_nop 1")
    for b in range(2):
        for t in range(2):
            c = acc(t, b); o = V_EO + 8 * (t + 2 * b)
            for r in range(16):
                a(f"v_mul_f32 v{c+r}, v{c+r}, v{P+8+b}")
            for r in range(8):
                a(f"v_cvt_pk_bf16_f32 v{o+r}, v{c+2*r}, v{c+2*r+1}")
            a(f"global_store_dwordx4 v{P+1+b}, {vr(o,4)}, s[{WS}:{WS+1}] offset:{2048*t}{sc}")
            a(f"global_store_dwordx4 v{P+1+b}, {vr(o+4,4)}, s[{WS}:{WS+1}] offset:{2048*t+512}{sc}")
    a(f"s_lshl_b32 s{T0}, s{C['RT']}, 7")
    a(f"s_lshl_b32 s{T1}, s{S['CB']}, 3")
    a(f"s_add_u32 s{T0}, s{T0}, s{T1}")
    a(f"s_and_b32 s{T1}, s{W}, 2")
    a(f"s_lshl_b32 s{T1}, s{T1}, 1")
    a(f"s_add_u32 s{T0}, s{T0}, s{T1}")
    a(f"s_add_u32 s{C['FLAG']}, s{T0}, {FL_Q}")
    a(f"s_mov_b32 s{C['M1']}, 1")
    if S.get("HSTAMP"): stamp(a, 4)
    a("s_branch L_p1c_back")
    a.label("L_p1c_epikv")
    M1, M2 = C["M1"], C["M2"]
    corr(True, 0)
    a(f"v_cmp_eq_u32 s[{M1}:{M1+1}], 1, v{P+5}")
    a(f"v_lshlrev_b32 v{P+14}, 4, v{P+5}")
    a(f"s_mul_i32 s{T0}, s{C['RT']}, {KVT}")
    a(f"s_add_u32 s{T0}, s{T0}, {WS_KV + 2048}")
    a(f"v_mov_b32 v{P+8}, 0x3f803f80")
    a(f"v_mov_b32 v{P+9}, 0x00003f80")
    a(f"v_mov_b32 v{P+10}, 0")
    a(f"v_cmp_eq_u32 vcc, 28, v{P+4}")
    a(f"v_cmp_le_u32 s[{M2}:{M2+1}], 28, v{P+4}")
    a("s_nop 0")
    a(f"v_cndmask_b32 v{P+13}, v{P+10}, v{P+8}, vcc")
    for b in range(2):
        a(f"v_add_u32 v{P+1}, s{T0}, v{P+6}")
        a(f"v_add_u32 v{P+2}, s{T0}, v{P}")
        c = acc(0, b); e = V_EO + 10 * b; o = e + 2
        for r in range(16):
            a(f"v_mul_f32 v{c+r}, v{c+r}, v{V_SR+b}")
        for r in range(8):
            a(f"v_cvt_pk_bf16_f32 v{o+r}, v{c+2*r}, v{c+2*r+1}")
        a(f"v_cndmask_b32 v{o+6}, v{o+6}, v{P+8}, s[{M1}:{M1+1}]")
        a(f"v_cndmask_b32 v{o+7}, v{o+7}, v{P+9}, s[{M1}:{M1+1}]")
        a(f"v_mov_b32 v{e}, v{o+6}")
        a(f"v_mov_b32 v{e+1}, v{o+7}")
        a(f"v_mov_b32 v{P+3}, v{o+6}")
        a(f"v_mov_b32 v{P+11}, v{o+7}")
        a(f"global_store_dwordx4 v{P+1}, {vr(o,4)}, s[{WS}:{WS+1}] offset:-2048{sc}")
        a(f"global_store_dwordx4 v{P+1}, {vr(o+4,4)}, s[{WS}:{WS+1}] offset:-1536{sc}")
        a(f"v_permlane32_swap_b32 v{P+3}, v{e}")
        a(f"v_permlane32_swap_b32 v{P+11}, v{e+1}")
        a("s_nop 1")
        a(f"v_cndmask_b32 v{e}, v{e}, v{P+3}, s[{M1}:{M1+1}]")
        a(f"v_cndmask_b32 v{e+1}, v{e+1}, v{P+11}, s[{M1}:{M1+1}]")
        a(f"global_store_dwordx4 v{P+1}, {vr(e,4)}, s[{WS}:{WS+1}]{sc}")
        a(f"global_store_dwordx4 v{P+1}, {vr(e+4,4)}, s[{WS}:{WS+1}] offset:512{sc}")
        c = acc(1, b); o = V_EO + 20
        for h in range(2):
            for r0 in (0, 8):
                for r in range(r0, r0 + 8):
                    a(f"v_readlane_b32 s{64+r-r0}, v{V_SR+b}, {(r & 3) + 8 * (r >> 2) + 4 * h}")
                a("s_mov_b32 exec_hi, 0" if h == 0 else "s_mov_b32 exec_lo, 0")
                a("s_nop 0")
                for r in range(r0, r0 + 8):
                    a(f"v_mul_f32 v{c+r}, s{64+r-r0}, v{c+r}")
                a("s_mov_b64 exec, -1")
        for r in range(8):
            a(f"v_cvt_pk_bf16_f32 v{o+r}, v{c+2*r}, v{c+2*r+1}")
        for r in range(8):
            a(f"v_cndmask_b32 v{o+r}, v{o+r}, v{P+13}, s[{M2}:{M2+1}]")
        a(f"global_store_dwordx4 v{P+2}, {vr(o,4)}, s[{WS}:{WS+1}] offset:2048{sc}")
        a(f"global_store_dwordx4 v{P+2}, {vr(o+4,4)}, s[{WS}:{WS+1}] offset:3072{sc}")
        a(f"s_add_u32 s{T0}, s{T0}, {KVT}")
    a(f"s_lshl_b32 s{T0}, s{C['RT']}, 1")
    a(f"s_add_u32 s{C['FLAG']}, s{T0}, {FL_KV}")
    a(f"s_mov_b32 s{C['M1']}, -1")
    if S.get("HSTAMP"): stamp(a, 4)
    a("s_branch L_p1c_back")
    a.label("L_p1c_done")
    a(f"s_lshl_b32 s{T0}, s{C['RT']}, 6")
    a(f"s_lshl_b32 s{T1}, s{S['CB']}, 3")
    a(f"s_add_u32 s{T0}, s{T0}, s{T1}")
    a(f"s_and_b32 s{T1}, s{W}, 2")
    a(f"s_lshl_b32 s{T1}, s{T1}, 1")
    a(f"s_add_u32 s{T0}, s{T0}, s{T1}")
    a(f"s_add_u32 s{T0}, s{T0}, {FL_H}")
    return flag


def k1n(a):
    name = "k1_kernel"
    kernel_head(a, name)
    S = dict(X=4, WQ=6, WK=8, WV=10, WG=12, WU=14, DBG=16, WS=18, RB=20, CB=21, W=22, T0=23, T1=24, T2=25, T3=26,
             NONCE=27, sb=32, HSTAMP=1)
    a("s_cmp_ge_u32 s2, 256")
    a("s_cbranch_scc1 L_k1_end")
    stamp(a, 0)
    a(f"s_load_dwordx4 s[4:7], s[0:1], 0")
    a(f"s_load_dwordx4 s[8:11], s[0:1], 16")
    a(f"s_load_dwordx4 s[12:15], s[0:1], 48")
    a(f"s_load_dwordx4 s[16:19], s[0:1], 80")
    a("v_lshrrev_b32 v1, 6, v0")
    p1_ids(a, S["RB"], S["CB"], S["T0"], S["T1"], S["T2"])
    a(f"v_readfirstlane_b32 s{S['W']}, v1")
    a(f"v_and_b32 v{V_L}, 63, v0")
    a("s_nop 3")
    a(f"s_cmp_ge_u32 s{S['W']}, 4")
    a("s_cbranch_scc1 L_k1_helper")
    p1_rowstats(a, S)
    C = p1_compute_setup(a, S)
    p1_rowstats2(a, S)
    flag = p1_compute(a, S, C)
    stamp(a, 6)
    flag(S["T0"])
    stamp_flush(a, 7, "k1a")
    a("s_endpgm")
    a.label("L_k1_helper")
    p1_helper(a, S)
    stamp_flush(a, 8, "k1h", kidx=4, tid=256)
    a.label("L_k1_end")
    a("s_endpgm")
    kernel_desc(a, name, 256, 0)
    return (name, 256, 512, P1_LDS)
```

```python
from gen import *
import p1
from p1 import WS_ST, FL_KV, FL_Q, FL_H, FL_O, SPIN_MAX

P1S = int(os.environ.get("P1STAMP", "0"))
_stamp = stamp
def stamp(a, i):
    if P1S and i not in (0, 7): return
    _stamp(a, i)
L_RING = 0
L_RED  = 65536
L_ATT  = 114688

def poll(a, tag, vaddr, vtmp, S, s_cnt, first_issued=False, sleep=1):
    WS = S["WS"]
    a(f"s_mov_b32 s{s_cnt}, {SPIN_MAX}")
    if not first_issued:
        a(f"global_load_dword v{vtmp}, v{vaddr}, s[{WS}:{WS+1}] sc1")
    a.label(f"L_poll{tag}")
    a("s_waitcnt vmcnt(0)")
    a(f"v_cmp_ne_u32 vcc, s{S['NONCE']}, v{vtmp}")
    a(f"s_sub_u32 s{s_cnt}, s{s_cnt}, 1")
    a(f"s_cmp_eq_u32 s{s_cnt}, 0")
    a(f"s_cbranch_scc1 L_polld{tag}")
    a(f"s_cbranch_vccz L_polld{tag}")
    if sleep:
        a(f"s_sleep {sleep}")
    a(f"global_load_dword v{vtmp}, v{vaddr}, s[{WS}:{WS+1}] sc1")
    a(f"s_branch L_poll{tag}")
    a.label(f"L_polld{tag}")

L_RELAY = L_RED

def relay_set(a, S, idx, v0_, v1_):
    a(f"v_mov_b32 v{v0_}, {L_RELAY + 4*idx}")
    a(f"v_mov_b32 v{v1_}, 1")
    a(f"ds_write_b32 v{v0_}, v{v1_}")

def relay_wait(a, tag, S, idx, v0_, v1_, s_cnt, s_t):
    a(f"v_mov_b32 v{v0_}, {L_RELAY + 4*idx}")
    a(f"s_mov_b32 s{s_cnt}, {SPIN_MAX * 16}")
    a.label(f"L_rw{tag}")
    a(f"ds_read_b32 v{v1_}, v{v0_}")
    a("s_waitcnt lgkmcnt(0)")
    a(f"v_readfirstlane_b32 s{s_t}, v{v1_}")
    a(f"s_sub_u32 s{s_cnt}, s{s_cnt}, 1")
    a(f"s_cmp_eq_u32 s{s_cnt}, 0")
    a(f"s_cbranch_scc1 L_rwd{tag}")
    a(f"s_cmp_lg_u32 s{s_t}, 0")
    a(f"s_cbranch_scc1 L_rwd{tag}")
    a("s_sleep 1")
    a(f"s_branch L_rw{tag}")
    a.label(f"L_rwd{tag}")

def put_flag(a, S, s_addr, v0_, v1_):
    WS = S["WS"]
    a(f"v_mov_b32 v{v0_}, s{s_addr}")
    a(f"v_mov_b32 v{v1_}, s{S['NONCE']}")
    a("s_mov_b64 exec, 1")
    a(f"global_store_dword v{v0_}, v{v1_}, s[{WS}:{WS+1}] sc1")
    a("s_mov_b64 exec, -1")

AT_VA = 248

def attention(a, S, s_hflag, part):
    S_W, S_WS = S["W"], S["WS"]
    sb = S["sb"] + 12
    V_LANE, V_KO, V_VO, V_QA = 1, AT_VA, AT_VA + 1, AT_VA + 2
    V_T = 4; V_M = 12; V_S = 16; V_P = 48; V_Q = 64; V_KV = 96; V_O = 160
    S_SRD = sb
    S_OFF, S_IT, S_PASS, S_T0, S_T1, S_PAR = sb + 4, sb + 5, sb + 6, sb + 7, sb + 8, sb + 9
    S_EX = sb + 10
    S_RT, S_HG, S_PRE = sb + 12, sb + 13, sb + 14
    def Qf(g, t): return vr(V_Q + 8 * g + 4 * t, 4)
    def Kf(b, t): return vr(V_KV + 16 * b + 4 * t, 4)
    def Vf(b, t): return vr(V_KV + 16 * b + 8 + 4 * t, 4)
    def O(g): return vr(V_O + 16 * g, 16)
    def Sx(i): return vr(V_S + 16 * i, 16)
    def load_k(b):
        for t in range(2):
            a(f"buffer_load_dwordx4 {Kf(b,t)}, v{V_KO}, s[{S_SRD}:{S_SRD+3}], s{S_OFF} offen offset:{1024*t}")
    def load_v(b):
        for t in range(2):
            a(f"buffer_load_dwordx4 {Vf(b,t)}, v{V_VO}, s[{S_SRD}:{S_SRD+3}], s{S_OFF} offen offset:{1024*t}")
    def pre_loads():
        for g in range(4):
            for t in range(2):
                a(f"global_load_dwordx4 {Qf(g,t)}, v{V_QA+g}, s[{S_WS}:{S_WS+1}] offset:{1024*t}")
        a(f"s_mov_b32 s{S_OFF}, 0")
        for b in range(2):
            load_k(b); load_v(b)
            a(f"s_add_u32 s{S_OFF}, s{S_OFF}, {KVT}")
        a(f"s_mov_b32 s{S_PRE}, 1")
    if part == "setup":
        a(f"s_lshr_b32 s{S_RT}, s2, 2")
        a(f"s_and_b32 s{S_HG}, s2, 3")
        a(f"s_and_b32 s{S_PAR}, s{S_HG}, 1")
        a(f"s_mul_i32 s{S_T0}, s{S_W}, {16*KVT}")
        a(f"s_add_u32 s{S_T0}, s{S_T0}, {WS_KV}")
        a(f"s_add_u32 s{S_SRD}, s{S_WS}, s{S_T0}")
        a(f"s_addc_u32 s{S_SRD+1}, s{S_WS+1}, 0")
        a(f"s_and_b32 s{S_SRD+1}, s{S_SRD+1}, 0xffff")
        a(f"s_mov_b32 s{S_SRD+2}, {16*KVT}")
        a(f"s_mov_b32 s{S_SRD+3}, 0x00020000")
        a(f"v_lshlrev_b32 v{V_KO}, 4, v{V_LANE}")
        a(f"v_add_u32 v{V_VO}, 4096, v{V_KO}")
        a(f"s_lshr_b32 s{S_T0}, s{S_HG}, 1")
        a(f"s_mul_i32 s{S_T0}, s{S_T0}, 28")
        a(f"s_mul_i32 s{S_T1}, s{S_PAR}, 3")
        a(f"s_add_u32 s{S_T0}, s{S_T0}, s{S_T1}")
        a(f"s_mul_i32 s{S_T1}, s{S_RT}, 56")
        a(f"s_add_u32 s{S_T0}, s{S_T0}, s{S_T1}")
        a(f"s_lshl_b32 s{S_T0}, s{S_T0}, 9")
        a(f"s_add_u32 s{S_T0}, s{S_T0}, {WS_Q}")
        for g in range(4):
            a(f"s_xor_b32 s{S_T1}, s{S_W}, {g}")
            a(f"s_mul_i32 s{S_T1}, s{S_T1}, {7*512}")
            a(f"s_add_u32 s{S_T1}, s{S_T1}, s{S_T0}")
            a(f"v_add_u32 v{V_QA+g}, s{S_T1}, v{V_KO}")
        a(f"s_lshl_b32 s{S_T0}, s{S_PAR}, 11")
        a(f"v_add_u32 v{V_KO}, s{S_T0}, v{V_KO}")
        a(f"s_cmp_eq_u32 s{S_PAR}, 0")
        a(f"s_cselect_b32 s{S_EX}, 0, -1")
        a(f"s_cselect_b32 s{S_EX+1}, -1, 0")
        a(f"s_mov_b32 s{S_PASS}, 0")
        a(f"s_mov_b32 s{S_PRE}, 0")
        a(f"v_mov_b32 v{AT_VA+6}, {L_RELAY}")
        return
    if part == "peek":
        a(f"ds_read_b32 v{AT_VA+7}, v{AT_VA+6}")
        return
    if part == "pre":
        a(f"v_readfirstlane_b32 s{S_T0}, v{AT_VA+7}")
        a("s_nop 1")
        a(f"s_cmp_eq_u32 s{S_T0}, 0")
        a("s_cbranch_scc1 L_at_nopre")
        pre_loads()
        a.label("L_at_nopre")
        return
    a("s_setprio 2")
    a(f"s_cmp_lg_u32 s{S_PRE}, 0")
    a("s_cbranch_scc1 L_at_havepre")
    relay_wait(a, "kv", S, 0, V_T, V_T + 1, S_IT, S_T0)
    pre_loads()
    a("s_waitcnt vmcnt(0)")
    a.label("L_at_havepre")
    stamp(a, 1)
    def set_pads(src):
        a(f"s_mov_b64 exec, s[{S_EX}:{S_EX+1}]")
        a(f"s_cmp_eq_u32 s{S_PAR}, 0")
        lab = set_pads.n; set_pads.n += 1
        a(f"s_cbranch_scc0 L_at_padodd{lab}")
        for g in range(4):
            r0, r1 = src(g)
            a(f"v_mov_b32 v{V_Q+8*g+6}, {r0}")
            a(f"v_mov_b32 v{V_Q+8*g+7}, {r1}")
        a(f"s_branch L_at_paddone{lab}")
        a.label(f"L_at_padodd{lab}")
        for g in range(4):
            r0, r1 = src(g)
            a(f"v_mov_b32 v{V_Q+8*g+0}, {r0}")
            a(f"v_mov_b32 v{V_Q+8*g+1}, {r1}")
        a.label(f"L_at_paddone{lab}")
        a("s_mov_b64 exec, -1")
    set_pads.n = 0
    def qk(i, g, b):
        return [f"{MFMA} {Sx(i)}, {Kf(b,0)}, {Qf(g,0)}, 0",
                f"{MFMA} {Sx(i)}, {Kf(b,1)}, {Qf(g,1)}, {Sx(i)}"]
    def max_into(g, base, first):
        b = base
        if first:
            a(f"v_max3_f32 v{V_M+g}, v{b}, v{b+1}, v{b+2}")
            rest = list(range(3, 16))
        else:
            rest = list(range(0, 16))
        while len(rest) >= 2:
            a(f"v_max3_f32 v{V_M+g}, v{V_M+g}, v{b+rest[0]}, v{b+rest[1]}")
            rest = rest[2:]
        if rest:
            a(f"v_max_f32 v{V_M+g}, v{V_M+g}, v{b+rest[0]}")
    def first_loads():
        a(f"s_mov_b32 s{S_OFF}, 0")
        for b in range(3):
            load_k(b); load_v(b)
            a(f"s_add_u32 s{S_OFF}, s{S_OFF}, {KVT}")
    load_k(2); load_v(2)
    a(f"s_add_u32 s{S_OFF}, s{S_OFF}, {KVT}")
    a("s_waitcnt vmcnt(14)")
    set_pads(lambda g: ("0", "0"))
    stamp(a, 3)
    a("s_nop 1")
    for g in range(4):
        a(f"{MFMA} {O(g)}, {Kf(0,0)}, {Qf(g,0)}, 0")
        a(f"{MFMA} {O(g)}, {Kf(0,1)}, {Qf(g,1)}, {O(g)}")
    a("s_nop 5")
    for g in range(4):
        max_into(g, V_O + 16 * g, True)
    a.label("L_at_setmax")
    for g in range(4):
        a(f"v_mov_b32 v{V_T+g}, v{V_M+g}")
    a("s_nop 1")
    for g in range(4):
        a(f"v_permlane32_swap_b32 v{V_M+g}, v{V_T+g}")
    a("s_nop 1")
    for g in range(4):
        a(f"v_max_f32 v{V_M+g}, v{V_M+g}, v{V_T+g}")
    for g in range(4):
        hi, r, mid = V_S + 4 * g, V_S + 4 * g + 1, V_S + 4 * g + 2
        a(f"v_and_b32 v{hi}, 0xffff0000, v{V_M+g}")
        a(f"v_sub_f32 v{r}, v{V_M+g}, v{hi}")
        a(f"v_and_b32 v{mid}, 0xffff0000, v{r}")
        a(f"v_sub_f32 v{r}, v{r}, v{mid}")
        a(f"v_lshrrev_b32 v{hi}, 16, v{hi}")
        a(f"v_or_b32 v{hi}, v{hi}, v{mid}")
        a(f"v_xor_b32 v{hi}, 0x80008000, v{hi}")
        a(f"v_lshrrev_b32 v{r}, 16, v{r}")
        a(f"v_xor_b32 v{r}, 0x8000, v{r}")
    set_pads(lambda g: (f"v{V_S+4*g}", f"v{V_S+4*g+1}"))
    a("s_nop 0")
    for ins in qk(0, 0, 0):
        a(ins)
    for r in range(64):
        a(f"v_mov_b32 v{V_O+r}, 0")
    for r in range(8):
        a(f"v_mov_b32 v{V_P+8+r}, 0")
        a(f"v_mov_b32 v{V_KV+48+8+r}, 0")
    a(f"s_cmp_lg_u32 s{S_PASS}, 0")
    a("s_cbranch_scc1 L_at_noh")
    a("s_waitcnt vmcnt(4)")
    put_flag(a, S, s_hflag, V_T, V_T + 1)
    a.label("L_at_noh")
    a(f"s_mov_b32 s{S_IT}, 4")
    stamp(a, 5)
    a.label("L_at_main")
    for u in range(16):
        kt, g = u >> 2, u & 3
        cur, nxt = u & 1, (u & 1) ^ 1
        nkt, ng = ((u + 1) >> 2) & 3, (u + 1) & 3
        pkt, pg = ((u - 1) >> 2) & 3, (u - 1) & 3
        if g == 3:
            a("s_waitcnt vmcnt(10)")
        if g == 1:
            a("s_waitcnt vmcnt(8)")
        q = qk(nxt, ng, nkt)
        pp = V_P + 8 * nxt
        pv = [f"{MFMA} {O(pg)}, {Vf(pkt,0)}, {vr(pp,4)}, {O(pg)}",
              f"{MFMA} {O(pg)}, {Vf(pkt,1)}, {vr(pp+4,4)}, {O(pg)}"]
        sb_ = V_S + 16 * cur
        ex = [f"v_exp_f32 v{sb_+i}, v{sb_+i}" for i in range(16)]
        cv = [f"v_cvt_pk_bf16_f32 v{V_P+8*cur+i}, v{sb_+2*i}, v{sb_+2*i+1}" for i in range(8)]
        mf = [q[0], q[1], pv[0], pv[1]]
        for k in range(4):
            a(mf[k])
            for ins in ex[4*k:4*k+4]:
                a(ins)
            if k:
                for ins in cv[2*k-2:2*k]:
                    a(ins)
        for ins in cv[6:8]:
            a(ins)
        if g == 1:
            load_k((kt + 3) & 3); load_v((kt + 3) & 3)
            a(f"s_add_u32 s{S_OFF}, s{S_OFF}, {KVT}")
    a(f"s_sub_u32 s{S_IT}, s{S_IT}, 1")
    a(f"s_cmp_lg_u32 s{S_IT}, 0")
    a("s_cbranch_scc1 L_at_main")
    pp = V_P + 8
    a(f"{MFMA} {O(3)}, {Vf(3,0)}, {vr(pp,4)}, {O(3)}")
    a(f"{MFMA} {O(3)}, {Vf(3,1)}, {vr(pp+4,4)}, {O(3)}")
    stamp(a, 6)
    for i in range(4):
        a(f"v_add_f32 v{V_T+i}, v{V_O+i}, v{V_O+4+i}")
    for r in range(8, 64):
        a(f"v_add_f32 v{V_T+(r&3)}, v{V_T+(r&3)}, v{V_O+r}")
    a(f"v_add_f32 v{V_T}, v{V_T}, v{V_T+1}")
    a(f"v_add_f32 v{V_T+2}, v{V_T+2}, v{V_T+3}")
    a(f"v_add_f32 v{V_T}, v{V_T}, v{V_T+2}")
    a(f"v_mov_b32 v{V_T+1}, 0x207")
    a(f"v_cmp_class_f32 vcc, v{V_T}, v{V_T+1}")
    a(f"s_cmp_lg_u32 s{S_PASS}, 0")
    a("s_cbranch_scc1 L_at_reduce")
    a("s_cbranch_vccz L_at_reduce")
    a(f"s_mov_b32 s{S_PASS}, 1")
    a("s_waitcnt vmcnt(0)")
    set_pads(lambda g: ("0", "0"))
    for g in range(4):
        a(f"v_mov_b32 v{V_M+g}, 0xff800000")
    a(f"s_mov_b32 s{S_OFF}, 0")
    a(f"s_mov_b32 s{S_IT}, 16")
    a.label("L_at_slow")
    load_k(0)
    a(f"s_add_u32 s{S_OFF}, s{S_OFF}, {KVT}")
    a("s_waitcnt vmcnt(0)")
    for g in range(4):
        for ins in qk(0, g, 0):
            a(ins)
        a("s_nop 15")
        max_into(g, V_S, False)
    a(f"s_sub_u32 s{S_IT}, s{S_IT}, 1")
    a(f"s_cmp_lg_u32 s{S_IT}, 0")
    a("s_cbranch_scc1 L_at_slow")
    first_loads()
    a("s_waitcnt vmcnt(10)")
    a("s_branch L_at_setmax")
    a.label("L_at_reduce")
    a("s_mov_b32 exec_lo, 0")
    for g in range(1, 4):
        a(f"v_mov_b32 v{V_O+16*g+13}, v{V_M+g}")
    a("s_mov_b64 exec, -1")
    a(f"v_lshlrev_b32 v{V_T}, 4, v{V_LANE}")
    for g in range(1, 4):
        a(f"s_xor_b32 s{S_T0}, s{S_W}, {g}")
        a(f"s_mul_i32 s{S_T0}, s{S_T0}, 12288")
        a(f"s_add_u32 s{S_T0}, s{S_T0}, {L_ATT + (g-1)*4096}")
        a(f"v_add_u32 v{V_T+1}, s{S_T0}, v{V_T}")
        for qd in range(3):
            a(f"ds_write_b128 v{V_T+1}, {vr(V_O+16*g+4*qd,4)} offset:{1024*qd}")
        a(f"ds_write_b64 v{V_T+1}, {vr(V_O+16*g+12,2)} offset:3072")
        a("s_mov_b32 exec_hi, 0")
        a(f"ds_write_b64 v{V_T+1}, {vr(V_O+16*g+14,2)} offset:3080")
        a("s_mov_b64 exec, -1")
    a(f"s_mul_i32 s{S_T0}, s{S_W}, 12288")
    a(f"s_add_u32 s{S_T0}, s{S_T0}, {L_ATT}")
    a(f"v_add_u32 v{V_T+1}, s{S_T0}, v{V_T}")
    a(f"s_lshr_b32 s{S_T0}, s{S_HG}, 1")
    a(f"s_lshl_b32 s{S_T0}, s{S_T0}, 3")
    a(f"s_lshl_b32 s{S_T1}, s{S_W}, 1")
    a(f"s_add_u32 s{S_T0}, s{S_T0}, s{S_T1}")
    a(f"s_add_u32 s{S_T0}, s{S_T0}, s{S_PAR}")
    a(f"s_lshl_b32 s{S_T0}, s{S_T0}, 11")
    a(f"s_lshl_b32 s{S_T1}, s{S_RT}, 15")
    a(f"s_add_u32 s{S_T0}, s{S_T0}, s{S_T1}")
    a(f"s_add_u32 s{S_T0}, s{S_T0}, {WS_O}")
    a(f"v_and_b32 v{V_T}, 31, v{V_LANE}")
    a(f"v_lshlrev_b32 v{V_T}, 4, v{V_T}")
    a(f"v_lshrrev_b32 v{V_T+2}, 5, v{V_LANE}")
    a(f"v_lshl_add_u32 v{V_T}, v{V_T+2}, 10, v{V_T}")
    a(f"v_add_u32 v{V_T}, s{S_T0}, v{V_T}")
    a(f"s_lshl_b32 s{S_T0}, s2, 2")
    a(f"s_add_u32 s{S_T0}, s{S_T0}, s{S_W}")
    a(f"s_lshl_b32 s{S_T0}, s{S_T0}, 2")
    a(f"s_add_u32 s{S_T0}, s{S_T0}, {FL_O}")
    a(f"s_lshl_b32 s{S_T1}, s{S_W}, 4")
    a(f"s_add_u32 s{S_T1}, s{S_T1}, {L_ATT + 3072 + 512 + 8}")
    a(f"v_mov_b32 v{V_T+4}, s{S_T1}")
    a(f"v_mov_b32 v{V_T+5}, s{S['NONCE']}")
    a(f"v_and_b32 v{V_T+6}, 3, v{V_LANE}")
    a(f"v_lshlrev_b32 v{V_T+6}, 4, v{V_T+6}")
    a(f"v_add_u32 v{V_T+6}, {L_ATT + 3072 + 512 + 8}, v{V_T+6}")
    a("s_waitcnt lgkmcnt(0)")
    a(f"ds_write_b32 v{V_T+4}, v{V_T+5}")
    a(f"s_mov_b32 s{S_IT}, {SPIN_MAX*16}")
    a.label("L_at_sync")
    a(f"ds_read_b32 v{V_T+7}, v{V_T+6}")
    a("s_waitcnt lgkmcnt(0)")
    a(f"v_cmp_ne_u32 vcc, v{V_T+7}, v{V_T+5}")
    a(f"s_sub_u32 s{S_IT}, s{S_IT}, 1")
    a(f"s_cmp_eq_u32 s{S_IT}, 0")
    a("s_cbranch_scc1 L_at_synced")
    a("s_cbranch_vccnz L_at_sync")
    a.label("L_at_synced")
    stamp(a, 2)
    for g in range(1, 4):
        for qd in (3, 0, 1, 2):
            a(f"ds_read_b128 {vr(V_O+16*g+4*qd,4)}, v{V_T+1} offset:{(g-1)*4096 + 1024*qd}")
    a("s_waitcnt lgkmcnt(3)")
    for g in range(1, 4):
        a(f"v_mov_b32 v{V_M+g}, v{V_O+16*g+13}")
        a(f"v_mov_b32 v{V_T+4+g}, v{V_O+16*g+13}")
    a("s_nop 1")
    for g in range(1, 4):
        a(f"v_permlane32_swap_b32 v{V_T+4+g}, v{V_M+g}")
    a("s_nop 1")
    a(f"v_max3_f32 v{V_T+4}, v{V_M}, v{V_M+1}, v{V_M+2}")
    a(f"v_max_f32 v{V_T+4}, v{V_T+4}, v{V_M+3}")
    for sw in range(4):
        a(f"v_sub_f32 v{V_M+sw}, v{V_M+sw}, v{V_T+4}")
    for sw in range(4):
        a(f"v_exp_f32 v{V_M+sw}, v{V_M+sw}")
    a("s_waitcnt lgkmcnt(0)")
    for r in range(16):
        a(f"v_mul_f32 v{V_O+r}, v{V_O+r}, v{V_M}")
    for sw in range(1, 4):
        for r in range(16):
            a(f"v_fmac_f32 v{V_O+r}, v{V_O+16*sw+r}, v{V_M+sw}")
    a(f"v_mov_b32 v{V_T+4}, v{V_O+12}")
    a(f"v_mov_b32 v{V_T+5}, v{V_O+12}")
    a("s_nop 1")
    a(f"v_permlane32_swap_b32 v{V_T+4}, v{V_T+5}")
    a("s_nop 1")
    a(f"v_rcp_f32 v{V_T+5}, v{V_T+5}")
    a(f"v_cmp_eq_u32 vcc, 1, v{V_T+2}")
    for r in range(16):
        a(f"v_mul_f32 v{V_O+r}, v{V_O+r}, v{V_T+5}")
    for r in range(8):
        a(f"v_cvt_pk_bf16_f32 v{V_S+r}, v{V_O+2*r}, v{V_O+2*r+1}")
    a(f"v_mov_b32 v{V_T+4}, 0")
    a(f"v_cndmask_b32 v{V_S+6}, v{V_S+6}, v{V_T+4}, vcc")
    a(f"v_cndmask_b32 v{V_S+7}, v{V_S+7}, v{V_T+4}, vcc")
    a(f"global_store_dwordx4 v{V_T}, {vr(V_S,4)}, s[{S_WS}:{S_WS+1}] sc1")
    a(f"global_store_dwordx4 v{V_T}, {vr(V_S+4,4)}, s[{S_WS}:{S_WS+1}] offset:512 sc1")
    a("s_waitcnt vmcnt(0)")
    put_flag(a, S, S_T0, V_T + 4, V_T + 5)

class Gemm:
    def __init__(self, a, R, NK, U, S_WSRD, S_WOFF, wstep, S_BSRD, S_BOFF, S_LB):
        self.__dict__.update(locals())
        self.vm = []
    def wait(self, *labels):
        vm = self.vm
        last = max(i for i, l in enumerate(vm) if l in labels)
        self.a(f"s_waitcnt vmcnt({len(vm) - 1 - last})")
    def issue_w(self, k):
        a, R, j = self.a, self.R, k % self.U
        for p in range(2):
            a(f"s_add_u32 m0, s{self.S_LB}, {j*2048 + p*1024}")
            a(f"s_add_u32 s{self.S_WOFF+1}, s{self.S_WOFF}, {8*896}" if p else "s_nop 0")
            a(f"buffer_load_dwordx4 v{R['wo']}, s[{self.S_WSRD}:{self.S_WSRD+3}], s{self.S_WOFF+p} offen lds")
            self.vm.append(f"w{k}")
        a(f"s_add_u32 s{self.S_WOFF}, s{self.S_WOFF}, {self.wstep(k)}")
    def issue_b(self, k):
        a, R, j = self.a, self.R, k % self.U
        for b in range(2):
            a(f"buffer_load_dwordx4 {vr(R['bf']+8*j+4*b,4)}, v{R['bo']+b}, s[{self.S_BSRD}:{self.S_BSRD+3}], s{self.S_BOFF} offen offset:{1024*(k&3)}")
            self.vm.append(f"b{k}")
        if k & 3 == 3:
            a(f"s_add_u32 s{self.S_BOFF}, s{self.S_BOFF}, 4096")
    def reads(self, k):
        a, R, j = self.a, self.R, k % self.U
        for t in range(2):
            for hf in range(2):
                a(f"ds_read_b64_tr_b16 {vr(R['af']+8*(k&1)+4*t+2*hf,2)}, v{R['tr']+t} offset:{j*2048 + hf*512}")
    def run(self):
        a, R, NK, U = self.a, self.R, self.NK, self.U
        ACC, AF, BF = R["acc"], R["af"], R["bf"]
        self.reads(0)
        for k in range(NK):
            need = [l for l in (f"b{k}", f"w{k+1}") if l in self.vm]
            self.wait(*need)
            a("s_waitcnt lgkmcnt(0)")
            if k + 1 < NK:
                self.reads(k + 1)
            j = k % U
            for b in range(2):
                for t in range(2):
                    i = t + 2 * b
                    c = "0" if k == 0 else vr(ACC + 16 * i, 16)
                    a(f"{MFMA} {vr(ACC+16*i,16)}, {vr(AF+8*(k&1)+4*t,4)}, {vr(BF+8*j+4*b,4)}, {c}")
            if k + U < NK:
                self.issue_w(k + U); self.issue_b(k + U)

def bwaves(a, S):
    R = dict(lane=1, tmp=2, wo=8, st=9, tr=10, bo=12, fl=14, acc=16, af=80, bf=96)
    U = 8
    V_XG = R["bf"] + 8 * U
    V_OA = V_XG + 16
    S_WS = S["WS"]
    sb = S["sb"]
    S_WSRD, S_BSRD = sb, sb + 4
    S_WOFF, S_BOFF, S_LB, S_IT, S_T0, S_T1, S_RB, S_CB, S_W, S_RTO = sb + 8, sb + 10, sb + 11, sb + 12, sb + 13, sb + 14, sb + 15, sb + 16, sb + 17, sb + 18
    a(f"s_sub_u32 s{S_W}, s{S['W']}, 4")
    a(f"s_cmp_lg_u32 s{S_W}, 1")
    a("s_cbranch_scc1 L_b_nokv")
    a(f"s_cmp_lg_u32 s{S['T2']}, 0")
    a("s_cbranch_scc1 L_b_nokv")
    poll(a, "kv", 9, 10, S, S_IT, sleep=4)
    relay_set(a, S, 0, 2, 3)
    a("s_waitcnt lgkmcnt(0)")
    a.label("L_b_nokv")
    a("s_cmp_ge_u32 s2, 224")
    a("s_cbranch_scc1 L_end")
    tile_ids(a, S_RB, S_CB, S_T0, S_T1)
    gemm_setup(a, R, S_W, S_T0)
    srd(a, S_WSRD, S["WD"], S["WD"] + 1, 0, 1792 * 896)
    srd(a, S_BSRD, S_WS, S_WS + 1, WS_H, 64 * 112 * 1024)
    a(f"s_lshl_b32 s{S_LB}, s{S_W}, 14")
    a(f"v_add_u32 v{R['tr']}, s{S_LB}, v{R['tr']}")
    a(f"v_add_u32 v{R['tr']+1}, s{S_LB}, v{R['tr']+1}")
    a(f"s_mul_i32 s{S_WOFF}, s{S_W}, {448*896}")
    a(f"s_lshl_b32 s{S_T0}, s{S_CB}, 7")
    a(f"s_add_u32 s{S_WOFF}, s{S_WOFF}, s{S_T0}")
    G = Gemm(a, R, 28, U, S_WSRD, S_WOFF, lambda k: 16 * 896, S_BSRD, S_BOFF, S_LB)
    for k in range(U):
        G.issue_w(k)
    a(f"s_lshr_b32 s{S_RTO}, s{S_W}, 1")
    a(f"s_lshl_b32 s{S_T1}, s{S_RB}, 1")
    a(f"s_add_u32 s{S_RTO}, s{S_RTO}, s{S_T1}")
    a(f"s_xor_b32 s{S_T1}, s{S_RTO}, 1")
    a(f"s_mul_i32 s{S_T0}, s{S_RTO}, {112*1024}")
    a(f"s_mul_i32 s{S_T1}, s{S_T1}, {112*1024}")
    a(f"v_lshlrev_b32 v{R['tmp']}, 4, v{R['lane']}")
    a(f"v_add_u32 v{R['bo']}, s{S_T0}, v{R['tmp']}")
    a(f"v_add_u32 v{R['bo']+1}, s{S_T1}, v{R['tmp']}")
    a(f"s_mul_i32 s{S_BOFF}, s{S_W}, {28*1024}")
    a(f"v_and_b32 v{R['st']}, 31, v{R['lane']}")
    a(f"s_lshl_b32 s{S_T0}, s{S_RB}, 7")
    a(f"s_add_u32 s{S_T0}, s{S_T0}, {FL_H}")
    a(f"v_lshl_add_u32 v{R['fl']}, v{R['st']}, 2, s{S_T0}")
    a(f"s_cmp_lg_u32 s{S_W}, 0")
    a("s_cbranch_scc1 L_b_hw")
    a("s_sleep 24")
    poll(a, "h", R["fl"], R["fl"] + 1, S, S_IT, sleep=12)
    relay_set(a, S, 1, R["tmp"] + 2, R["tmp"] + 3)
    a.label("L_b_hw")
    relay_wait(a, "h", S, 1, R["tmp"] + 2, R["tmp"] + 3, S_IT, S_T0)
    a("s_waitcnt vmcnt(0)")
    G.vm = []
    stamp(a, 2)
    a(f"s_lshl_b32 s{S_T1}, s{S_RTO}, 8")
    a(f"s_add_u32 s{S_T1}, s{S_T1}, {WS_ST}")
    a(f"v_lshl_add_u32 v{R['st']}, v{R['st']}, 3, s{S_T1}")
    a(f"global_load_dword v{R['st']}, v{R['st']}, s[{S_WS}:{S_WS+1}] sc1")
    for k in range(U):
        G.issue_b(k)
    G.run()
    stamp(a, 3)
    gemm_reduce_write(a, R, S_W, S_T0, L_RED)
    a(f"s_lshl_b32 s{S_T1}, s{S_W}, 4")
    a(f"s_add_u32 s{S_T1}, s{S_T1}, {L_ATT + 3072 + 512 + 8 + 64}")
    a(f"v_mov_b32 v{R['tmp']+2}, s{S_T1}")
    a(f"v_mov_b32 v{R['tmp']+3}, s{S['NONCE']}")
    a("s_waitcnt lgkmcnt(0)")
    a(f"ds_write_b32 v{R['tmp']+2}, v{R['tmp']+3}")
    a("s_waitcnt lgkmcnt(0)")
    srd(a, S_WSRD, S["WO"], S["WO"] + 1, 0, 448 * 896)
    srd(a, S_BSRD, S_WS, S_WS + 1, WS_O, 64 * 32 * 1024)
    a(f"s_mul_i32 s{S_WOFF}, s{S_W}, {112*896}")
    a(f"s_lshl_b32 s{S_T0}, s{S_CB}, 7")
    a(f"s_add_u32 s{S_WOFF}, s{S_WOFF}, s{S_T0}")
    G2 = Gemm(a, R, 8, U, S_WSRD, S_WOFF, lambda k: (16 if k % 2 == 0 else 12) * 896, S_BSRD, S_BOFF, S_LB)
    for k in range(8):
        G2.issue_w(k)
    a(f"s_lshl_b32 s{S_T0}, s{S_RTO}, 15")
    a(f"v_add_u32 v{R['bo']}, s{S_T0}, v{R['tmp']}")
    a(f"v_xor_b32 v{R['bo']+1}, 0x8000, v{R['bo']}")
    a(f"s_lshl_b32 s{S_BOFF}, s{S_W}, 13")
    a(f"v_and_b32 v{V_OA}, 31, v{R['lane']}")
    a(f"s_lshl_b32 s{S_T0}, s{S_RTO}, 5")
    a(f"v_add_u32 v{V_OA}, s{S_T0}, v{V_OA}")
    a(f"v_mul_u32_u24 v{V_OA}, 896, v{V_OA}")
    a(f"v_lshrrev_b32 v{V_OA+1}, 5, v{R['lane']}")
    a(f"v_lshl_add_u32 v{V_OA}, v{V_OA+1}, 5, v{V_OA}")
    a(f"s_lshl_b32 s{S_T0}, s{S_CB}, 1")
    a(f"s_and_b32 s{S_T1}, s{S_W}, 1")
    a(f"s_add_u32 s{S_T0}, s{S_T0}, s{S_T1}")
    a(f"s_lshl_b32 s{S_T0}, s{S_T0}, 6")
    a(f"v_add_u32 v{V_OA}, s{S_T0}, v{V_OA}")
    a(f"global_load_dwordx4 {vr(V_XG,4)}, v{V_OA}, s[{S['X']}:{S['X']+1}]")
    a(f"global_load_dwordx4 {vr(V_XG+4,4)}, v{V_OA}, s[{S['X']}:{S['X']+1}] offset:16")
    a(f"v_add_u32 v{R['fl']}, {FL_O - FL_H}, v{R['fl']}")
    FB = L_ATT + 3072 + 512 + 8 + 64
    P_ = R["tmp"]
    a(f"s_lshl_b32 s{S_T1}, s{S_W}, 4")
    a(f"s_add_u32 s{S_T1}, s{S_T1}, {FB}")
    a(f"v_mov_b32 v{P_+2}, s{S_T1}")
    a(f"v_mov_b32 v{P_+3}, s{S['NONCE']}")
    a(f"v_and_b32 v{P_+4}, 3, v{R['lane']}")
    a(f"v_lshlrev_b32 v{P_+4}, 4, v{P_+4}")
    a(f"v_add_u32 v{P_+4}, {FB}, v{P_+4}")
    a(f"s_mov_b32 s{S_IT}, {SPIN_MAX*16}")
    a.label("L_b_sync")
    a(f"ds_read_b32 v{P_+5}, v{P_+4}")
    a("s_waitcnt lgkmcnt(0)")
    a(f"v_cmp_ne_u32 vcc, v{P_+5}, v{P_+3}")
    a(f"s_sub_u32 s{S_IT}, s{S_IT}, 1")
    a(f"s_cmp_eq_u32 s{S_IT}, 0")
    a("s_cbranch_scc1 L_b_synced")
    a("s_cbranch_vccz L_b_synced")
    a("s_sleep 2")
    a("s_branch L_b_sync")
    a.label("L_b_synced")
    stamp(a, 4)
    gemm_reduce_read(a, R)
    ACC = R["acc"]; T = R["af"]
    a(f"v_and_b32 v{R['st']}, 0xffff0000, v{R['st']}")
    a(f"v_mul_f32 v{R['st']}, v{R['st']}, v{R['st']}")
    a(f"v_rcp_f32 v{R['st']}, v{R['st']}")
    a("s_nop 0")
    for r in range(16):
        a(f"v_mul_f32 v{ACC+r}, v{ACC+r}, v{R['st']}")
    for r in range(16):
        a(f"v_mul_f32 v{T+r}, {hex(f32bits(-math.log2(math.e)))}, v{ACC+r}")
    for r in range(16):
        a(f"v_exp_f32 v{T+r}, v{T+r}")
    for r in range(16):
        a(f"v_add_f32 v{T+r}, 1.0, v{T+r}")
    for r in range(16):
        a(f"v_rcp_f32 v{T+r}, v{T+r}")
    a("s_nop 0")
    for r in range(16):
        a(f"v_mul_f32 v{ACC+r}, v{ACC+r}, v{T+r}")
    for r in range(8):
        a(f"v_cvt_pk_bf16_f32 v{V_XG+8+r}, v{ACC+2*r}, v{ACC+2*r+1}")
    a("s_barrier")
    a(f"s_cmp_lg_u32 s{S_W}, 0")
    a("s_cbranch_scc1 L_b_ow")
    poll(a, "o", R["fl"], R["fl"] + 1, S, S_IT, sleep=1)
    a.label("L_b_ow")
    a("s_waitcnt vmcnt(0)")
    a("s_barrier")
    G2.vm = []
    stamp(a, 5)
    for k in range(8):
        G2.issue_b(k)
    G2.run()
    stamp(a, 6)
    P = R["tmp"]
    a(f"v_add_u32 v{P+1}, s{S_LB}, v{P}")
    a("s_nop 7")
    a("s_nop 3")
    for i in range(1, 4):
        for q in range(4):
            a(f"ds_write_b128 v{P+1}, {vr(ACC+16*i+4*q,4)} offset:{(i-1)*4096 + 1024*q}")
    a("s_waitcnt lgkmcnt(0)")
    a("s_barrier")
    for i in range(1, 4):
        a(f"v_xor_b32 v{P+2}, {i << 14}, v{P+1}")
        for q in range(4):
            a(f"ds_read_b128 {vr(ACC+16*i+4*q,4)}, v{P+2} offset:{(i-1)*4096 + 1024*q}")
    for i in range(1, 4):
        a(f"s_waitcnt lgkmcnt({12 - 4*i})")
        for r in range(16):
            a(f"v_add_f32 v{ACC+r}, v{ACC+r}, v{ACC+16*i+r}")
    for r in range(8):
        a(f"v_lshlrev_b32 v{T}, 16, v{V_XG+r}")
        a(f"v_and_b32 v{T+1}, 0xffff0000, v{V_XG+r}")
        a(f"v_lshlrev_b32 v{T+2}, 16, v{V_XG+8+r}")
        a(f"v_and_b32 v{T+3}, 0xffff0000, v{V_XG+8+r}")
        a(f"v_fmac_f32 v{T}, v{ACC+2*r}, v{T+2}")
        a(f"v_fmac_f32 v{T+1}, v{ACC+2*r+1}, v{T+3}")
        a(f"v_cvt_pk_bf16_f32 v{T+8+r}, v{T}, v{T+1}")
    a(f"global_store_dwordx4 v{V_OA}, {vr(T+8,4)}, s[{S['OUT']}:{S['OUT']+1}]")
    a(f"global_store_dwordx4 v{V_OA}, {vr(T+12,4)}, s[{S['OUT']}:{S['OUT']+1}] offset:16")

def kf(a):
    name = NAME + "_kernel"
    kernel_head(a, name)
    S = dict(X=4, WQ=6, WK=8, WV=10, WO=12, WG=16, WU=18, WD=20, OUT=22, DBG=24, WS=26, RB=28, CB=29, W=30,
             T0=31, T1=32, T2=33, T3=34, NONCE=35, sb=36, RELAY=L_RELAY, HSTAMP=P1S)
    a("s_cmp_ge_u32 s2, 256")
    a("s_cbranch_scc1 L_end")
    stamp(a, 0)
    a("s_load_dwordx16 s[4:19], s[0:1], 0")
    a("s_load_dwordx8 s[20:27], s[0:1], 64")
    a("v_lshrrev_b32 v1, 6, v0")
    p1.p1_ids(a, S["RB"], S["CB"], S["T0"], S["T1"], S["T2"])
    a(f"v_readfirstlane_b32 s{S['W']}, v1")
    a(f"v_and_b32 v1, 63, v0")
    a("s_nop 3")
    a(f"s_cmp_ge_u32 s{S['W']}, 4")
    a("s_cbranch_scc1 L_helper")
    p1.p1_rowstats(a, S)
    TOUCH = os.environ.get("TOUCH", "none")
    if TOUCH == "early": p1.p1_touch(a, S)
    C = p1.p1_compute_setup(a, S)
    if TOUCH == "late": p1.p1_touch(a, S)
    p1.p1_rowstats2(a, S, 0)
    p1.p1_csload(a, S)
    p1.p1_compute(a, S, C, mid=lambda: attention(a, S, None, "setup"), peek=lambda: attention(a, S, None, "peek"), pre=lambda: attention(a, S, None, "pre"))
    a(f"s_mov_b32 s{S['sb']}, s{S['T0']}")
    stamp(a, 4)
    if P1S: _stamp(a, 6)
    attention(a, S, S["sb"], "main")
    stamp(a, 7)
    stamp_flush(a, 8, "fa", tid=int(os.environ.get("ATID", "0")))
    a("s_endpgm")
    a.label("L_helper")
    p1.p1_helper(a, S)
    bwaves(a, S)
    stamp(a, 7)
    stamp_flush(a, 8, "fb", kidx=4, tid=256)
    a.label("L_end")
    a("s_endpgm")
    kernel_desc(a, name, 256, 0)
    return (name, 256, 512, p1.P1_LDS)
```

```python
from gen import *

P1_XN = 0
P1_W  = 7 * 16384
P1_LDS = 163840
SCR0 = P1_W + 2 * 16384 + 15 * 1024
SCRA = P1_W + 0 * 16384
SCRN = P1_XN + 6 * 16384
SCRB = P1_XN

WS_ST = 0x1200000
WS_FL = 0x1210000
FL_KV = WS_FL + 32768
FL_Q  = FL_KV + 128
FL_H  = WS_FL + 2048
FL_O  = WS_FL + 8192

V_L = 1

def p1_ids(a, S_RB, S_CB, S_T0, S_T1, S_T2):
    a(f"s_and_b32 s{S_T0}, s2, 7")
    a(f"s_lshr_b32 s{S_T1}, s2, 3")
    a(f"s_and_b32 s{S_RB}, s{S_T0}, 1")
    a(f"s_lshl_b32 s{S_RB}, s{S_RB}, 3")
    a(f"s_and_b32 s{S_T2}, s{S_T1}, 7")
    a(f"s_add_u32 s{S_RB}, s{S_RB}, s{S_T2}")
    a(f"s_lshr_b32 s{S_CB}, s{S_T0}, 1")
    a(f"s_lshr_b32 s{S_T2}, s{S_T1}, 3")
    a(f"s_lshl_b32 s{S_T2}, s{S_T2}, 2")
    a(f"s_add_u32 s{S_CB}, s{S_CB}, s{S_T2}")

SPIN_MAX = 200000
NREP = int(os.environ.get("NREP", "32"))
QEPI = int(os.environ.get("QEPI", "7"))

WS_CS = 0x1280000
WS_CQ = 0x12C0000
FL_CS = WS_FL + 16384

def p1_helper(a, S):
    V_WA, V_WB, V_XO, V_C1, V_C2, V_GA = 2, 3, 4, 6, 7, 8
    V_ACCS = 12
    V_U = 20
    V_ST = 28
    P = 32
    V_D = 40
    HW, T0, T1, T2 = S["T3"], S["T0"], S["T1"], S["T2"]
    sb = S["sb"]
    SA, SB, SX, SC1, SC2 = sb, sb + 4, sb + 8, sb + 12, sb + 16
    M0, IT, SL, OFF, STEP, XM0, MASK, CSTEP, MU, OC, KVF = [sb + 20 + i for i in range(11)]
    MSK = sb + 32
    NONCE, WS = S["NONCE"], S["WS"]
    a(f"s_sub_u32 s{HW}, s{S['W']}, 4")
    a(f"s_and_b32 s{MU}, s{HW}, 1")
    a(f"s_lshr_b32 s{OC}, s{HW}, 1")
    a(f"s_mov_b32 s{MASK}, 0xffff0000")
    a(f"s_mov_b32 s{KVF}, 0")
    a(f"v_lshrrev_b32 v{P}, 3, v{V_L}")
    a(f"v_and_b32 v{P+6}, 7, v{V_L}")
    a(f"v_lshrrev_b32 v{P+2}, 1, v{P}")
    a(f"v_xor_b32 v{P+1}, v{P+6}, v{P+2}")
    a(f"v_mul_u32_u24 v{V_XO}, 896, v{P}")
    a(f"v_lshl_add_u32 v{V_XO}, v{P+1}, 4, v{V_XO}")
    a(f"v_xor_b32 v{V_XO+1}, 64, v{V_XO}")
    a(f"s_lshl_b32 s{T0}, s{S['RB']}, 7")
    a(f"s_lshl_b32 s{XM0}, s{HW}, 5")
    a(f"s_add_u32 s{T0}, s{T0}, s{XM0}")
    a(f"s_mul_i32 s{T0}, s{T0}, 896")
    a("s_waitcnt lgkmcnt(0)")
    a(f"s_add_u32 s{SX}, s{S['X']}, s{T0}")
    a(f"s_addc_u32 s{SX+1}, s{S['X']+1}, 0")
    a(f"s_and_b32 s{SX+1}, s{SX+1}, 0xffff")
    a(f"s_mov_b32 s{SX+2}, {32*896}")
    a(f"s_mov_b32 s{SX+3}, 0x00020000")
    a(f"s_lshl_b32 s{XM0}, s{HW}, 12")
    def xdma(c):
        for g in range(4):
            a(f"s_add_u32 m0, s{XM0}, {P1_XN + c*16384 + g*1024}")
            a(f"s_movk_i32 s{T0}, {g*8*896 + c*128}")
            a(f"buffer_load_dwordx4 v{V_XO+(g&1)}, s[{SX}:{SX+3}], s{T0} offen lds")
    xdma(0)
    a(f"s_lshl_b32 s{T0}, s{OC}, 3")
    a(f"v_add_u32 v{P+7}, s{T0}, v{P}")
    a(f"v_bfe_u32 v{P+1}, v{V_L}, 1, 2")
    a(f"v_and_b32 v{P+2}, 1, v{V_L}")
    a(f"v_bfe_u32 v{P+3}, v{V_L}, 4, 1")
    a(f"s_lshl_b32 s{T0}, s{MU}, 1")
    a(f"v_add_u32 v{P+4}, s{T0}, v{P+3}")
    a(f"v_xor_b32 v{P+4}, v{P+4}, v{P+1}")
    a(f"v_mul_u32_u24 v{V_WB}, 3584, v{P+7}")
    a(f"v_lshl_add_u32 v{V_WB}, v{P+4}, 5, v{V_WB}")
    a(f"v_lshl_add_u32 v{V_WB}, v{P+2}, 4, v{V_WB}")
    a(f"s_cmp_eq_u32 s{MU}, 0")
    a(f"s_cselect_b32 s{SB}, s{S['WG']}, s{S['WU']}")
    a(f"s_cselect_b32 s{SB+1}, s{S['WG']+1}, s{S['WU']+1}")
    a(f"s_and_b32 s{SB+1}, s{SB+1}, 0xffff")
    a(f"s_mov_b32 s{SB+2}, {448*3584}")
    a(f"s_mov_b32 s{SB+3}, 0x00020000")
    a(f"s_mov_b32 s{SA+3}, 0x00020000")
    a(f"s_cmp_lt_u32 s{S['CB']}, 4")
    a("s_cbranch_scc1 L_p1h_q")
    a(f"s_mov_b32 s{SA}, s{SB}")
    a(f"s_mov_b32 s{SA+1}, s{SB+1}")
    a(f"s_mov_b32 s{SA+2}, s{SB+2}")
    a(f"v_mov_b32 v{V_WA}, v{V_WB}")
    a(f"s_sub_u32 s{OFF}, s{S['CB']}, 4")
    a(f"s_lshl_b32 s{OFF}, s{OFF}, 7")
    a(f"s_mov_b32 s{STEP}, {16*3584}")
    a("s_branch L_p1h_go")
    a.label("L_p1h_q")
    a(f"s_lshl_b32 s{T0}, s{S['CB']}, 1")
    a(f"s_add_u32 s{T0}, s{T0}, s{MU}")
    a(f"s_cmp_eq_u32 s{T0}, 7")
    a("s_cbranch_scc1 L_p1h_kv")
    a(f"v_lshlrev_b32 v{P+4}, 1, v{P+3}")
    a(f"v_xor_b32 v{P+4}, v{P+4}, v{P+1}")
    a(f"v_mul_u32_u24 v{V_WA}, 896, v{P+7}")
    a(f"v_lshl_add_u32 v{V_WA}, v{P+4}, 5, v{V_WA}")
    a(f"v_lshl_add_u32 v{V_WA}, v{P+2}, 4, v{V_WA}")
    a(f"s_mov_b32 s{SA}, s{S['WQ']}")
    a(f"s_and_b32 s{SA+1}, s{S['WQ']+1}, 0xffff")
    a(f"s_mov_b32 s{SA+2}, {448*896}")
    a(f"s_lshl_b32 s{OFF}, s{T0}, 7")
    a(f"s_movk_i32 s{STEP}, {16*896}")
    a("s_branch L_p1h_go")
    a.label("L_p1h_kv")
    a(f"v_lshrrev_b32 v{P+4}, 2, v{V_L}")
    a(f"v_mul_u32_u24 v{V_WA}, 56, v{P+4}")
    a(f"v_and_b32 v{P+1}, 3, v{V_L}")
    a(f"v_lshlrev_b32 v{P+2}, 4, v{P+1}")
    a(f"v_min_u32 v{P+2}, 40, v{P+2}")
    a(f"v_add_u32 v{V_WA}, v{V_WA}, v{P+2}")
    a(f"s_cmp_eq_u32 s{OC}, 0")
    a(f"s_cselect_b32 s{SA}, s{S['WK']}, s{S['WV']}")
    a(f"s_cselect_b32 s{SA+1}, s{S['WK']+1}, s{S['WV']+1}")
    a(f"s_cselect_b32 s{KVF}, 1, 0")
    a(f"s_and_b32 s{SA+1}, s{SA+1}, 0xffff")
    a(f"s_mov_b32 s{SA+2}, {448*56}")
    a(f"s_mov_b32 s{OFF}, 0")
    a(f"s_movk_i32 s{STEP}, {16*56}")
    a.label("L_p1h_go")
    a(f"s_lshl_b32 s{M0}, s{HW}, 10")
    a(f"s_add_u32 s{M0}, s{M0}, {P1_W}")
    def dma1(i):
        a(f"s_add_u32 m0, s{M0}, {i*4096}")
        a("s_nop 0")
        a(f"buffer_load_dwordx4 v{V_WA}, s[{SA}:{SA+3}], s{OFF} offen lds")
        a(f"s_add_u32 s{OFF}, s{OFF}, s{STEP}")
    def slot_adv(tag):
        a(f"s_add_u32 s{M0}, s{M0}, 16384")
        a(f"s_add_u32 s{SL}, s{SL}, 1")
        a(f"s_cmp_lg_u32 s{SL}, 3")
        a(f"s_cbranch_scc1 L_p1h_nowrap{tag}")
        a(f"s_mov_b32 s{SL}, 0")
        a(f"s_sub_u32 s{M0}, s{M0}, {3*16384}")
        a.label(f"L_p1h_nowrap{tag}")
    for i in range(4): dma1(i)
    vm = ["x0"] * 4 + ["w0"] * 4
    def wait_for(*labels):
        last = max(i for i, l in enumerate(vm) if l in labels)
        a(f"s_waitcnt vmcnt({len(vm) - 1 - last})")
    def xd(c, g):
        a(f"s_add_u32 m0, s{XM0}, {P1_XN + c*16384 + g*1024}")
        a(f"s_movk_i32 s{T0}, {g*8*896 + c*128}")
        a(f"buffer_load_dwordx4 v{V_XO+(g&1)}, s[{SX}:{SX+3}], s{T0} offen lds")
        vm.append(f"x{c}")
    def wd(st, i):
        a(f"s_add_u32 m0, s{M0}, {(st % 3)*16384 + i*4096}")
        a("s_nop 0")
        a(f"buffer_load_dwordx4 v{V_WA}, s[{SA}:{SA+3}], s{OFF} offen lds")
        a(f"s_add_u32 s{OFF}, s{OFF}, s{STEP}")
        vm.append(f"w{st}")
    for g in range(4): xd(1, g)
    for i in range(4): wd(1, i)
    DEEP = int(os.environ.get("DEEP", "1"))
    if DEEP:
        for g in range(4): xd(2, g)
        for i in range(4): wd(2, i)
    a(f"s_bfe_u32 s{T0}, s2, 0x10003")
    a(f"s_lshl_b32 s{T0}, s{T0}, 7")
    a(f"v_mov_b32 v{V_ST+2}, s{T0}")
    a(f"v_mov_b32 v{V_ST+3}, {SCRN}")
    a(f"v_mov_b32 v{V_ST+1}, 0")
    wait_for("x0", "w0")
    stamp(a, 1)
    a(f"s_cmp_lg_u32 s{HW}, 3")
    a("s_cbranch_scc1 L_p1h_non")
    a(f"global_load_dword v{V_ST+1}, v{V_ST+2}, s[{S['DBG']}:{S['DBG']+1}] sc1")
    a.label("L_p1h_non")
    a("s_barrier")
    for s in range(14):
        if s == 2:
            a(f"ds_read_b32 v{V_ST+1}, v{V_ST+3}")
            a("s_waitcnt lgkmcnt(0)")
            a(f"v_readfirstlane_b32 s{NONCE}, v{V_ST+1}")
        if s == 5:
            a(f"v_mov_b32 v{V_WA}, v{V_WB}")
            a(f"s_mov_b32 s{SA}, s{SB}")
            a(f"s_mov_b32 s{SA+1}, s{SB+1}")
            a(f"s_mov_b32 s{SA+2}, s{SB+2}")
            a(f"s_add_u32 s{OFF}, s{S['CB']}, 12")
            a(f"s_lshl_b32 s{OFF}, s{OFF}, 7")
            a(f"s_mov_b32 s{STEP}, {16*3584}")
        if s + 2 <= 13 and not (DEEP and s == 0):
            for i in range(4): wd(s + 2, i)
        if DEEP:
            for c in {0: (3, 4), 1: (5,), 3: (6,)}.get(s, ()):
                for g in range(4): xd(c, g)
        elif s + 2 <= 6:
            for g in range(4): xd(s + 2, g)
        need = [l for l in (f"w{s+1}", f"x{s+1}") if l in vm]
        if need: wait_for(*need)
        if s == 1:
            if DEEP: wait_for("x3")
            a(f"s_cmp_lg_u32 s{HW}, 3")
            a("s_cbranch_scc1 L_p1h_nopub")
            a(f"s_mov_b32 s{T1}, {SPIN_MAX}")
            a.label("L_p1h_nonce")
            a(f"v_readfirstlane_b32 s{NONCE}, v{V_ST+1}")
            a(f"s_sub_u32 s{T1}, s{T1}, 1")
            a(f"s_cmp_eq_u32 s{T1}, 0")
            a("s_cbranch_scc1 L_p1h_nonced")
            a(f"s_cmp_lg_u32 s{NONCE}, 0")
            a("s_cbranch_scc1 L_p1h_nonced")
            a("s_sleep 2")
            a(f"global_load_dword v{V_ST+1}, v{V_ST+2}, s[{S['DBG']}:{S['DBG']+1}] sc1")
            a("s_waitcnt vmcnt(0)")
            a("s_branch L_p1h_nonce")
            a.label("L_p1h_nonced")
            a(f"ds_write_b32 v{V_ST+3}, v{V_ST+1}")
            a("s_waitcnt lgkmcnt(0)")
            a.label("L_p1h_nopub")
        if s == 11 and S.get("RELAY") is not None:
            a(f"s_lshr_b32 s{T0}, s2, 3")
            a(f"s_lshl_b32 s{T0}, s{T0}, 8")
            a(f"s_add_u32 s{T0}, s{T0}, {FL_KV}")
            a(f"v_min_u32 v9, 38, v{V_L}")
            a(f"v_lshl_add_u32 v9, v9, 2, s{T0}")
            if NREP < 32:
                a(f"v_and_b32 v10, {~((31 & ~(NREP-1)) << 8) & 0xffffffff}, v9")
                a(f"v_cmp_gt_u32 vcc, 32, v{V_L}")
                a("s_nop 1")
                a(f"v_cndmask_b32 v9, v9, v10, vcc")
            a(f"v_mov_b32 v10, 0")
            a(f"v_mov_b32 v{P+3}, {S['RELAY']}")
            a(f"v_mov_b32 v{P+4}, 0")
            a(f"s_mov_b32 s{T2}, 0")
        if s in (12, 13) and S.get("RELAY") is not None:
            a(f"s_cmp_lg_u32 s{HW}, 1")
            a(f"s_cbranch_scc1 L_p1h_nrl{s}")
            a("s_waitcnt vmcnt(0)")
            a(f"v_cmp_ne_u32 vcc, s{NONCE}, v10")
            a("s_nop 1")
            a(f"s_cmp_eq_u64 vcc, 0")
            a(f"s_cselect_b32 s{T2}, 1, 0")
            a(f"v_mov_b32 v{P+2}, s{T2}")
            a(f"ds_write2_b32 v{P+3}, v{P+2}, v{P+4} offset0:0 offset1:1")
            a("s_waitcnt lgkmcnt(0)")
            a.label(f"L_p1h_nrl{s}")
        if s in (11, 12) and S.get("RELAY") is not None:
            a(f"s_cmp_lg_u32 s{HW}, 1")
            a(f"s_cbranch_scc1 L_p1h_nkv{s}")
            a(f"s_cmp_lg_u32 s{T2}, 0")
            a(f"s_cbranch_scc1 L_p1h_nkv{s}")
            a(f"global_load_dword v10, v9, s[{WS}:{WS+1}] sc1")
            a.label(f"L_p1h_nkv{s}")
        a("s_barrier")
        if s < 6 and S.get('HSTAMP'): stamp(a, 2 + s)

V_TA, V_TB, V_XB = 2, 4, 6
V_SR = 10
V_GA = 12
V_CT = 16
V_AF, V_BF = 32, 48
V_ACC = 64
V_G = 216
V_CD = 192
V_CS = 192
V_MB = 208
V_EO = 216

def p1_rowstats(a, S):
    W, T0, T1 = S["W"], S["T0"], S["T1"]
    P = V_CT
    R = V_AF
    for r in range(8):
        a(f"v_mov_b32 v{R+r}, 0")
    a(f"s_lshl_b32 s{T0}, s{S['RB']}, 7")
    a(f"s_lshl_b32 s{T1}, s{S['CB']}, 3")
    a(f"s_add_u32 s{T0}, s{T0}, s{T1}")
    a(f"s_lshl_b32 s{T1}, s{W}, 1")
    a(f"s_add_u32 s{T0}, s{T0}, s{T1}")
    a(f"s_mul_i32 s{T0}, s{T0}, 896")
    a(f"v_lshlrev_b32 v{P}, 4, v{V_L}")
    a(f"v_add_u32 v{P}, s{T0}, v{P}")
    a("s_waitcnt lgkmcnt(0)")
    a("s_mov_b32 exec_hi, 0x00ffffff")
    a(f"global_load_dwordx4 {vr(R,4)}, v{P}, s[{S['X']}:{S['X']+1}]")
    a(f"global_load_dwordx4 {vr(R+4,4)}, v{P}, s[{S['X']}:{S['X']+1}] offset:896")
    a("s_mov_b64 exec, -1")
    a(f"s_or_b32 s{T1}, s2, s{W}")
    a(f"s_cmp_lg_u32 s{T1}, 0")
    a("s_cbranch_scc1 L_p1c_nononce")
    a(f"s_memrealtime s[{S['sb']}:{S['sb']+1}]")
    a(f"v_lshlrev_b32 v{P+1}, 7, v{V_L}")
    a("s_waitcnt lgkmcnt(0)")
    a(f"s_or_b32 s{T1}, s{S['sb']}, 1")
    a(f"v_mov_b32 v{P+2}, s{T1}")
    a("s_mov_b64 exec, 3")
    a(f"global_store_dword v{P+1}, v{P+2}, s[{S['DBG']}:{S['DBG']+1}] sc1")
    a("s_mov_b64 exec, -1")
    a.label("L_p1c_nononce")

def p1_csload(a, S):
    W, T0, T1 = S["W"], S["T0"], S["T1"]
    P = V_BF + 5
    T2 = S["T2"]; B0 = 64
    D = V_CD
    for r in range(12, 16):
        a(f"v_mov_b32 v{D+r}, 0")
    a(f"v_lshrrev_b32 v{P+3}, 3, v{V_L}")
    a(f"v_and_b32 v{P+4}, 7, v{V_L}")
    a(f"s_and_b32 s{T1}, s{W}, 1")
    a(f"s_cmp_eq_u32 s{T1}, 0")
    a(f"s_cselect_b32 s{B0}, s{S['WG']}, s{S['WU']}")
    a(f"s_cselect_b32 s{B0+1}, s{S['WG']+1}, s{S['WU']+1}")
    a(f"s_add_u32 s{T0}, s{S['CB']}, 12")
    a(f"s_sub_u32 s{T2}, s{S['CB']}, 4")
    a(f"s_cmp_ge_u32 s{W}, 2")
    a(f"s_cselect_b32 s{T0}, s{T0}, s{T2}")
    a(f"s_movk_i32 s{T2}, 3584")
    a(f"s_mov_b32 s{B0+2}, 0")
    a("s_cbranch_scc1 L_p1c_cs0")
    a(f"s_cmp_ge_u32 s{S['CB']}, 4")
    a("s_cbranch_scc1 L_p1c_cs0")
    a(f"s_mov_b32 s{B0}, s{S['WQ']}")
    a(f"s_mov_b32 s{B0+1}, s{S['WQ']+1}")
    a(f"s_lshl_b32 s{T0}, s{S['CB']}, 1")
    a(f"s_add_u32 s{T0}, s{T0}, s{T1}")
    a(f"s_movk_i32 s{T2}, 896")
    a(f"s_mov_b32 s{B0+2}, 1")
    a(f"s_cmp_lg_u32 s{T0}, 7")
    a("s_cbranch_scc1 L_p1c_cs0")
    a(f"s_mov_b32 s{B0+2}, 2")
    a(f"s_mul_i32 s{T0}, s{S['RB']}, {28*56}")
    a(f"v_mul_u32_u24 v{P+5}, 56, v{P+3}")
    a(f"v_and_b32 v{P+6}, 3, v{V_L}")
    a(f"v_lshlrev_b32 v{P+6}, 4, v{P+6}")
    a(f"v_min_u32 v{P+6}, 40, v{P+6}")
    a(f"v_add3_u32 v{P+5}, v{P+5}, v{P+6}, s{T0}")
    for q in range(4):
        for kv, base in ((0, S["WK"]), (1, S["WV"])):
            m = 0xf0f0f0f0 if kv else 0x0f0f0f0f
            a(f"s_mov_b32 exec_lo, {hex(m)}")
            a(f"s_mov_b32 exec_hi, {hex(m) if q < 3 else 0}")
            a(f"global_load_dwordx4 {vr(D+4*q,4)}, v{P+5}, s[{base}:{base+1}] offset:{q*8*56}")
    a("s_mov_b64 exec, -1")
    a("s_branch L_p1c_cs1")
    a.label("L_p1c_cs0")
    a(f"s_lshl_b32 s{T0}, s{T0}, 7")
    a(f"s_mul_i32 s{T1}, s{S['RB']}, 28")
    a(f"v_add_u32 v{P+5}, s{T1}, v{P+3}")
    a(f"v_mul_lo_u32 v{P+5}, v{P+5}, s{T2}")
    a(f"v_lshl_add_u32 v{P+5}, v{P+4}, 4, v{P+5}")
    a(f"v_add_u32 v{P+5}, s{T0}, v{P+5}")
    a(f"s_lshl_b32 s{T2}, s{T2}, 3")
    for q in range(4):
        if q == 3:
            a("s_mov_b32 exec_hi, 0")
        a(f"global_load_dwordx4 {vr(D+4*q,4)}, v{P+5}, s[{B0}:{B0+1}]")
        if q < 3:
            a(f"v_add_u32 v{P+5}, s{T2}, v{P+5}")
    a("s_mov_b64 exec, -1")
    a.label("L_p1c_cs1")
    A_ = D + 16
    a(f"v_lshl_add_u32 v{P+5}, v{P+4}, 3, v{P+3}")
    a(f"s_and_b32 s{T1}, s{W}, 1")
    a(f"s_cmp_eq_u32 s{B0+2}, 0")
    a("s_cbranch_scc1 L_p1c_pg")
    a(f"v_and_b32 v{P+6}, 24, v{P+5}")
    a(f"v_cmp_eq_u32 vcc, 24, v{P+6}")
    a(f"s_and_b32 s{T0}, s{B0+2}, 2")
    a(f"s_lshl_b32 s{T0}, s{T0}, 1")
    a(f"v_xor_b32 v{P+6}, s{T0}, v{P+5}")
    a(f"v_cndmask_b32 v{P+5}, v{P+5}, v{P+6}, vcc")
    a(f"v_and_b32 v{P+6}, 0x23, v{P+5}")
    a(f"v_bfe_u32 v{P+7}, v{P+5}, 4, 1")
    a(f"v_lshl_add_u32 v{P+6}, v{P+7}, 2, v{P+6}")
    a(f"v_bfe_u32 v{P+7}, v{P+5}, 2, 2")
    a(f"v_lshl_add_u32 v{P+6}, v{P+7}, 3, v{P+6}")
    a(f"s_lshl_b32 s{T1}, s{T1}, 6")
    a("s_branch L_p1c_pa")
    a.label("L_p1c_pg")
    a(f"v_and_b32 v{P+6}, 3, v{P+5}")
    a(f"v_bfe_u32 v{P+7}, v{P+5}, 3, 1")
    a(f"v_lshl_add_u32 v{P+6}, v{P+7}, 2, v{P+6}")
    a(f"v_bfe_u32 v{P+7}, v{P+5}, 2, 1")
    a(f"v_lshl_add_u32 v{P+6}, v{P+7}, 3, v{P+6}")
    a(f"v_lshrrev_b32 v{P+7}, 4, v{P+5}")
    a(f"v_lshl_add_u32 v{P+6}, v{P+7}, 5, v{P+6}")
    a(f"s_lshl_b32 s{T1}, s{T1}, 4")
    a.label("L_p1c_pa")
    a(f"v_add_u32 v{P+6}, s{T1}, v{P+6}")
    a(f"s_lshl_b32 s{T1}, s{S['CB']}, 4")
    a(f"s_add_u32 s{T1}, s{T1}, s{S['RB']}")
    a(f"s_lshl_b32 s{T0}, s{T1}, 2")
    a(f"s_add_u32 s{T0}, s{T0}, s{W}")
    a(f"s_lshl_b32 s{T0}, s{T0}, 2")
    a(f"s_add_u32 s{T0}, s{T0}, {FL_CS}")
    a(f"v_mov_b32 v{V_EO+28}, s{T0}")
    a(f"s_lshl_b32 s{T1}, s{T1}, 8")
    a(f"s_lshr_b32 s{T0}, s{W}, 1")
    a(f"s_add_u32 s{T1}, s{T1}, s{T0}")
    a(f"s_lshl_b32 s{T1}, s{T1}, 2")
    a(f"s_add_u32 s{T1}, s{T1}, {WS_CS}")
    a(f"v_lshl_add_u32 v{A_}, v{P+6}, 3, s{T1}")
    for b in range(3):
        a(f"v_bfe_u32 v{P+7}, v{V_L}, {3+b}, 1")
        a(f"v_cmp_eq_u32 s[{B0+4+2*b}:{B0+5+2*b}], 1, v{P+7}")

def p1_touch_chip(a, S, second):
    W, T0, T1, T2 = S["W"], S["T0"], S["T1"], S["T2"]
    sb = 74
    P = V_CT + 1
    bufs = [(S["X"], 56), (S["WG"], 49), (S["WU"], 49), (S["WQ"], 13)] if not second else \
           [(S["WD"], 49), (S["WO"], 13), (S["WD"], 49), (S["WO"], 13)]
    lim = {S["X"]: 2048*896, S["WG"]: 448*3584, S["WU"]: 448*3584, S["WQ"]: 448*896, S["WD"]: 1792*896, S["WO"]: 448*896}
    tag = "2" if second else "1"
    if second:
        a(f"s_cmp_ge_u32 s{W}, 2")
        a(f"s_cbranch_scc1 L_tc_skip")
    a(f"s_mov_b32 s{sb}, s{bufs[0][0]}")
    a(f"s_mov_b32 s{sb+1}, s{bufs[0][0]+1}")
    a(f"s_movk_i32 s{T0}, {bufs[0][1]}")
    a(f"s_mov_b32 s{T1}, {lim[bufs[0][0]] - 128}")
    for i in range(1, 2 if second else 4):
        b, n = bufs[i]
        a(f"s_cmp_eq_u32 s{W}, {i}")
        a(f"s_cselect_b32 s{sb}, s{b}, s{sb}")
        a(f"s_cselect_b32 s{sb+1}, s{b+1}, s{sb+1}")
        a(f"s_cselect_b32 s{T0}, {n}, s{T0}")
        a(f"s_cselect_b32 s{T1}, {lim[b] - 128}, s{T1}")
    a(f"s_sub_u32 s{T2}, s{T0}, 1")
    a(f"v_min_u32 v{P}, s{T2}, v{V_L}")
    a(f"s_mul_i32 s{T0}, s{T0}, s2")
    a(f"v_add_u32 v{P}, s{T0}, v{P}")
    a(f"v_lshlrev_b32 v{P}, 7, v{P}")
    a(f"v_min_u32 v{P}, s{T1}, v{P}")
    a(f"global_load_dword v{V_CT+2}, v{P}, s[{sb}:{sb+1}]")
    if second:
        a.label("L_tc_skip")

def p1_touch(a, S):
    W, T0, T1, T2 = S["W"], S["T0"], S["T1"], S["T2"]
    sb = 64
    P = V_BF + 8
    a(f"s_lshr_b32 s{T0}, s{S['CB']}, 2")
    a(f"s_lshl_b32 s{T0}, s{T0}, 5")
    a(f"s_lshl_b32 s{T1}, s{S['RB']}, 7")
    a(f"s_add_u32 s{T0}, s{T0}, s{T1}")
    a(f"v_and_b32 v{P}, 31, v{V_L}")
    a(f"v_add_u32 v{P}, s{T0}, v{P}")
    a(f"v_mul_u32_u24 v{P}, 896, v{P}")
    a(f"v_lshrrev_b32 v{P+1}, 5, v{V_L}")
    a(f"s_lshl_b32 s{T0}, s{W}, 1")
    a(f"v_add_u32 v{P+1}, s{T0}, v{P+1}")
    a(f"v_min_u32 v{P+1}, 6, v{P+1}")
    a(f"v_lshl_add_u32 v{P}, v{P+1}, 7, v{P}")
    a(f"global_load_dword v{V_EO+30}, v{P}, s[{S['X']}:{S['X']+1}]")
    a(f"s_and_b32 s{T0}, s{S['RB']}, 7")
    a(f"v_min_u32 v{P}, 55, v{V_L}")
    a(f"v_lshl_add_u32 v{P}, v{P}, 3, s{T0}")
    a(f"s_and_b32 s{T1}, s{W}, 1")
    a(f"s_cmp_eq_u32 s{T1}, 0")
    a(f"s_cselect_b32 s{sb}, s{S['WG']}, s{S['WU']}")
    a(f"s_cselect_b32 s{sb+1}, s{S['WG']+1}, s{S['WU']+1}")
    a(f"s_add_u32 s{T0}, s{S['CB']}, 12")
    a(f"s_sub_u32 s{T2}, s{S['CB']}, 4")
    a(f"s_cmp_ge_u32 s{W}, 2")
    a(f"s_cselect_b32 s{T0}, s{T0}, s{T2}")
    a(f"s_lshl_b32 s{T0}, s{T0}, 7")
    a(f"v_mul_u32_u24 v{P+1}, 3584, v{P}")
    a(f"s_cmp_ge_u32 s{W}, 2")
    a("s_cbranch_scc1 L_p1c_pf")
    a(f"s_cmp_ge_u32 s{S['CB']}, 4")
    a("s_cbranch_scc1 L_p1c_pf")
    a(f"s_mov_b32 s{sb}, s{S['WQ']}")
    a(f"s_mov_b32 s{sb+1}, s{S['WQ']+1}")
    a(f"s_lshl_b32 s{T0}, s{S['CB']}, 1")
    a(f"s_add_u32 s{T0}, s{T0}, s{T1}")
    a(f"s_min_u32 s{T0}, s{T0}, 6")
    a(f"s_lshl_b32 s{T0}, s{T0}, 7")
    a(f"v_mul_u32_u24 v{P+1}, 896, v{P}")
    a.label("L_p1c_pf")
    a(f"v_add_u32 v{P+1}, s{T0}, v{P+1}")
    a(f"global_load_dword v{V_EO+31}, v{P+1}, s[{sb}:{sb+1}]")

def p1_rowstats2(a, S, after=0):
    W, T0, T1 = S["W"], S["T0"], S["T1"]
    R = V_AF
    vs = [V_BF, V_BF + 2]; vq = [V_BF + 1, V_BF + 3]; t = V_BF + 4
    a(f"s_mov_b32 s{T0}, 0x3f803f80")
    a(f"s_mov_b32 s{T1}, 0xffff0000")
    for r in range(4):
        a(f"v_mov_b32 v{V_BF+r}, 0")
    a(f"s_waitcnt vmcnt({after})")
    for i in range(4):
        for g in range(2):
            x = R + 4 * g + i
            a(f"v_dot2_f32_bf16 v{vq[g]}, v{x}, v{x}, v{vq[g]}")
            a(f"v_dot2_f32_bf16 v{vs[g]}, v{x}, s{T0}, v{vs[g]}")
    a("s_nop 2")
    for dpp in ("quad_perm:[1,0,3,2]", "quad_perm:[2,3,0,1]", "row_half_mirror", "row_mirror"):
        for r in range(4):
            a(f"v_add_f32_dpp v{V_BF+r}, v{V_BF+r}, v{V_BF+r} {dpp} row_mask:0xf bank_mask:0xf")
    for op in ("v_permlane16_swap_b32", "v_permlane32_swap_b32"):
        for r in range(4):
            a(f"v_mov_b32 v{t+r}, v{V_BF+r}")
        a("s_nop 1")
        for r in range(4):
            a(f"{op} v{V_BF+r}, v{t+r}")
        a("s_nop 1")
        for r in range(4):
            a(f"v_add_f32 v{V_BF+r}, v{V_BF+r}, v{t+r}")
    a(f"v_cmp_eq_u32 vcc, 1, v{V_L}")
    a("s_nop 1")
    a(f"v_cndmask_b32 v{vs[0]}, v{vs[0]}, v{vs[1]}, vcc")
    a(f"v_cndmask_b32 v{vq[0]}, v{vq[0]}, v{vq[1]}, vcc")
    s, q = vs[0], vq[0]
    k = hex(f32bits(1.0 / 448))
    a(f"v_mul_f32 v{s}, {k}, v{s}")
    a(f"v_mul_f32 v{q}, {k}, v{q}")
    a(f"v_fma_f32 v{q}, -v{s}, v{s}, v{q}")
    a(f"v_max_f32 v{q}, 0, v{q}")
    a(f"v_cvt_pk_bf16_f32 v{q}, v{q}, v{q}")
    a(f"v_and_b32 v{q}, s{T1}, v{q}")
    a(f"v_add_f32 v{q}, {hex(f32bits(1e-5))}, v{q}")
    a(f"v_cvt_pk_bf16_f32 v{q}, v{q}, v{q}")
    a(f"v_and_b32 v{q}, s{T1}, v{q}")
    a(f"v_sqrt_f32 v{q}, v{q}")
    a(f"s_lshl_b32 s{T0}, s{S['RB']}, 4")
    a(f"v_cvt_pk_bf16_f32 v{V_EO+24}, v{s}, v{q}")
    a(f"s_add_u32 s{T0}, s{T0}, s{S['CB']}")
    a(f"s_lshl_b32 s{T0}, s{T0}, 2")
    a(f"s_add_u32 s{T0}, s{T0}, s{W}")
    a(f"s_lshl_b32 s{T0}, s{T0}, 4")
    a(f"s_add_u32 s{T0}, s{T0}, {WS_ST}")
    a(f"v_lshl_add_u32 v{V_EO+26}, v{V_L}, 3, s{T0}")

def p1_csproc(a, S):
    T0, T1 = S["T0"], S["T1"]
    a("s_waitcnt vmcnt(0)")
    D = V_CD; AC = V_CD + 20; U = V_CD + 28; B0 = 64
    a(f"s_mov_b32 s{T0}, 0x00003f80")
    a(f"s_mov_b32 s{T1}, 0x3f800000")
    for q_ in range(4):
        for r in range(4):
            c0 = "0" if q_ == 0 else f"v{AC+2*r}"
            c1 = "0" if q_ == 0 else f"v{AC+2*r+1}"
            a(f"v_dot2_f32_bf16 v{AC+2*r}, v{D+4*q_+r}, s{T0}, {c0}")
            a(f"v_dot2_f32_bf16 v{AC+2*r+1}, v{D+4*q_+r}, s{T1}, {c1}")
    a("s_nop 2")
    for r in range(8):
        a(f"v_add_f32_dpp v{AC+r}, v{AC+r}, v{AC+r} row_ror:8 row_mask:0xf bank_mask:0xf")
    for r in range(4):
        a(f"v_cndmask_b32 v{AC+r}, v{AC+2*r}, v{AC+2*r+1}, s[{B0+4}:{B0+5}]")
    for n, op, mk in ((4, "v_permlane16_swap_b32", B0 + 6), (2, "v_permlane32_swap_b32", B0 + 8)):
        for r in range(n):
            a(f"v_mov_b32 v{U+r}, v{AC+r}")
        a("s_nop 1")
        for r in range(n):
            a(f"{op} v{AC+r}, v{U+r}")
        a("s_nop 1")
        for r in range(n):
            a(f"v_add_f32 v{AC+r}, v{AC+r}, v{U+r}")
        for r in range(n // 2):
            a(f"v_cndmask_b32 v{AC+r}, v{AC+2*r}, v{AC+2*r+1}, s[{mk}:{mk+1}]")
    a(f"global_store_dword v{D+16}, v{AC}, s[{S['WS']}:{S['WS']+1}] sc1")

def p1_compute_setup(a, S):
    W, T0, T1, T2 = S["W"], S["T0"], S["T1"], S["T2"]
    sb = S["sb"]
    C = dict(EPI=sb + 10, IT=sb, SL=sb + 1, FLAG=sb + 2, RT=sb + 3, FWD=sb + 4, WRAP=sb + 5, M1=sb + 6, M2=sb + 8)
    P = V_CT
    a(f"v_bfe_u32 v{P}, v{V_L}, 2, 2")
    a(f"v_lshrrev_b32 v{P+1}, 5, v{V_L}")
    a(f"v_bfe_u32 v{P+2}, v{V_L}, 4, 1")
    a(f"v_and_b32 v{P+3}, 1, v{V_L}")
    a(f"v_bfe_u32 v{P+4}, v{V_L}, 1, 1")
    a(f"v_bfe_u32 v{P+5}, v{V_L}, 3, 1")
    a(f"v_lshlrev_b32 v{P+6}, 3, v{P+4}")
    a(f"v_add_u32 v{P+6}, {P1_W}, v{P+6}")
    a(f"v_lshl_add_u32 v{P+7}, v{P}, 7, v{P+6}")
    a(f"v_lshl_add_u32 v{P+7}, v{P+1}, 11, v{P+7}")
    a(f"s_and_b32 s{T0}, s{W}, 2")
    a(f"v_lshl_add_u32 v{P+8}, v{P+2}, 10, v{P+7}")
    a(f"v_lshl_add_u32 v{P+8}, v{P+3}, 4, v{P+8}")
    a(f"v_lshl_add_u32 v{P+9}, v{P+2}, 1, v{P+5}")
    a(f"v_xor_b32 v{P+9}, s{T0}, v{P+9}")
    a(f"v_lshl_add_u32 v{V_TB}, v{P+9}, 5, v{P+8}")
    a(f"v_xor_b32 v{V_TB+1}, 32, v{V_TB}")
    a(f"v_mov_b32 v{V_TA}, v{V_TB}")
    a(f"v_mov_b32 v{V_TA+1}, v{V_TB+1}")
    a(f"s_cmp_ge_u32 s{S['CB']}, 4")
    a("s_cbranch_scc1 L_p1c_go")
    a(f"s_lshl_b32 s{T1}, s{S['CB']}, 2")
    a(f"s_add_u32 s{T1}, s{T1}, s{T0}")
    a(f"s_cmp_eq_u32 s{T1}, 14")
    a("s_cbranch_scc1 L_p1c_kvs")
    a(f"s_lshl_b32 s{T1}, s{T0}, 9")
    a(f"v_add_u32 v{P+8}, s{T1}, v{P+7}")
    a(f"v_lshl_add_u32 v{P+8}, v{P+2}, 4, v{P+8}")
    a(f"v_lshl_add_u32 v{P+8}, v{P+3}, 5, v{P+8}")
    a(f"v_lshl_add_u32 v{V_TA}, v{P+5}, 6, v{P+8}")
    a(f"v_xor_b32 v{V_TA+1}, 64, v{V_TA}")
    a("s_branch L_p1c_go")
    a.label("L_p1c_kvs")
    a(f"v_lshl_add_u32 v{P+8}, v{P}, 6, v{P+6}")
    a(f"v_lshl_add_u32 v{P+8}, v{P+1}, 9, v{P+8}")
    a(f"v_lshl_add_u32 v{P+8}, v{P+3}, 5, v{P+8}")
    a(f"v_lshl_add_u32 v{P+8}, v{P+2}, 4, v{P+8}")
    a(f"v_and_b32 v{P+9}, 19, v{V_L}")
    a(f"v_cmp_eq_u32 vcc, 17, v{P+9}")
    a(f"v_add_u32 v{P+9}, 1024, v{P+8}")
    a(f"v_add_u32 v{P+10}, 1032, v{P+8}")
    a(f"v_cndmask_b32 v{V_TA}, v{P+9}, v{P+10}, vcc")
    a(f"v_add_u32 v{V_TA+1}, 2048, v{V_TA}")
    a.label("L_p1c_go")
    a(f"v_and_b32 v{P}, 31, v{V_L}")
    a(f"v_lshlrev_b32 v{P}, 7, v{P}")
    a(f"s_and_b32 s{T1}, s{W}, 1")
    a(f"s_lshl_b32 s{T1}, s{T1}, 13")
    a(f"v_add_u32 v{P}, s{T1}, v{P}")
    a(f"v_bfe_u32 v{P+2}, v{V_L}, 1, 3")
    a(f"v_xor_b32 v{P+1}, v{P+1}, v{P+2}")
    for i in range(4):
        a(f"v_xor_b32 v{P+2}, {2*i}, v{P+1}")
        a(f"v_lshl_add_u32 v{V_XB+i}, v{P+2}, 4, v{P}")
    a(f"s_lshl_b32 s{C['RT']}, s{S['RB']}, 2")
    a(f"s_and_b32 s{T1}, s{W}, 1")
    a(f"s_lshl_b32 s{T1}, s{T1}, 1")
    a(f"s_add_u32 s{C['RT']}, s{C['RT']}, s{T1}")
    a(f"v_lshlrev_b32 v{P}, 4, v{V_L}")
    a(f"v_and_b32 v{P+4}, 31, v{V_L}")
    a(f"v_lshrrev_b32 v{P+5}, 5, v{V_L}")
    a(f"v_lshlrev_b32 v{P+6}, 4, v{P+4}")
    a(f"v_lshl_add_u32 v{P+6}, v{P+5}, 10, v{P+6}")
    a(f"s_lshl_b32 s{T0}, s{C['RT']}, 8")
    a(f"s_add_u32 s{T0}, s{T0}, {WS_ST}")
    a(f"v_lshl_add_u32 v{P+7}, v{P+4}, 3, s{T0}")
    a(f"s_and_b32 s{T0}, s{W}, 2")
    a(f"s_lshl_b32 s{T0}, s{T0}, 8")
    a(f"s_lshl_b32 s{T1}, s{S['CB']}, 14")
    a(f"s_add_u32 s{T1}, s{T1}, s{T0}")
    a(f"s_add_u32 s{T1}, s{T1}, {WS_CS + 4096}")
    a(f"v_lshl_add_u32 v{V_GA}, v{V_L}, 3, s{T1}")
    a(f"v_add_u32 v{V_GA+1}, 8192, v{V_GA}")
    a(f"s_lshl_b32 s{T1}, s{S['CB']}, 8")
    a(f"s_add_u32 s{T1}, s{T1}, {FL_CS}")
    a(f"v_lshl_add_u32 v{V_GA+2}, v{V_L}, 2, s{T1}")
    a(f"v_mov_b32 v{P+12}, {SCRN}")
    a(f"s_mov_b32 s{C['FWD']}, 16384")
    a(f"s_mov_b32 s{C['WRAP']}, {(-2*16384) & 0xffffffff}")
    a(f"s_mov_b32 s{C['SL']}, 0")
    a(f"s_mov_b32 s{C['FLAG']}, 0")
    a(f"s_mov_b32 s{C['M1']}, 0")
    a(f"s_cmp_lt_u32 s{S['CB']}, 4")
    a(f"s_cselect_b32 s{C['EPI']}, {QEPI}, 99")
    for r in range(64):
        a(f"v_mov_b32 v{V_ACC+r}, 0")
    return C

POLL_AT = int(os.environ.get("POLL_AT", "4"))
EPI_AT = int(os.environ.get("EPI_AT", "1"))
FAST_AT = int(os.environ.get("FAST_AT", "2"))
FLAG_LAG = int(os.environ.get("FLAG_LAG", "1"))

def p1_compute(a, S, C, sc=" sc1", peek=None, pre=None, mid=None):
    W, T0, T1, T2 = S["W"], S["T0"], S["T1"], S["T2"]
    WS, NONCE = S["WS"], S["NONCE"]
    P = V_CT
    def acc(t, b, ps=0): return V_ACC + 64 * ps + 16 * (t + 2 * b)
    def reads(buf, j, kv=False):
        out = []
        for b in range(2):
            out.append(f"ds_read_b128 {vr(V_BF+8*buf+4*b,4)}, v{V_XB+j} offset:{4096*b}")
        for t in range(2):
            for hf in range(2):
                out.append(f"ds_read_b64_tr_b16 {vr(V_AF+8*buf+4*t+2*hf,2)}, v{V_TA+t} offset:{j*4096 + hf*(256 if kv else 512)}")
        return out
    def poll_ins():
        return [f"global_load_dwordx2 {vr(P+8,2)}, v{P+7}, s[{WS}:{WS+1}] sc1",
                f"global_load_dwordx2 {vr(P+10,2)}, v{P+7}, s[{WS}:{WS+1}] offset:256 sc1",
                f"global_load_dword v{V_GA+3}, v{V_GA+2}, s[{WS}:{WS+1}] sc1"]
    def gather_ins():
        return [f"global_load_dwordx2 {vr(V_G+2*q,2)}, v{V_GA+(q>>3)}, s[{WS}:{WS+1}] offset:{1024*(q&7) - 4096}" for q in range(16)]
    def flag(addr_s):
        a("s_waitcnt vmcnt(0)")
        a(f"v_mov_b32 v{P+1}, s{addr_s}")
        a(f"v_mov_b32 v{P+2}, s{NONCE}")
        a("s_mov_b64 exec, 1")
        a(f"global_store_dword v{P+1}, v{P+2}, s[{WS}:{WS+1}] sc1")
        a("s_mov_b64 exec, -1")
    a("s_waitcnt lgkmcnt(0)")
    a("s_barrier")
    stamp(a, 1)
    def loop(tag, kv, ps):
        a(f"s_mov_b32 s{C['IT']}, 7")
        a.label(f"L_p1c_loop{tag}")
        for j in range(4):
            cur, nxt = j & 1, (j & 1) ^ 1
            a("s_waitcnt lgkmcnt(0)")
            if j == 3:
                a("s_barrier")
            jj = (j + 1) & 3
            rd = reads(nxt, jj, kv)
            fills = [rd[0:3], rd[3:6], [], []]
            fills[2] += [f"v_add_u32 v{V_XB+jj}, s{C['FWD']}, v{V_XB+jj}"]
            if ps == 0 and j < 2:
                for kk in (2, 3):
                    z = (2 * j + kk - 2)
                    fills[kk] += [f"s_set_gpr_idx_on s{C['M1']}, gpr_idx(DST)"] + \
                                 [f"v_mov_b32 v{V_ACC+64+[0,3,6,8][z]+i}, 0" for i in range(3 if z < 2 else 2)] + ["s_set_gpr_idx_off"]
                if j == 1:
                    fills[3] += [f"s_add_u32 s{C['M1']}, s{C['M1']}, 9"]
            if j == 2:
                fills[2] += [f"s_add_u32 s{C['SL']}, s{C['SL']}, 1",
                             f"s_cmp_eq_u32 s{C['SL']}, 3",
                             f"s_cselect_b32 s{T0}, s{C['WRAP']}, s{C['FWD']}",
                             f"s_cselect_b32 s{C['SL']}, 0, s{C['SL']}"]
                fills[3] += [f"v_add_u32 v{V_TA}, s{T0}, v{V_TA}", f"v_add_u32 v{V_TA+1}, s{T0}, v{V_TA+1}"]
            k = 0
            for b in range(2):
                for t in range(2):
                    A_, B_ = vr(V_AF + 8 * cur + 4 * t, 4), vr(V_BF + 8 * cur + 4 * b, 4)
                    if kv and t == 1:
                        A_, B_ = B_, A_
                    a(f"{MFMA} {vr(acc(t,b,ps),16)}, {A_}, {B_}, {vr(acc(t,b,ps),16)}")
                    for ins in fills[k]:
                        a(ins)
                    k += 1
        if ps == 0:
            a(f"s_getpc_b64 s[{C['M2']}:{C['M2']+1}]")
            a("s_branch L_p1c_hook")
        if ps == 1:
            a(f"s_cmp_eq_u32 s{C['IT']}, s{C['EPI']}")
            a("s_cbranch_scc1 L_p1c_epia")
            a(f"s_cmp_eq_u32 s{C['IT']}, {EPI_AT+4}")
            a("s_cbranch_scc1 L_p1c_bpoll")
            a(f"s_cmp_eq_u32 s{C['IT']}, {EPI_AT+2}")
            a("s_cbranch_scc1 L_p1c_bchk")
            a(f"s_cmp_eq_u32 s{C['IT']}, {EPI_AT}")
            a("s_cbranch_scc1 L_p1c_bepi")
            a(f"s_cmp_eq_u32 s{C['FLAG']}, 0")
            a(f"s_cbranch_scc1 L_p1c_back")
            if S.get("HSTAMP"): stamp(a, 1)
            a("s_waitcnt vmcnt(0)")
            if S.get("HSTAMP"): stamp(a, 2)
            a(f"v_lshl_add_u32 v{P+1}, v{V_L}, 8, s{C['FLAG']}")
            a(f"v_mov_b32 v{P+2}, s{NONCE}")
            a(f"s_mov_b32 exec_lo, s{C['M1']}")
            a("s_mov_b32 exec_hi, 0")
            a(f"global_store_dword v{P+1}, v{P+2}, s[{WS}:{WS+1}] sc1")
            a("s_mov_b64 exec, -1")
            a(f"s_mov_b32 s{C['FLAG']}, 0")
            a.label("L_p1c_back")
            if peek: peek()
        a(f"s_sub_u32 s{C['IT']}, s{C['IT']}, 1")
        a(f"s_cmp_lg_u32 s{C['IT']}, 0")
        a(f"s_cbranch_scc1 L_p1c_loop{tag}")
    def pass_entry(kv):
        for ins in reads(0, 0, kv):
            a(ins)
        a(f"v_add_u32 v{V_XB}, s{C['FWD']}, v{V_XB}")
    a(f"s_lshl_b32 s{T1}, s{S['CB']}, 2")
    a(f"s_and_b32 s{T0}, s{W}, 2")
    a(f"s_add_u32 s{T1}, s{T1}, s{T0}")
    a(f"s_cmp_eq_u32 s{T1}, 14")
    a("s_cbranch_scc0 L_p1c_passa")
    pass_entry(True)
    loop("v", True, 0)
    a("s_branch L_p1c_mid")
    a.label("L_p1c_passa")
    pass_entry(False)
    loop("a", False, 0)
    a.label("L_p1c_mid")
    stamp(a, 2)
    a("s_waitcnt lgkmcnt(0)")
    a(f"v_add_u32 v{V_TA}, 16384, v{V_TB}")
    a(f"v_add_u32 v{V_TA+1}, 16384, v{V_TB+1}")
    for i in range(4):
        a(f"v_add_u32 v{V_XB+i}, {(-(8 if i == 0 else 7)*16384) & 0xffffffff}, v{V_XB+i}")
    pass_entry(False)
    if mid: mid()
    if QEPI == 8:
        a(f"s_mov_b32 s{C['IT']}, 8")
        a(f"s_cmp_lt_u32 s{S['CB']}, 4")
        a("s_cbranch_scc1 L_p1c_epia")
    loop("b", False, 1)
    if pre:
        a("s_waitcnt lgkmcnt(0)")
        pre()
    if S.get("HSTAMP"): stamp(a, 5)
    a(f"s_add_u32 s{T1}, s{S['CB']}, 12")
    def corr(kv, ps):
        for b in range(2):
            for t in range(2):
                A_, B_ = vr(V_CS + 8 * ps + 4 * t, 4), vr(V_MB + 4 * b, 4)
                if kv and t == 1:
                    A_, B_ = B_, A_
                a(f"{MFMA} {vr(acc(t,b,ps),16)}, {A_}, {B_}, {vr(acc(t,b,ps),16)}")
    def gu_epilogue(ps):
        corr(False, ps)
        a(f"s_lshl_b32 s{T1}, s{T1}, 2")
        a(f"s_and_b32 s{T0}, s{W}, 2")
        a(f"s_add_u32 s{T1}, s{T1}, s{T0}")
        a(f"s_mul_i32 s{T0}, s{C['RT']}, 112")
        a(f"s_add_u32 s{T0}, s{T0}, s{T1}")
        a(f"s_lshl_b32 s{T0}, s{T0}, 10")
        a(f"s_add_u32 s{T0}, s{T0}, {WS_H}")
        a(f"v_add_u32 v{P+1}, s{T0}, v{P}")
        a(f"v_add_u32 v{P+2}, {112*1024}, v{P+1}")
        a("s_nop 3")
        for b in range(2):
            for t in range(2):
                c = acc(t, b, ps); o = V_EO + 4 * (t + 2 * b)
                for r in range(8):
                    a(f"v_max_f32 v{c+r}, 0, v{c+r}")
                for r in range(8):
                    a(f"v_mul_f32 v{c+r}, v{c+r}, v{c+8+r}")
                for r in range(4):
                    a(f"v_cvt_pk_bf16_f32 v{o+r}, v{c+2*r}, v{c+2*r+1}")
                a(f"global_store_dwordx4 v{P+1+b}, {vr(o,4)}, s[{WS}:{WS+1}] offset:{1024*t}{sc}")
    gu_epilogue(1)
    a("s_branch L_p1c_done")
    RET = f"s_setpc_b64 s[{C['M2']}:{C['M2']+1}]"
    def fast_ins():
        return poll_ins()[:2] + [f"global_load_dwordx2 {vr(V_G+2*q,2)}, v{P+14+(q>>3)}, s[{WS}:{WS+1}] offset:{1024*(q&7) - 4096} sc1" for q in range(16)]
    a.label("L_p1c_hook")
    a(f"s_add_u32 s{C['M2']}, s{C['M2']}, 4")
    a(f"s_addc_u32 s{C['M2']+1}, s{C['M2']+1}, 0")
    a(f"s_cmp_lg_u32 s{C['IT']}, 6")
    a(f"s_cbranch_scc1 L_p1c_h5")
    a(f"ds_read_b32 v{P+13}, v{P+12}")
    p1_csproc(a, S)
    a("s_waitcnt lgkmcnt(0)")
    a(f"v_mov_b32 v{V_EO+25}, v{P+13}")
    a(f"v_readfirstlane_b32 s{NONCE}, v{P+13}")
    a("s_mov_b64 exec, 3")
    a(f"global_store_dwordx2 v{V_EO+26}, {vr(V_EO+24,2)}, s[{WS}:{WS+1}] sc1")
    a("s_mov_b64 exec, -1")
    a(f"s_cmp_eq_u32 s66, 0")
    a(f"s_cbranch_scc1 L_p1c_h3")
    a(f"v_mov_b32 v{V_CD+21}, v{P+13}")
    a(f"v_add_u32 v{V_CD+16}, {WS_CQ - WS_CS}, v{V_CD+16}")
    a(f"global_store_dwordx2 v{V_CD+16}, {vr(V_CD+20,2)}, s[{WS}:{WS+1}] sc1")
    a(RET)
    a.label("L_p1c_h5")
    a(f"s_cmp_lg_u32 s{C['IT']}, 4")
    a(f"s_cbranch_scc1 L_p1c_h4")
    a("s_waitcnt vmcnt(0)")
    a("s_mov_b64 exec, 1")
    a(f"global_store_dword v{V_EO+28}, v{P+13}, s[{WS}:{WS+1}] sc1")
    a("s_mov_b64 exec, -1")
    a(RET)
    a.label("L_p1c_h4")
    a(f"s_cmp_lg_u32 s{C['IT']}, {FAST_AT}")
    a(f"s_cbranch_scc1 L_p1c_h3")
    a(f"s_cmp_ge_u32 s{S['CB']}, 4")
    a(f"s_cbranch_scc1 L_p1c_h3")
    a(f"v_add_u32 v{P+14}, {WS_CQ - WS_CS}, v{V_GA}")
    a(f"v_add_u32 v{P+15}, {WS_CQ - WS_CS}, v{V_GA+1}")
    for ins in fast_ins(): a(ins)
    a.label("L_p1c_h3")
    a(RET)
    def check(tag, tags, again):
        a(f"s_mov_b32 s{T2}, {SPIN_MAX}")
        a.label(f"L_p1c_ck{tag}")
        a("s_waitcnt vmcnt(0)")
        a(f"v_xor_b32 v{P+1}, s{NONCE}, v{tags[0]}")
        for t_ in tags[1:]:
            a(f"v_xor_b32 v{P+2}, s{NONCE}, v{t_}")
            a(f"v_or_b32 v{P+1}, v{P+1}, v{P+2}")
        a(f"v_cmp_ne_u32 vcc, 0, v{P+1}")
        a(f"s_sub_u32 s{T2}, s{T2}, 1")
        a(f"s_cmp_eq_u32 s{T2}, 0")
        a(f"s_cbranch_scc1 L_p1c_ok{tag}")
        a(f"s_cbranch_vccz L_p1c_ok{tag}")
        a("s_sleep 4")
        for ins in again: a(ins)
        a(f"s_branch L_p1c_ck{tag}")
        a.label(f"L_p1c_ok{tag}")
    def csum(col):
        a(f"v_add_f32 v{P+14+col}, v{V_G+col}, v{V_G+2+col}")
        a(f"v_add_f32 v{P+3}, v{V_G+4+col}, v{V_G+6+col}")
        for q in range(4, 16, 2):
            a(f"v_add_f32 v{P+14+col}, v{P+14+col}, v{V_G+2*q+col}")
            a(f"v_add_f32 v{P+3}, v{P+3}, v{V_G+2*q+2+col}")
        a(f"v_add_f32 v{P+14+col}, v{P+14+col}, v{P+3}")
    def afrag(ps):
        c = V_CS + 8 * ps; s_ = P + 14 + ps
        a(f"v_and_b32 v{c+1}, 0xffff0000, v{s_}")
        a(f"v_sub_f32 v{c+2}, v{s_}, v{c+1}")
        a(f"v_and_b32 v{c+3}, 0xffff0000, v{c+2}")
        a(f"v_sub_f32 v{c+2}, v{c+2}, v{c+3}")
        a(f"v_lshrrev_b32 v{c}, 16, v{c+1}")
        a(f"v_or_b32 v{c}, v{c}, v{c+3}")
        a(f"v_lshrrev_b32 v{c+1}, 16, v{c+2}")
        for r in (4, 5, 2, 3, 6, 7):
            a(f"v_mov_b32 v{c+r}, 0")
        a(f"v_permlane32_swap_b32 v{c}, v{c+4}")
        a(f"v_permlane32_swap_b32 v{c+1}, v{c+5}")
    a.label("L_p1c_bpoll")
    for ins in poll_ins(): a(ins)
    a("s_branch L_p1c_back")
    a.label("L_p1c_bchk")
    check("b", [P + 9, P + 11, V_GA + 3], poll_ins())
    for ins in gather_ins(): a(ins)
    a("s_branch L_p1c_back")
    a.label("L_p1c_bepi")
    a("s_waitcnt vmcnt(0)")
    csum(1)
    a(f"s_cmp_ge_u32 s{S['CB']}, 4")
    a("s_cbranch_scc1 L_p1c_epia2")
    afrag(1)
    a("s_branch L_p1c_back")
    a.label("L_p1c_epia")
    check("a", [V_G + 2 * q + 1 for q in range(16)] + [P + 9, P + 11], fast_ins())
    a.label("L_p1c_epia2")
    stamp(a, 3)
    csum(0)
    afrag(0)
    afrag(1)
    for b in range(2):
        m = V_MB + 4 * b
        a(f"v_and_b32 v{m+1}, 0xffff, v{P+8+2*b}")
        a(f"v_xor_b32 v{m+1}, 0x8000, v{m+1}")
        a(f"v_lshl_or_b32 v{m}, v{m+1}, 16, v{m+1}")
        a(f"v_mov_b32 v{m+2}, 0")
        a(f"v_mov_b32 v{m+3}, 0")
        a(f"v_and_b32 v{V_SR+b}, 0xffff0000, v{P+8+2*b}")
        a(f"v_rcp_f32 v{V_SR+b}, v{V_SR+b}")
    a("s_mov_b32 exec_lo, 0")
    for b in range(2):
        a(f"v_mov_b32 v{V_MB+4*b}, 0")
        a(f"v_mov_b32 v{V_MB+4*b+1}, 0")
    a("s_mov_b64 exec, -1")
    a(f"s_cmp_lt_u32 s{S['CB']}, 4")
    a("s_cbranch_scc1 L_p1c_epiq")
    a(f"s_sub_u32 s{T1}, s{S['CB']}, 4")
    gu_epilogue(0)
    if S.get("HSTAMP"): stamp(a, 4)
    a("s_branch L_p1c_back")
    a.label("L_p1c_epiq")
    a(f"s_cmp_lg_u32 s{S['CB']}, 3")
    a("s_cbranch_scc1 L_p1c_epiq2")
    a(f"s_cmp_ge_u32 s{W}, 2")
    a("s_cbranch_scc1 L_p1c_epikv")
    a.label("L_p1c_epiq2")
    corr(False, 0)
    a(f"s_mul_i32 s{T0}, s{C['RT']}, {56*512}")
    a(f"s_lshl_b32 s{T1}, s{S['CB']}, 13")
    a(f"s_add_u32 s{T0}, s{T0}, s{T1}")
    a(f"s_and_b32 s{T1}, s{W}, 2")
    a(f"s_lshl_b32 s{T1}, s{T1}, 11")
    a(f"s_add_u32 s{T0}, s{T0}, s{T1}")
    a(f"s_add_u32 s{T0}, s{T0}, {WS_Q}")
    a(f"v_add_u32 v{P+1}, s{T0}, v{P+6}")
    a(f"v_add_u32 v{P+2}, {56*512}, v{P+1}")
    for b in range(2):
        a(f"v_mul_f32 v{P+8+b}, {hex(f32bits(QSCALE))}, v{V_SR+b}")
    a("s_nop 1")
    for b in range(2):
        for t in range(2):
            c = acc(t, b); o = V_EO + 8 * (t + 2 * b)
            for r in range(16):
                a(f"v_mul_f32 v{c+r}, v{c+r}, v{P+8+b}")
            for r in range(8):
                a(f"v_cvt_pk_bf16_f32 v{o+r}, v{c+2*r}, v{c+2*r+1}")
            a(f"global_store_dwordx4 v{P+1+b}, {vr(o,4)}, s[{WS}:{WS+1}] offset:{2048*t}{sc}")
            a(f"global_store_dwordx4 v{P+1+b}, {vr(o+4,4)}, s[{WS}:{WS+1}] offset:{2048*t+512}{sc}")
    a(f"s_lshl_b32 s{T0}, s{C['RT']}, 7")
    a(f"s_lshl_b32 s{T1}, s{S['CB']}, 3")
    a(f"s_add_u32 s{T0}, s{T0}, s{T1}")
    a(f"s_and_b32 s{T1}, s{W}, 2")
    a(f"s_lshl_b32 s{T1}, s{T1}, 1")
    a(f"s_add_u32 s{T0}, s{T0}, s{T1}")
    a(f"s_add_u32 s{C['FLAG']}, s{T0}, {FL_Q}")
    a(f"s_mov_b32 s{C['M1']}, 1")
    if S.get("HSTAMP"): stamp(a, 4)
    a("s_branch L_p1c_back")
    a.label("L_p1c_epikv")
    M1, M2 = C["M1"], C["M2"]
    corr(True, 0)
    a(f"v_cmp_eq_u32 s[{M1}:{M1+1}], 1, v{P+5}")
    a(f"v_lshlrev_b32 v{P+14}, 4, v{P+5}")
    a(f"s_mul_i32 s{T0}, s{C['RT']}, {KVT}")
    a(f"s_add_u32 s{T0}, s{T0}, {WS_KV + 2048}")
    a(f"v_mov_b32 v{P+8}, 0x3f803f80")
    a(f"v_mov_b32 v{P+9}, 0x00003f80")
    a(f"v_mov_b32 v{P+10}, 0")
    a(f"v_cmp_eq_u32 vcc, 28, v{P+4}")
    a(f"v_cmp_le_u32 s[{M2}:{M2+1}], 28, v{P+4}")
    a("s_nop 0")
    a(f"v_cndmask_b32 v{P+13}, v{P+10}, v{P+8}, vcc")
    for b in range(2):
        a(f"v_add_u32 v{P+1}, s{T0}, v{P+6}")
        a(f"v_add_u32 v{P+2}, s{T0}, v{P}")
        c = acc(0, b); e = V_EO + 10 * b; o = e + 2
        for r in range(16):
            a(f"v_mul_f32 v{c+r}, v{c+r}, v{V_SR+b}")
        for r in range(8):
            a(f"v_cvt_pk_bf16_f32 v{o+r}, v{c+2*r}, v{c+2*r+1}")
        a(f"v_cndmask_b32 v{o+6}, v{o+6}, v{P+8}, s[{M1}:{M1+1}]")
        a(f"v_cndmask_b32 v{o+7}, v{o+7}, v{P+9}, s[{M1}:{M1+1}]")
        a(f"v_mov_b32 v{e}, v{o+6}")
        a(f"v_mov_b32 v{e+1}, v{o+7}")
        a(f"v_mov_b32 v{P+3}, v{o+6}")
        a(f"v_mov_b32 v{P+11}, v{o+7}")
        a(f"global_store_dwordx4 v{P+1}, {vr(o,4)}, s[{WS}:{WS+1}] offset:-2048{sc}")
        a(f"global_store_dwordx4 v{P+1}, {vr(o+4,4)}, s[{WS}:{WS+1}] offset:-1536{sc}")
        a(f"v_permlane32_swap_b32 v{P+3}, v{e}")
        a(f"v_permlane32_swap_b32 v{P+11}, v{e+1}")
        a("s_nop 1")
        a(f"v_cndmask_b32 v{e}, v{e}, v{P+3}, s[{M1}:{M1+1}]")
        a(f"v_cndmask_b32 v{e+1}, v{e+1}, v{P+11}, s[{M1}:{M1+1}]")
        a(f"global_store_dwordx4 v{P+1}, {vr(e,4)}, s[{WS}:{WS+1}]{sc}")
        a(f"global_store_dwordx4 v{P+1}, {vr(e+4,4)}, s[{WS}:{WS+1}] offset:512{sc}")
        c = acc(1, b); o = V_EO + 20
        for h in range(2):
            for r0 in (0, 8):
                for r in range(r0, r0 + 8):
                    a(f"v_readlane_b32 s{64+r-r0}, v{V_SR+b}, {(r & 3) + 8 * (r >> 2) + 4 * h}")
                a("s_mov_b32 exec_hi, 0" if h == 0 else "s_mov_b32 exec_lo, 0")
                a("s_nop 0")
                for r in range(r0, r0 + 8):
                    a(f"v_mul_f32 v{c+r}, s{64+r-r0}, v{c+r}")
                a("s_mov_b64 exec, -1")
        for r in range(8):
            a(f"v_cvt_pk_bf16_f32 v{o+r}, v{c+2*r}, v{c+2*r+1}")
        for r in range(8):
            a(f"v_cndmask_b32 v{o+r}, v{o+r}, v{P+13}, s[{M2}:{M2+1}]")
        a(f"global_store_dwordx4 v{P+2}, {vr(o,4)}, s[{WS}:{WS+1}] offset:2048{sc}")
        a(f"global_store_dwordx4 v{P+2}, {vr(o+4,4)}, s[{WS}:{WS+1}] offset:3072{sc}")
        a(f"s_add_u32 s{T0}, s{T0}, {KVT}")
    a(f"s_lshl_b32 s{T0}, s{C['RT']}, 1")
    a(f"s_add_u32 s{C['FLAG']}, s{T0}, {FL_KV}")
    a(f"s_mov_b32 s{C['M1']}, {(1 << NREP) - 1 if NREP < 32 else -1}")
    if S.get("HSTAMP"): stamp(a, 4)
    a("s_branch L_p1c_back")
    a.label("L_p1c_done")
    a(f"s_lshl_b32 s{T0}, s{C['RT']}, 6")
    a(f"s_lshl_b32 s{T1}, s{S['CB']}, 3")
    a(f"s_add_u32 s{T0}, s{T0}, s{T1}")
    a(f"s_and_b32 s{T1}, s{W}, 2")
    a(f"s_lshl_b32 s{T1}, s{T1}, 1")
    a(f"s_add_u32 s{T0}, s{T0}, s{T1}")
    a(f"s_add_u32 s{T0}, s{T0}, {FL_H}")
    return flag


def k1n(a):
    name = "k1_kernel"
    kernel_head(a, name)
    S = dict(X=4, WQ=6, WK=8, WV=10, WG=12, WU=14, DBG=16, WS=18, RB=20, CB=21, W=22, T0=23, T1=24, T2=25, T3=26,
             NONCE=27, sb=32, HSTAMP=1)
    a("s_cmp_ge_u32 s2, 256")
    a("s_cbranch_scc1 L_k1_end")
    stamp(a, 0)
    a(f"s_load_dwordx4 s[4:7], s[0:1], 0")
    a(f"s_load_dwordx4 s[8:11], s[0:1], 16")
    a(f"s_load_dwordx4 s[12:15], s[0:1], 48")
    a(f"s_load_dwordx4 s[16:19], s[0:1], 80")
    a("v_lshrrev_b32 v1, 6, v0")
    p1_ids(a, S["RB"], S["CB"], S["T0"], S["T1"], S["T2"])
    a(f"v_readfirstlane_b32 s{S['W']}, v1")
    a(f"v_and_b32 v{V_L}, 63, v0")
    a("s_nop 3")
    a(f"s_cmp_ge_u32 s{S['W']}, 4")
    a("s_cbranch_scc1 L_k1_helper")
    p1_rowstats(a, S)
    C = p1_compute_setup(a, S)
    p1_rowstats2(a, S)
    flag = p1_compute(a, S, C)
    stamp(a, 6)
    flag(S["T0"])
    stamp_flush(a, 7, "k1a")
    a("s_endpgm")
    a.label("L_k1_helper")
    p1_helper(a, S)
    stamp_flush(a, 8, "k1h", kidx=4, tid=256)
    a.label("L_k1_end")
    a("s_endpgm")
    kernel_desc(a, name, 256, 0)
    return (name, 256, 512, P1_LDS)
```

```python
from gen import *
import p1
from p1 import WS_ST, FL_KV, FL_Q, FL_H, FL_O, SPIN_MAX

P1S = int(os.environ.get("P1STAMP", "0"))
_stamp = stamp
def stamp(a, i):
    if P1S and i not in (0, 7): return
    _stamp(a, i)
L_RING = 0
L_RED  = 65536
L_ATT  = 114688

def poll(a, tag, vaddr, vtmp, S, s_cnt, first_issued=False, sleep=1):
    WS = S["WS"]
    a(f"s_mov_b32 s{s_cnt}, {SPIN_MAX}")
    if not first_issued:
        a(f"global_load_dword v{vtmp}, v{vaddr}, s[{WS}:{WS+1}] sc1")
    a.label(f"L_poll{tag}")
    a("s_waitcnt vmcnt(0)")
    a(f"v_cmp_ne_u32 vcc, s{S['NONCE']}, v{vtmp}")
    a(f"s_sub_u32 s{s_cnt}, s{s_cnt}, 1")
    a(f"s_cmp_eq_u32 s{s_cnt}, 0")
    a(f"s_cbranch_scc1 L_polld{tag}")
    a(f"s_cbranch_vccz L_polld{tag}")
    if sleep:
        a(f"s_sleep {sleep}")
    a(f"global_load_dword v{vtmp}, v{vaddr}, s[{WS}:{WS+1}] sc1")
    a(f"s_branch L_poll{tag}")
    a.label(f"L_polld{tag}")

L_RELAY = L_RED

def relay_set(a, S, idx, v0_, v1_):
    a(f"v_mov_b32 v{v0_}, {L_RELAY + 4*idx}")
    a(f"v_mov_b32 v{v1_}, s{S['NONCE']}")
    a(f"ds_write_b32 v{v0_}, v{v1_}")

def relay_wait(a, tag, S, idx, v0_, v1_, s_cnt, s_t):
    a(f"v_mov_b32 v{v0_}, {L_RELAY + 4*idx}")
    a(f"s_mov_b32 s{s_cnt}, {SPIN_MAX * 16}")
    a.label(f"L_rw{tag}")
    a(f"ds_read_b32 v{v1_}, v{v0_}")
    a("s_waitcnt lgkmcnt(0)")
    a(f"v_readfirstlane_b32 s{s_t}, v{v1_}")
    a(f"s_sub_u32 s{s_cnt}, s{s_cnt}, 1")
    a(f"s_cmp_eq_u32 s{s_cnt}, 0")
    a(f"s_cbranch_scc1 L_rwd{tag}")
    a(f"s_cmp_eq_u32 s{s_t}, s{S['NONCE']}" if S.get("NBAR2") else f"s_cmp_lg_u32 s{s_t}, 0")
    a(f"s_cbranch_scc1 L_rwd{tag}")
    a("s_sleep 1")
    a(f"s_branch L_rw{tag}")
    a.label(f"L_rwd{tag}")

def put_flag(a, S, s_addr, v0_, v1_):
    WS = S["WS"]
    a(f"v_mov_b32 v{v0_}, s{s_addr}")
    a(f"v_mov_b32 v{v1_}, s{S['NONCE']}")
    a("s_mov_b64 exec, 1")
    a(f"global_store_dword v{v0_}, v{v1_}, s[{WS}:{WS+1}] sc1")
    a("s_mov_b64 exec, -1")

AT_VA = 248

def attention(a, S, s_hflag, part):
    S_W, S_WS = S["W"], S["WS"]
    sb = S["sb"] + 12
    V_LANE, V_KO, V_VO, V_QA = 1, AT_VA, AT_VA + 1, AT_VA + 2
    V_T = 4; V_M = 12; V_S = 16; V_P = 48; V_Q = 64; V_KV = 96; V_O = 160
    S_SRD = sb
    S_OFF, S_IT, S_PASS, S_T0, S_T1, S_PAR = sb + 4, sb + 5, sb + 6, sb + 7, sb + 8, sb + 9
    S_EX = sb + 10
    S_RT, S_HG, S_PRE = sb + 12, sb + 13, sb + 14
    def Qf(g, t): return vr(V_Q + 8 * g + 4 * t, 4)
    def Kf(b, t): return vr(V_KV + 16 * b + 4 * t, 4)
    def Vf(b, t): return vr(V_KV + 16 * b + 8 + 4 * t, 4)
    def O(g): return vr(V_O + 16 * g, 16)
    def Sx(i): return vr(V_S + 16 * i, 16)
    def load_k(b):
        for t in range(2):
            a(f"buffer_load_dwordx4 {Kf(b,t)}, v{V_KO}, s[{S_SRD}:{S_SRD+3}], s{S_OFF} offen offset:{1024*t}")
    def load_v(b):
        for t in range(2):
            a(f"buffer_load_dwordx4 {Vf(b,t)}, v{V_VO}, s[{S_SRD}:{S_SRD+3}], s{S_OFF} offen offset:{1024*t}")
    def pre_loads():
        for g in range(4):
            for t in range(2):
                a(f"global_load_dwordx4 {Qf(g,t)}, v{V_QA+g}, s[{S_WS}:{S_WS+1}] offset:{1024*t}")
        a(f"s_mov_b32 s{S_OFF}, 0")
        for b in range(2):
            load_k(b); load_v(b)
            a(f"s_add_u32 s{S_OFF}, s{S_OFF}, {KVT}")
        a(f"s_mov_b32 s{S_PRE}, 1")
    if part == "setup":
        a(f"s_lshr_b32 s{S_RT}, s2, 2")
        a(f"s_and_b32 s{S_HG}, s2, 3")
        a(f"s_and_b32 s{S_PAR}, s{S_HG}, 1")
        a(f"s_mul_i32 s{S_T0}, s{S_W}, {16*KVT}")
        a(f"s_add_u32 s{S_T0}, s{S_T0}, {WS_KV}")
        a(f"s_add_u32 s{S_SRD}, s{S_WS}, s{S_T0}")
        a(f"s_addc_u32 s{S_SRD+1}, s{S_WS+1}, 0")
        a(f"s_and_b32 s{S_SRD+1}, s{S_SRD+1}, 0xffff")
        a(f"s_mov_b32 s{S_SRD+2}, {16*KVT}")
        a(f"s_mov_b32 s{S_SRD+3}, 0x00020000")
        a(f"v_lshlrev_b32 v{V_KO}, 4, v{V_LANE}")
        a(f"v_add_u32 v{V_VO}, 4096, v{V_KO}")
        a(f"s_lshr_b32 s{S_T0}, s{S_HG}, 1")
        a(f"s_mul_i32 s{S_T0}, s{S_T0}, 28")
        a(f"s_mul_i32 s{S_T1}, s{S_PAR}, 3")
        a(f"s_add_u32 s{S_T0}, s{S_T0}, s{S_T1}")
        a(f"s_mul_i32 s{S_T1}, s{S_RT}, 56")
        a(f"s_add_u32 s{S_T0}, s{S_T0}, s{S_T1}")
        a(f"s_lshl_b32 s{S_T0}, s{S_T0}, 9")
        a(f"s_add_u32 s{S_T0}, s{S_T0}, {WS_Q}")
        for g in range(4):
            a(f"s_xor_b32 s{S_T1}, s{S_W}, {g}")
            a(f"s_mul_i32 s{S_T1}, s{S_T1}, {7*512}")
            a(f"s_add_u32 s{S_T1}, s{S_T1}, s{S_T0}")
            a(f"v_add_u32 v{V_QA+g}, s{S_T1}, v{V_KO}")
        a(f"s_lshl_b32 s{S_T0}, s{S_PAR}, 11")
        a(f"v_add_u32 v{V_KO}, s{S_T0}, v{V_KO}")
        a(f"s_cmp_eq_u32 s{S_PAR}, 0")
        a(f"s_cselect_b32 s{S_EX}, 0, -1")
        a(f"s_cselect_b32 s{S_EX+1}, -1, 0")
        a(f"s_mov_b32 s{S_PASS}, 0")
        a(f"s_mov_b32 s{S_PRE}, 0")
        a(f"v_mov_b32 v{AT_VA+6}, {L_RELAY}")
        return
    if part == "peek":
        a(f"ds_read_b32 v{AT_VA+7}, v{AT_VA+6}")
        return
    if part == "pre0":
        pre_loads()
        return
    if part == "pre":
        a(f"v_readfirstlane_b32 s{S_T0}, v{AT_VA+7}")
        a("s_nop 1")
        a(f"s_cmp_eq_u32 s{S_T0}, 0")
        a("s_cbranch_scc1 L_at_nopre")
        pre_loads()
        a.label("L_at_nopre")
        return
    a(f"s_setprio {os.environ.get('APRIO', '0')}")
    S_NB = S_PRE
    def join(tag):
        if S.get("NBAR2"):
            a(f"s_cmp_eq_u32 s{S_NB}, 0")
            a(f"s_cbranch_scc1 L_at_nb{tag}")
            a("s_barrier")
            a(f"s_sub_u32 s{S_NB}, s{S_NB}, 1")
            a.label(f"L_at_nb{tag}")
    if S.get("NBAR2"):
        a(f"s_cmp_ge_u32 s{S['CB']}, 12")
        a(f"s_cselect_b32 s{S_NB}, 0, {S['NBAR2']}")
        join("p0")
    else:
        a(f"s_cmp_lg_u32 s{S_PRE}, 0")
        a("s_cbranch_scc1 L_at_havepre")
        relay_wait(a, "kv", S, 0, V_T, V_T + 1, S_IT, S_T0)
        pre_loads()
        a("s_waitcnt vmcnt(0)")
        a.label("L_at_havepre")
    stamp(a, 1)
    def set_pads(src):
        a(f"s_mov_b64 exec, s[{S_EX}:{S_EX+1}]")
        a(f"s_cmp_eq_u32 s{S_PAR}, 0")
        lab = set_pads.n; set_pads.n += 1
        a(f"s_cbranch_scc0 L_at_padodd{lab}")
        for g in range(4):
            r0, r1 = src(g)
            a(f"v_mov_b32 v{V_Q+8*g+6}, {r0}")
            a(f"v_mov_b32 v{V_Q+8*g+7}, {r1}")
        a(f"s_branch L_at_paddone{lab}")
        a.label(f"L_at_padodd{lab}")
        for g in range(4):
            r0, r1 = src(g)
            a(f"v_mov_b32 v{V_Q+8*g+0}, {r0}")
            a(f"v_mov_b32 v{V_Q+8*g+1}, {r1}")
        a.label(f"L_at_paddone{lab}")
        a("s_mov_b64 exec, -1")
    set_pads.n = 0
    def qk(i, g, b):
        return [f"{MFMA} {Sx(i)}, {Kf(b,0)}, {Qf(g,0)}, 0",
                f"{MFMA} {Sx(i)}, {Kf(b,1)}, {Qf(g,1)}, {Sx(i)}"]
    def max_into(g, base, first):
        b = base
        if first:
            a(f"v_max3_f32 v{V_M+g}, v{b}, v{b+1}, v{b+2}")
            rest = list(range(3, 16))
        else:
            rest = list(range(0, 16))
        while len(rest) >= 2:
            a(f"v_max3_f32 v{V_M+g}, v{V_M+g}, v{b+rest[0]}, v{b+rest[1]}")
            rest = rest[2:]
        if rest:
            a(f"v_max_f32 v{V_M+g}, v{V_M+g}, v{b+rest[0]}")
    def first_loads():
        a(f"s_mov_b32 s{S_OFF}, 0")
        for b in range(3):
            load_k(b); load_v(b)
            a(f"s_add_u32 s{S_OFF}, s{S_OFF}, {KVT}")
    load_k(2); load_v(2)
    a(f"s_add_u32 s{S_OFF}, s{S_OFF}, {KVT}")
    a("s_waitcnt vmcnt(14)")
    set_pads(lambda g: ("0", "0"))
    stamp(a, 3)
    a("s_nop 1")
    for g in range(4):
        a(f"{MFMA} {O(g)}, {Kf(0,0)}, {Qf(g,0)}, 0")
        a(f"{MFMA} {O(g)}, {Kf(0,1)}, {Qf(g,1)}, {O(g)}")
    a("s_nop 5")
    for g in range(4):
        max_into(g, V_O + 16 * g, True)
    a.label("L_at_setmax")
    for g in range(4):
        a(f"v_mov_b32 v{V_T+g}, v{V_M+g}")
    a("s_nop 1")
    for g in range(4):
        a(f"v_permlane32_swap_b32 v{V_M+g}, v{V_T+g}")
    a("s_nop 1")
    for g in range(4):
        a(f"v_max_f32 v{V_M+g}, v{V_M+g}, v{V_T+g}")
    for g in range(4):
        hi, r, mid = V_S + 4 * g, V_S + 4 * g + 1, V_S + 4 * g + 2
        a(f"v_and_b32 v{hi}, 0xffff0000, v{V_M+g}")
        a(f"v_sub_f32 v{r}, v{V_M+g}, v{hi}")
        a(f"v_and_b32 v{mid}, 0xffff0000, v{r}")
        a(f"v_sub_f32 v{r}, v{r}, v{mid}")
        a(f"v_lshrrev_b32 v{hi}, 16, v{hi}")
        a(f"v_or_b32 v{hi}, v{hi}, v{mid}")
        a(f"v_xor_b32 v{hi}, 0x80008000, v{hi}")
        a(f"v_lshrrev_b32 v{r}, 16, v{r}")
        a(f"v_xor_b32 v{r}, 0x8000, v{r}")
    set_pads(lambda g: (f"v{V_S+4*g}", f"v{V_S+4*g+1}"))
    a("s_nop 0")
    for ins in qk(0, 0, 0):
        a(ins)
    for r in range(64):
        a(f"v_mov_b32 v{V_O+r}, 0")
    for r in range(8):
        a(f"v_mov_b32 v{V_P+8+r}, 0")
        a(f"v_mov_b32 v{V_KV+48+8+r}, 0")
    a(f"s_cmp_lg_u32 s{S_PASS}, 0")
    a("s_cbranch_scc1 L_at_noh")
    a("s_waitcnt vmcnt(4)")
    put_flag(a, S, s_hflag, V_T, V_T + 1)
    a.label("L_at_noh")
    a(f"s_mov_b32 s{S_IT}, 4")
    stamp(a, 5)
    a.label("L_at_main")
    for u in range(16):
        kt, g = u >> 2, u & 3
        cur, nxt = u & 1, (u & 1) ^ 1
        nkt, ng = ((u + 1) >> 2) & 3, (u + 1) & 3
        pkt, pg = ((u - 1) >> 2) & 3, (u - 1) & 3
        if g == 0 or (g == 2 and int(os.environ.get("JOIN2", "0"))):
            join(f"m{kt}{g}")
        if g == 3:
            a("s_waitcnt vmcnt(10)")
        if g == 1:
            a("s_waitcnt vmcnt(8)")
        q = qk(nxt, ng, nkt)
        pp = V_P + 8 * nxt
        pv = [f"{MFMA} {O(pg)}, {Vf(pkt,0)}, {vr(pp,4)}, {O(pg)}",
              f"{MFMA} {O(pg)}, {Vf(pkt,1)}, {vr(pp+4,4)}, {O(pg)}"]
        sb_ = V_S + 16 * cur
        ex = [f"v_exp_f32 v{sb_+i}, v{sb_+i}" for i in range(16)]
        cv = [f"v_cvt_pk_bf16_f32 v{V_P+8*cur+i}, v{sb_+2*i}, v{sb_+2*i+1}" for i in range(8)]
        mf = [q[0], q[1], pv[0], pv[1]]
        for k in range(4):
            a(mf[k])
            for ins in ex[4*k:4*k+4]:
                a(ins)
            if k:
                for ins in cv[2*k-2:2*k]:
                    a(ins)
        for ins in cv[6:8]:
            a(ins)
        if g == 1:
            load_k((kt + 3) & 3); load_v((kt + 3) & 3)
            a(f"s_add_u32 s{S_OFF}, s{S_OFF}, {KVT}")
    a(f"s_sub_u32 s{S_IT}, s{S_IT}, 1")
    a(f"s_cmp_lg_u32 s{S_IT}, 0")
    a("s_cbranch_scc1 L_at_main")
    pp = V_P + 8
    a(f"{MFMA} {O(3)}, {Vf(3,0)}, {vr(pp,4)}, {O(3)}")
    a(f"{MFMA} {O(3)}, {Vf(3,1)}, {vr(pp+4,4)}, {O(3)}")
    stamp(a, 6)
    for i in range(4):
        a(f"v_add_f32 v{V_T+i}, v{V_O+i}, v{V_O+4+i}")
    for r in range(8, 64):
        a(f"v_add_f32 v{V_T+(r&3)}, v{V_T+(r&3)}, v{V_O+r}")
    a(f"v_add_f32 v{V_T}, v{V_T}, v{V_T+1}")
    a(f"v_add_f32 v{V_T+2}, v{V_T+2}, v{V_T+3}")
    a(f"v_add_f32 v{V_T}, v{V_T}, v{V_T+2}")
    a(f"v_mov_b32 v{V_T+1}, 0x207")
    a(f"v_cmp_class_f32 vcc, v{V_T}, v{V_T+1}")
    a(f"s_cmp_lg_u32 s{S_PASS}, 0")
    a("s_cbranch_scc1 L_at_reduce")
    a("s_cbranch_vccz L_at_reduce")
    a(f"s_mov_b32 s{S_PASS}, 1")
    a("s_waitcnt vmcnt(0)")
    set_pads(lambda g: ("0", "0"))
    for g in range(4):
        a(f"v_mov_b32 v{V_M+g}, 0xff800000")
    a(f"s_mov_b32 s{S_OFF}, 0")
    a(f"s_mov_b32 s{S_IT}, 16")
    a.label("L_at_slow")
    load_k(0)
    a(f"s_add_u32 s{S_OFF}, s{S_OFF}, {KVT}")
    a("s_waitcnt vmcnt(0)")
    for g in range(4):
        for ins in qk(0, g, 0):
            a(ins)
        a("s_nop 15")
        max_into(g, V_S, False)
    a(f"s_sub_u32 s{S_IT}, s{S_IT}, 1")
    a(f"s_cmp_lg_u32 s{S_IT}, 0")
    a("s_cbranch_scc1 L_at_slow")
    first_loads()
    a("s_waitcnt vmcnt(10)")
    a("s_branch L_at_setmax")
    a.label("L_at_reduce")
    a("s_mov_b32 exec_lo, 0")
    for g in range(1, 4):
        a(f"v_mov_b32 v{V_O+16*g+13}, v{V_M+g}")
    a("s_mov_b64 exec, -1")
    a(f"v_lshlrev_b32 v{V_T}, 4, v{V_LANE}")
    for g in range(1, 4):
        a(f"s_xor_b32 s{S_T0}, s{S_W}, {g}")
        a(f"s_mul_i32 s{S_T0}, s{S_T0}, 12288")
        a(f"s_add_u32 s{S_T0}, s{S_T0}, {L_ATT + (g-1)*4096}")
        a(f"v_add_u32 v{V_T+1}, s{S_T0}, v{V_T}")
        for qd in range(3):
            a(f"ds_write_b128 v{V_T+1}, {vr(V_O+16*g+4*qd,4)} offset:{1024*qd}")
        a(f"ds_write_b64 v{V_T+1}, {vr(V_O+16*g+12,2)} offset:3072")
        a("s_mov_b32 exec_hi, 0")
        a(f"ds_write_b64 v{V_T+1}, {vr(V_O+16*g+14,2)} offset:3080")
        a("s_mov_b64 exec, -1")
    a(f"s_mul_i32 s{S_T0}, s{S_W}, 12288")
    a(f"s_add_u32 s{S_T0}, s{S_T0}, {L_ATT}")
    a(f"v_add_u32 v{V_T+1}, s{S_T0}, v{V_T}")
    a(f"s_lshr_b32 s{S_T0}, s{S_HG}, 1")
    a(f"s_lshl_b32 s{S_T0}, s{S_T0}, 3")
    a(f"s_lshl_b32 s{S_T1}, s{S_W}, 1")
    a(f"s_add_u32 s{S_T0}, s{S_T0}, s{S_T1}")
    a(f"s_add_u32 s{S_T0}, s{S_T0}, s{S_PAR}")
    a(f"s_lshl_b32 s{S_T0}, s{S_T0}, 11")
    a(f"s_lshl_b32 s{S_T1}, s{S_RT}, 15")
    a(f"s_add_u32 s{S_T0}, s{S_T0}, s{S_T1}")
    a(f"s_add_u32 s{S_T0}, s{S_T0}, {WS_O}")
    a(f"v_and_b32 v{V_T}, 31, v{V_LANE}")
    a(f"v_lshlrev_b32 v{V_T}, 4, v{V_T}")
    a(f"v_lshrrev_b32 v{V_T+2}, 5, v{V_LANE}")
    a(f"v_lshl_add_u32 v{V_T}, v{V_T+2}, 10, v{V_T}")
    a(f"v_add_u32 v{V_T}, s{S_T0}, v{V_T}")
    a(f"s_lshl_b32 s{S_T0}, s2, 2")
    a(f"s_add_u32 s{S_T0}, s{S_T0}, s{S_W}")
    a(f"s_lshl_b32 s{S_T0}, s{S_T0}, 2")
    a(f"s_add_u32 s{S_T0}, s{S_T0}, {FL_O}")
    a(f"s_lshl_b32 s{S_T1}, s{S_W}, 4")
    a(f"s_add_u32 s{S_T1}, s{S_T1}, {L_ATT + 3072 + 512 + 8}")
    a(f"v_mov_b32 v{V_T+4}, s{S_T1}")
    a(f"v_mov_b32 v{V_T+5}, s{S['NONCE']}")
    a(f"v_and_b32 v{V_T+6}, 3, v{V_LANE}")
    a(f"v_lshlrev_b32 v{V_T+6}, 4, v{V_T+6}")
    a(f"v_add_u32 v{V_T+6}, {L_ATT + 3072 + 512 + 8}, v{V_T+6}")
    a("s_waitcnt lgkmcnt(0)")
    a(f"ds_write_b32 v{V_T+4}, v{V_T+5}")
    a(f"s_mov_b32 s{S_IT}, {SPIN_MAX*16}")
    a.label("L_at_sync")
    a(f"ds_read_b32 v{V_T+7}, v{V_T+6}")
    a("s_waitcnt lgkmcnt(0)")
    a(f"v_cmp_ne_u32 vcc, v{V_T+7}, v{V_T+5}")
    a(f"s_sub_u32 s{S_IT}, s{S_IT}, 1")
    a(f"s_cmp_eq_u32 s{S_IT}, 0")
    a("s_cbranch_scc1 L_at_synced")
    a("s_cbranch_vccnz L_at_sync")
    a.label("L_at_synced")
    stamp(a, 2)
    for g in range(1, 4):
        for qd in (3, 0, 1, 2):
            a(f"ds_read_b128 {vr(V_O+16*g+4*qd,4)}, v{V_T+1} offset:{(g-1)*4096 + 1024*qd}")
    a("s_waitcnt lgkmcnt(3)")
    for g in range(1, 4):
        a(f"v_mov_b32 v{V_M+g}, v{V_O+16*g+13}")
        a(f"v_mov_b32 v{V_T+4+g}, v{V_O+16*g+13}")
    a("s_nop 1")
    for g in range(1, 4):
        a(f"v_permlane32_swap_b32 v{V_T+4+g}, v{V_M+g}")
    a("s_nop 1")
    a(f"v_max3_f32 v{V_T+4}, v{V_M}, v{V_M+1}, v{V_M+2}")
    a(f"v_max_f32 v{V_T+4}, v{V_T+4}, v{V_M+3}")
    for sw in range(4):
        a(f"v_sub_f32 v{V_M+sw}, v{V_M+sw}, v{V_T+4}")
    for sw in range(4):
        a(f"v_exp_f32 v{V_M+sw}, v{V_M+sw}")
    a("s_waitcnt lgkmcnt(0)")
    for r in range(16):
        a(f"v_mul_f32 v{V_O+r}, v{V_O+r}, v{V_M}")
    for sw in range(1, 4):
        for r in range(16):
            a(f"v_fmac_f32 v{V_O+r}, v{V_O+16*sw+r}, v{V_M+sw}")
    a(f"v_mov_b32 v{V_T+4}, v{V_O+12}")
    a(f"v_mov_b32 v{V_T+5}, v{V_O+12}")
    a("s_nop 1")
    a(f"v_permlane32_swap_b32 v{V_T+4}, v{V_T+5}")
    a("s_nop 1")
    a(f"v_rcp_f32 v{V_T+5}, v{V_T+5}")
    a(f"v_cmp_eq_u32 vcc, 1, v{V_T+2}")
    for r in range(16):
        a(f"v_mul_f32 v{V_O+r}, v{V_O+r}, v{V_T+5}")
    for r in range(8):
        a(f"v_cvt_pk_bf16_f32 v{V_S+r}, v{V_O+2*r}, v{V_O+2*r+1}")
    a(f"v_mov_b32 v{V_T+4}, 0")
    a(f"v_cndmask_b32 v{V_S+6}, v{V_S+6}, v{V_T+4}, vcc")
    a(f"v_cndmask_b32 v{V_S+7}, v{V_S+7}, v{V_T+4}, vcc")
    a(f"global_store_dwordx4 v{V_T}, {vr(V_S,4)}, s[{S_WS}:{S_WS+1}] sc1")
    a(f"global_store_dwordx4 v{V_T}, {vr(V_S+4,4)}, s[{S_WS}:{S_WS+1}] offset:512 sc1")
    a("s_waitcnt vmcnt(0)")
    put_flag(a, S, S_T0, V_T + 4, V_T + 5)

class Gemm:
    def __init__(self, a, R, NK, U, S_WSRD, S_WOFF, wstep, S_BSRD, S_BOFF, S_LB):
        self.__dict__.update(locals())
        self.vm = []
        self.hook = None
    def wait(self, *labels):
        vm = self.vm
        last = max(i for i, l in enumerate(vm) if l in labels)
        self.a(f"s_waitcnt vmcnt({len(vm) - 1 - last})")
    def issue_w(self, k):
        a, R, j = self.a, self.R, k % self.U
        if self.hook: self.hook(k, "w")
        for p in range(2):
            a(f"s_add_u32 m0, s{self.S_LB}, {j*2048 + p*1024}")
            a(f"s_add_u32 s{self.S_WOFF+1}, s{self.S_WOFF}, {8*896}" if p else "s_nop 0")
            a(f"buffer_load_dwordx4 v{R['wo']}, s[{self.S_WSRD}:{self.S_WSRD+3}], s{self.S_WOFF+p} offen lds")
            self.vm.append(f"w{k}")
        a(f"s_add_u32 s{self.S_WOFF}, s{self.S_WOFF}, {self.wstep(k)}")
    def issue_b(self, k):
        a, R, j = self.a, self.R, k % self.U
        if self.hook: self.hook(k, "b")
        for b in range(2):
            a(f"buffer_load_dwordx4 {vr(R['bf']+8*j+4*b,4)}, v{R['bo']+b}, s[{self.S_BSRD}:{self.S_BSRD+3}], s{self.S_BOFF} offen offset:{1024*(k&3)}")
            self.vm.append(f"b{k}")
        if k & 3 == 3:
            a(f"s_add_u32 s{self.S_BOFF}, s{self.S_BOFF}, 4096")
    def reads(self, k):
        a, R, j = self.a, self.R, k % self.U
        for t in range(2):
            for hf in range(2):
                a(f"ds_read_b64_tr_b16 {vr(R['af']+8*(k&1)+4*t+2*hf,2)}, v{R['tr']+t} offset:{j*2048 + hf*512}")
    def run(self):
        a, R, NK, U = self.a, self.R, self.NK, self.U
        ACC, AF, BF = R["acc"], R["af"], R["bf"]
        self.reads(0)
        for k in range(NK):
            need = [l for l in (f"b{k}", f"w{k+1}") if l in self.vm]
            self.wait(*need)
            a("s_waitcnt lgkmcnt(0)")
            if k + 1 < NK:
                self.reads(k + 1)
            j = k % U
            for b in range(2):
                for t in range(2):
                    i = t + 2 * b
                    c = "0" if k == 0 else vr(ACC + 16 * i, 16)
                    a(f"{MFMA} {vr(ACC+16*i,16)}, {vr(AF+8*(k&1)+4*t,4)}, {vr(BF+8*j+4*b,4)}, {c}")
            if k + U < NK:
                self.issue_w(k + U); self.issue_b(k + U)

def bwaves(a, S, tiles=None):
    R = dict(lane=1, tmp=2, wo=8, st=9, tr=10, bo=12, fl=14, acc=16, af=80, bf=96)
    U = 8
    V_XG = R["bf"] + 8 * U
    V_OA = V_XG + 16
    S_WS = S["WS"]
    sb = S["sb"]
    S_WSRD, S_BSRD = sb, sb + 4
    S_WOFF, S_BOFF, S_LB, S_IT, S_T0, S_T1, S_RB, S_CB, S_W, S_RTO = sb + 8, sb + 10, sb + 11, sb + 12, sb + 13, sb + 14, sb + 15, sb + 16, sb + 17, sb + 18
    a(f"s_sub_u32 s{S_W}, s{S['W']}, 4")
    if tiles == "g": a("s_branch L_b_nokv")
    a(f"s_cmp_lg_u32 s{S_W}, 1")
    a("s_cbranch_scc1 L_b_nokv")
    a(f"s_cmp_lg_u32 s{S['T2']}, 0")
    a("s_cbranch_scc1 L_b_nokv")
    poll(a, "kv", 9, 10, S, S_IT, sleep=4)
    relay_set(a, S, 0, 2, 3)
    a("s_waitcnt lgkmcnt(0)")
    a.label("L_b_nokv")
    a(f"s_and_b32 s{S_T0}, s2, 7")
    a(f"s_lshr_b32 s{S_T1}, s2, 3")
    a(f"s_lshl_b32 s{S_RB}, s{S_T0}, 5")
    a(f"s_add_u32 s{S_RB}, s{S_RB}, s{S_T1}")
    a(f"s_cmp_lt_u32 s{S_T0}, 4")
    a("s_cbranch_scc1 L_b_tile")
    a(f"s_cmp_lt_u32 s{S_T1}, 8")
    a("s_cbranch_scc1 L_end")
    a(f"s_mul_i32 s{S_RB}, s{S_T0}, 24")
    a(f"s_add_u32 s{S_RB}, s{S_RB}, s{S_T1}")
    a(f"s_add_u32 s{S_RB}, s{S_RB}, 24")
    a.label("L_b_tile")
    a(f"s_mul_i32 s{S_T0}, s{S_RB}, 9363")
    a(f"s_lshr_b32 s{S_T0}, s{S_T0}, 16")
    a(f"s_mul_i32 s{S_T1}, s{S_T0}, 7")
    a(f"s_sub_u32 s{S_CB}, s{S_RB}, s{S_T1}")
    a(f"s_mov_b32 s{S_RB}, s{S_T0}")
    gemm_setup(a, R, S_W, S_T0)
    srd(a, S_WSRD, S["WD"], S["WD"] + 1, 0, 1792 * 896)
    srd(a, S_BSRD, S_WS, S_WS + 1, WS_H, 64 * 112 * 1024)
    a(f"s_lshl_b32 s{S_LB}, s{S_W}, 14")
    a(f"v_add_u32 v{R['tr']}, s{S_LB}, v{R['tr']}")
    a(f"v_add_u32 v{R['tr']+1}, s{S_LB}, v{R['tr']+1}")
    SPLIT = tiles == "g"
    a(f"s_mul_i32 s{S_WOFF}, s{S_W}, {(256 if SPLIT else 448)*896}")
    a(f"s_lshl_b32 s{S_T0}, s{S_CB}, 7")
    a(f"s_add_u32 s{S_WOFF}, s{S_WOFF}, s{S_T0}")
    G = Gemm(a, R, 28, U, S_WSRD, S_WOFF, lambda k: 16 * 896, S_BSRD, S_BOFF, S_LB)
    S_J = S_RTO + 1
    if SPLIT:
        a(f"s_lshl_b32 s{S_J}, s{S_W}, 2")
        a(f"s_sub_u32 s{S_J}, 48, s{S_J}")
        def late(k, what):
            if k != 16: return
            if what == "w":
                a(f"s_mul_i32 s{S_T0}, s{S_J}, {16*896}")
                a(f"s_add_u32 s{S_WOFF}, s{S_WOFF}, s{S_T0}")
            else:
                a(f"s_cmp_lg_u32 s{S_W}, 0")
                a("s_cbranch_scc1 L_b_hw2")
                a(f"v_min_u32 v{V_OA+1}, 23, v{R['lane']}")
                a(f"v_lshl_add_u32 v{V_OA+1}, v{V_OA+1}, 2, s{S_J+1}")
                poll(a, "h2", V_OA + 1, R["fl"] + 1, S, S_IT, sleep=6)
                relay_set(a, S, 2, R["tmp"] + 2, R["tmp"] + 3)
                a.label("L_b_hw2")
                relay_wait(a, "h2", S, 2, R["tmp"] + 2, R["tmp"] + 3, S_IT, S_T0)
                a(f"s_lshl_b32 s{S_T0}, s{S_J}, 10")
                a(f"s_add_u32 s{S_BOFF}, s{S_BOFF}, s{S_T0}")
        G.hook = late
    for k in range(U):
        G.issue_w(k)
    a(f"s_lshr_b32 s{S_RTO}, s{S_W}, 1")
    a(f"s_lshl_b32 s{S_T1}, s{S_RB}, 1")
    a(f"s_add_u32 s{S_RTO}, s{S_RTO}, s{S_T1}")
    a(f"s_xor_b32 s{S_T1}, s{S_RTO}, 1")
    a(f"s_mul_i32 s{S_T0}, s{S_RTO}, {112*1024}")
    a(f"s_mul_i32 s{S_T1}, s{S_T1}, {112*1024}")
    a(f"v_lshlrev_b32 v{R['tmp']}, 4, v{R['lane']}")
    a(f"v_add_u32 v{R['bo']}, s{S_T0}, v{R['tmp']}")
    a(f"v_add_u32 v{R['bo']+1}, s{S_T1}, v{R['tmp']}")
    a(f"s_mul_i32 s{S_BOFF}, s{S_W}, {(16 if SPLIT else 28)*1024}")
    a(f"v_and_b32 v{R['st']}, 31, v{R['lane']}")
    a(f"s_lshl_b32 s{S_T0}, s{S_RB}, 7")
    a(f"s_add_u32 s{S_T0}, s{S_T0}, {FL_H}")
    a(f"v_lshl_add_u32 v{R['fl']}, v{R['st']}, 2, s{S_T0}")
    if tiles == "g":
        import p3
        a(f"s_lshl_b32 s{S_T0}, s{S_RB}, 8")
        a(f"s_add_u32 s{S_T0}, s{S_T0}, {p3.FL_H2}")
        a(f"v_lshl_add_u32 v{V_OA}, v{R['st']}, 2, s{S_T0}")
        a(f"s_add_u32 s{S_J+1}, s{S_T0}, 128")
    a(f"s_cmp_lg_u32 s{S_W}, 0")
    a("s_cbranch_scc1 L_b_hw")
    if tiles != "g": a("s_sleep 24")
    poll(a, "h", V_OA if tiles == "g" else R["fl"], R["fl"] + 1, S, S_IT, sleep=12)
    relay_set(a, S, 1, R["tmp"] + 2, R["tmp"] + 3)
    a.label("L_b_hw")
    relay_wait(a, "h", S, 1, R["tmp"] + 2, R["tmp"] + 3, S_IT, S_T0)
    a("s_waitcnt vmcnt(0)")
    G.vm = []
    stamp(a, 2)
    a(f"s_lshl_b32 s{S_T1}, s{S_RTO}, 8")
    a(f"s_add_u32 s{S_T1}, s{S_T1}, {WS_ST}")
    a(f"v_lshl_add_u32 v{R['st']}, v{R['st']}, 3, s{S_T1}")
    a(f"global_load_dword v{R['st']}, v{R['st']}, s[{S_WS}:{S_WS+1}] sc1")
    for k in range(U):
        G.issue_b(k)
    G.run()
    stamp(a, 3)
    gemm_reduce_write(a, R, S_W, S_T0, L_RED)
    a(f"s_lshl_b32 s{S_T1}, s{S_W}, 4")
    a(f"s_add_u32 s{S_T1}, s{S_T1}, {L_ATT + 3072 + 512 + 8 + 64}")
    a(f"v_mov_b32 v{R['tmp']+2}, s{S_T1}")
    a(f"v_mov_b32 v{R['tmp']+3}, s{S['NONCE']}")
    a("s_waitcnt lgkmcnt(0)")
    a(f"ds_write_b32 v{R['tmp']+2}, v{R['tmp']+3}")
    a("s_waitcnt lgkmcnt(0)")
    srd(a, S_WSRD, S["WO"], S["WO"] + 1, 0, 448 * 896)
    srd(a, S_BSRD, S_WS, S_WS + 1, WS_O, 64 * 32 * 1024)
    a(f"s_mul_i32 s{S_WOFF}, s{S_W}, {112*896}")
    a(f"s_lshl_b32 s{S_T0}, s{S_CB}, 7")
    a(f"s_add_u32 s{S_WOFF}, s{S_WOFF}, s{S_T0}")
    G2 = Gemm(a, R, 8, U, S_WSRD, S_WOFF, lambda k: (16 if k % 2 == 0 else 12) * 896, S_BSRD, S_BOFF, S_LB)
    for k in range(8):
        G2.issue_w(k)
    a(f"s_lshl_b32 s{S_T0}, s{S_RTO}, 15")
    a(f"v_add_u32 v{R['bo']}, s{S_T0}, v{R['tmp']}")
    a(f"v_xor_b32 v{R['bo']+1}, 0x8000, v{R['bo']}")
    a(f"s_lshl_b32 s{S_BOFF}, s{S_W}, 13")
    a(f"v_and_b32 v{V_OA}, 31, v{R['lane']}")
    a(f"s_lshl_b32 s{S_T0}, s{S_RTO}, 5")
    a(f"v_add_u32 v{V_OA}, s{S_T0}, v{V_OA}")
    a(f"v_mul_u32_u24 v{V_OA}, 896, v{V_OA}")
    a(f"v_lshrrev_b32 v{V_OA+1}, 5, v{R['lane']}")
    a(f"v_lshl_add_u32 v{V_OA}, v{V_OA+1}, 5, v{V_OA}")
    a(f"s_lshl_b32 s{S_T0}, s{S_CB}, 1")
    a(f"s_and_b32 s{S_T1}, s{S_W}, 1")
    a(f"s_add_u32 s{S_T0}, s{S_T0}, s{S_T1}")
    a(f"s_lshl_b32 s{S_T0}, s{S_T0}, 6")
    a(f"v_add_u32 v{V_OA}, s{S_T0}, v{V_OA}")
    a(f"global_load_dwordx4 {vr(V_XG,4)}, v{V_OA}, s[{S['X']}:{S['X']+1}]")
    a(f"global_load_dwordx4 {vr(V_XG+4,4)}, v{V_OA}, s[{S['X']}:{S['X']+1}] offset:16")
    a(f"v_add_u32 v{R['fl']}, {FL_O - FL_H}, v{R['fl']}")
    FB = L_ATT + 3072 + 512 + 8 + 64
    P_ = R["tmp"]
    a(f"s_lshl_b32 s{S_T1}, s{S_W}, 4")
    a(f"s_add_u32 s{S_T1}, s{S_T1}, {FB}")
    a(f"v_mov_b32 v{P_+2}, s{S_T1}")
    a(f"v_mov_b32 v{P_+3}, s{S['NONCE']}")
    a(f"v_and_b32 v{P_+4}, 3, v{R['lane']}")
    a(f"v_lshlrev_b32 v{P_+4}, 4, v{P_+4}")
    a(f"v_add_u32 v{P_+4}, {FB}, v{P_+4}")
    a(f"s_mov_b32 s{S_IT}, {SPIN_MAX*16}")
    a.label("L_b_sync")
    a(f"ds_read_b32 v{P_+5}, v{P_+4}")
    a("s_waitcnt lgkmcnt(0)")
    a(f"v_cmp_ne_u32 vcc, v{P_+5}, v{P_+3}")
    a(f"s_sub_u32 s{S_IT}, s{S_IT}, 1")
    a(f"s_cmp_eq_u32 s{S_IT}, 0")
    a("s_cbranch_scc1 L_b_synced")
    a("s_cbranch_vccz L_b_synced")
    a("s_sleep 2")
    a("s_branch L_b_sync")
    a.label("L_b_synced")
    stamp(a, 4)
    gemm_reduce_read(a, R)
    ACC = R["acc"]; T = R["af"]
    a(f"v_and_b32 v{R['st']}, 0xffff0000, v{R['st']}")
    a(f"v_mul_f32 v{R['st']}, v{R['st']}, v{R['st']}")
    a(f"v_rcp_f32 v{R['st']}, v{R['st']}")
    a("s_nop 0")
    for r in range(16):
        a(f"v_mul_f32 v{ACC+r}, v{ACC+r}, v{R['st']}")
    for r in range(16):
        a(f"v_mul_f32 v{T+r}, {hex(f32bits(-math.log2(math.e)))}, v{ACC+r}")
    for r in range(16):
        a(f"v_exp_f32 v{T+r}, v{T+r}")
    for r in range(16):
        a(f"v_add_f32 v{T+r}, 1.0, v{T+r}")
    for r in range(16):
        a(f"v_rcp_f32 v{T+r}, v{T+r}")
    a("s_nop 0")
    for r in range(16):
        a(f"v_mul_f32 v{ACC+r}, v{ACC+r}, v{T+r}")
    for r in range(8):
        a(f"v_cvt_pk_bf16_f32 v{V_XG+8+r}, v{ACC+2*r}, v{ACC+2*r+1}")
    a("s_barrier")
    a(f"s_cmp_lg_u32 s{S_W}, 0")
    a("s_cbranch_scc1 L_b_ow")
    poll(a, "o", R["fl"], R["fl"] + 1, S, S_IT, sleep=1)
    a.label("L_b_ow")
    a("s_waitcnt vmcnt(0)")
    a("s_barrier")
    G2.vm = []
    stamp(a, 5)
    for k in range(8):
        G2.issue_b(k)
    G2.run()
    stamp(a, 6)
    P = R["tmp"]
    a(f"v_add_u32 v{P+1}, s{S_LB}, v{P}")
    a("s_nop 7")
    a("s_nop 3")
    for i in range(1, 4):
        for q in range(4):
            a(f"ds_write_b128 v{P+1}, {vr(ACC+16*i+4*q,4)} offset:{(i-1)*4096 + 1024*q}")
    a("s_waitcnt lgkmcnt(0)")
    a("s_barrier")
    for i in range(1, 4):
        a(f"v_xor_b32 v{P+2}, {i << 14}, v{P+1}")
        for q in range(4):
            a(f"ds_read_b128 {vr(ACC+16*i+4*q,4)}, v{P+2} offset:{(i-1)*4096 + 1024*q}")
    for i in range(1, 4):
        a(f"s_waitcnt lgkmcnt({12 - 4*i})")
        for r in range(16):
            a(f"v_add_f32 v{ACC+r}, v{ACC+r}, v{ACC+16*i+r}")
    for r in range(8):
        a(f"v_lshlrev_b32 v{T}, 16, v{V_XG+r}")
        a(f"v_and_b32 v{T+1}, 0xffff0000, v{V_XG+r}")
        a(f"v_lshlrev_b32 v{T+2}, 16, v{V_XG+8+r}")
        a(f"v_and_b32 v{T+3}, 0xffff0000, v{V_XG+8+r}")
        a(f"v_fmac_f32 v{T}, v{ACC+2*r}, v{T+2}")
        a(f"v_fmac_f32 v{T+1}, v{ACC+2*r+1}, v{T+3}")
        a(f"v_cvt_pk_bf16_f32 v{T+8+r}, v{T}, v{T+1}")
    a(f"global_store_dwordx4 v{V_OA}, {vr(T+8,4)}, s[{S['OUT']}:{S['OUT']+1}]")
    a(f"global_store_dwordx4 v{V_OA}, {vr(T+12,4)}, s[{S['OUT']}:{S['OUT']+1}] offset:16")

def kf(a):
    name = NAME + "_kernel"
    kernel_head(a, name)
    S = dict(X=4, WQ=6, WK=8, WV=10, WO=12, WG=16, WU=18, WD=20, OUT=22, DBG=24, WS=26, RB=28, CB=29, W=30,
             T0=31, T1=32, T2=33, T3=34, NONCE=35, sb=36, RELAY=L_RELAY, HSTAMP=P1S)
    a("s_cmp_ge_u32 s2, 256")
    a("s_cbranch_scc1 L_end")
    stamp(a, 0)
    a("s_load_dwordx16 s[4:19], s[0:1], 0")
    a("s_load_dwordx8 s[20:27], s[0:1], 64")
    a("v_lshrrev_b32 v1, 6, v0")
    p1.p1_ids(a, S["RB"], S["CB"], S["T0"], S["T1"], S["T2"])
    a(f"v_readfirstlane_b32 s{S['W']}, v1")
    a(f"v_and_b32 v1, 63, v0")
    a("s_nop 3")
    a.label("L_pc0")
    a(f"s_cmp_lt_u32 s{S['W']}, 4")
    a("s_cbranch_scc1 L_compute")
    p1.p1_helper(a, S)
    bwaves(a, S)
    stamp(a, 7)
    stamp_flush(a, 8, "fb", kidx=4, tid=256)
    a.label("L_end")
    a("s_endpgm")
    a.label("L_compute")
    p1.p1_rowstats(a, S)
    if "code" in os.environ.get("TOUCH", "code_mid2"):
        a("s_getpc_b64 s[74:75]")
        a.label("L_pc")
        a("s_sub_u32 s74, s74, L_pc-L_pc0")
        a("s_subb_u32 s75, s75, 0")
        a(f"s_lshr_b32 s{S['T0']}, s2, 3")
        a(f"s_lshl_b32 s{S['T0']}, s{S['T0']}, 2")
        a(f"s_add_u32 s{S['T0']}, s{S['T0']}, s{S['W']}")
        a(f"s_lshl_b32 s{S['T0']}, s{S['T0']}, 8")
        a(f"v_and_b32 v250, 1, v1")
        a(f"v_lshl_add_u32 v250, v250, 7, s{S['T0']}")
        a(f"v_min_u32 v250, L_last-L_pc0, v250")
        a("s_mov_b64 exec, 3")
        a(f"global_load_dword v251, v250, s[74:75]")
        a("s_mov_b64 exec, -1")
    TOUCH = os.environ.get("TOUCH", "code_mid2")
    if TOUCH == "early": p1.p1_touch(a, S)
    if "chip1" in TOUCH: p1.p1_touch_chip(a, S, False)
    if "chip2" in TOUCH: p1.p1_touch_chip(a, S, True)
    C = p1.p1_compute_setup(a, S)
    if TOUCH == "late": p1.p1_touch(a, S)
    p1.p1_rowstats2(a, S, 0)
    p1.p1_csload(a, S)
    p1.p1_compute(a, S, C, mid=lambda: (attention(a, S, None, "setup"), p1.p1_touch_chip(a, S, True) if "mid2" in TOUCH else None), peek=lambda: attention(a, S, None, "peek"), pre=lambda: attention(a, S, None, "pre"))
    a(f"s_mov_b32 s{S['sb']}, s{S['T0']}")
    stamp(a, 4)
    if P1S: _stamp(a, 6)
    attention(a, S, S["sb"], "main")
    stamp(a, 7)
    stamp_flush(a, 8, "fa", tid=int(os.environ.get("ATID", "0")))
    a("s_endpgm")
    a.label("L_last")
    a("s_endpgm")
    kernel_desc(a, name, 256, 0)
    return (name, 256, 512, p1.P1_LDS)


def kg(a):
    import p3
    name = NAME + "_kernel"
    kernel_head(a, name)
    S = dict(X=4, WQ=6, WK=8, WV=10, WO=12, WG=16, WU=18, WD=20, OUT=22, DBG=24, WS=26, RB=28, CB=29, W=30,
             T0=31, T1=32, T2=33, T3=34, NONCE=35, sb=36, RELAY=L_RELAY, HSTAMP=P1S)
    S["NBAR2"] = p3.NBAR2
    if not P1S:
        p3.stamp = lambda a, i: None
    a("s_cmp_ge_u32 s2, 256")
    a("s_cbranch_scc1 L_end")
    stamp(a, 0)
    a("s_load_dwordx16 s[4:19], s[0:1], 0")
    a("s_load_dwordx8 s[20:27], s[0:1], 64")
    a("v_lshrrev_b32 v1, 6, v0")
    p1.p1_ids(a, S["RB"], S["CB"], S["T0"], S["T1"], S["T2"])
    a(f"v_readfirstlane_b32 s{S['W']}, v1")
    a(f"v_and_b32 v1, 63, v0")
    a("s_nop 3")
    a.label("L_pc0")
    a(f"s_cmp_lt_u32 s{S['W']}, 4")
    a("s_cbranch_scc1 L_compute")
    p3.helper(a, S)
    stamp(a, 1)
    bwaves(a, S, tiles="g")
    stamp(a, 7)
    stamp_flush(a, 8, "fb", kidx=4, tid=256)
    a.label("L_end")
    a("s_endpgm")
    a.label("L_compute")
    def mid():
        attention(a, S, None, "setup")
        a("s_getpc_b64 s[74:75]")
        a.label("L_pc")
        a("s_sub_u32 s74, s74, L_pc-L_pc0")
        a("s_subb_u32 s75, s75, 0")
        a(f"s_lshr_b32 s{S['T0']}, s2, 3")
        a(f"s_lshl_b32 s{S['T0']}, s{S['T0']}, 2")
        a(f"s_add_u32 s{S['T0']}, s{S['T0']}, s{S['W']}")
        a(f"s_lshl_b32 s{S['T0']}, s{S['T0']}, 8")
        a(f"v_and_b32 v242, 1, v1")
        a(f"v_lshl_add_u32 v242, v242, 7, s{S['T0']}")
        a(f"v_min_u32 v242, L_last-L_pc0, v242")
        a("s_mov_b64 exec, 3")
        a(f"global_load_dword v243, v242, s[74:75]")
        a("s_mov_b64 exec, -1")
    p3.compute(a, S, mid=mid, pre=lambda: attention(a, S, None, "pre0"))
    a(f"s_mov_b32 s{S['sb']}, s{S['T0']}")
    stamp(a, 4)
    if P1S: _stamp(a, 6)
    attention(a, S, S["sb"], "main")
    stamp(a, 7)
    stamp_flush(a, 8, "fa", tid=int(os.environ.get("ATID", "0")))
    a.label("L_last")
    a("s_endpgm")
    kernel_desc(a, name, 256, 0)
    return (name, 256, 512, p1.P1_LDS)
```

```python
from gen import *
from p1 import (P1_XN, P1_W, P1_LDS, WS_ST, WS_FL, FL_H, FL_O, WS_CS, FL_CS, SPIN_MAX, V_L, p1_ids)

FL_A = WS_FL + 32768
SCRN = P1_W + 16384 + 28 * 1024
FL_H2 = WS_FL + 49152
L_WQ = P1_W + 16384

def helper(a, S):
    V_WB, V_WQ, V_XO = 2, 3, 4
    V_ST = 28
    P = 32
    HW, T0, T1, T2 = S["T3"], S["T0"], S["T1"], S["T2"]
    sb = S["sb"]
    SQ, SB, SX = sb, sb + 4, sb + 8
    M0, OFF, QOFF, QSTEP, XM0, MU, OC = [sb + 12 + i for i in range(7)]
    NONCE, WS = S["NONCE"], S["WS"]
    a(f"s_sub_u32 s{HW}, s{S['W']}, 4")
    a(f"v_lshrrev_b32 v{P}, 3, v{V_L}")
    a(f"v_and_b32 v{P+6}, 7, v{V_L}")
    a(f"v_lshrrev_b32 v{P+2}, 1, v{P}")
    a(f"v_xor_b32 v{P+1}, v{P+6}, v{P+2}")
    a(f"v_mul_u32_u24 v{V_XO}, 896, v{P}")
    a(f"v_lshl_add_u32 v{V_XO}, v{P+1}, 4, v{V_XO}")
    a(f"v_xor_b32 v{V_XO+1}, 64, v{V_XO}")
    a(f"s_lshl_b32 s{T0}, s{S['RB']}, 7")
    a(f"s_lshl_b32 s{XM0}, s{HW}, 5")
    a(f"s_add_u32 s{T0}, s{T0}, s{XM0}")
    a(f"s_mul_i32 s{T0}, s{T0}, 896")
    a(f"s_lshl_b32 s{XM0}, s{HW}, 12")
    a(f"s_mov_b32 s{SX+2}, {32*896}")
    a(f"s_mov_b32 s{SX+3}, 0x00020000")
    a("s_waitcnt lgkmcnt(0)")
    a(f"s_add_u32 s{SX}, s{S['X']}, s{T0}")
    a(f"s_addc_u32 s{SX+1}, s{S['X']+1}, 0")
    a(f"s_and_b32 s{SX+1}, s{SX+1}, 0xffff")
    vm = []
    def wait_for(*labels):
        last = max(i for i, l in enumerate(vm) if l in labels)
        a(f"s_waitcnt vmcnt({len(vm) - 1 - last})")
    def xd(c):
        for g in range(4):
            a(f"s_add_u32 m0, s{XM0}, {P1_XN + c*16384 + g*1024}")
            a(f"s_movk_i32 s{T0}, {g*8*896 + c*128}")
            a(f"buffer_load_dwordx4 v{V_XO+(g&1)}, s[{SX}:{SX+3}], s{T0} offen lds")
            vm.append(f"x{c}")
    xd(0)
    a(f"v_lshrrev_b32 v{P+4}, 2, v{V_L}")
    a(f"v_and_b32 v{P+1}, 3, v{V_L}")
    a(f"v_lshlrev_b32 v{P+2}, 4, v{P+1}")
    a(f"s_mov_b32 s{SQ+3}, 0x00020000")
    a(f"s_cmp_ge_u32 s{S['CB']}, 14")
    a("s_cbranch_scc1 L_h_kv")
    a(f"v_mul_u32_u24 v{V_WQ}, 896, v{P+4}")
    a(f"s_mov_b32 s{SQ}, s{S['WQ']}")
    a(f"s_and_b32 s{SQ+1}, s{S['WQ']+1}, 0xffff")
    a(f"s_mov_b32 s{SQ+2}, {448*896}")
    a(f"s_lshl_b32 s{QOFF}, s{S['CB']}, 6")
    a(f"s_movk_i32 s{QSTEP}, {16*896}")
    a("s_branch L_h_go")
    a.label("L_h_kv")
    a(f"v_mul_u32_u24 v{V_WQ}, 56, v{P+4}")
    a(f"v_min_u32 v{P+2}, 40, v{P+2}")
    a(f"s_cmp_eq_u32 s{S['CB']}, 14")
    a(f"s_cselect_b32 s{SQ}, s{S['WK']}, s{S['WV']}")
    a(f"s_cselect_b32 s{SQ+1}, s{S['WK']+1}, s{S['WV']+1}")
    a(f"s_and_b32 s{SQ+1}, s{SQ+1}, 0xffff")
    a(f"s_mov_b32 s{SQ+2}, {448*56}")
    a(f"s_mov_b32 s{QOFF}, 0")
    a(f"s_movk_i32 s{QSTEP}, {16*56}")
    a.label("L_h_go")
    a(f"v_add_u32 v{V_WQ}, v{V_WQ}, v{P+2}")
    a(f"s_mul_i32 s{T0}, s{QSTEP}, s{HW}")
    a(f"s_add_u32 s{QOFF}, s{QOFF}, s{T0}")
    a(f"s_lshl_b32 s{QSTEP}, s{QSTEP}, 2")
    a(f"s_lshl_b32 s{M0}, s{HW}, 10")
    def qd(s):
        a(f"s_add_u32 m0, s{M0}, {L_WQ + s*4096}")
        a("s_nop 0")
        a(f"buffer_load_dwordx4 v{V_WQ}, s[{SQ}:{SQ+3}], s{QOFF} offen lds")
        a(f"s_add_u32 s{QOFF}, s{QOFF}, s{QSTEP}")
        vm.append(f"q{s}")
    qd(0); xd(1); qd(1); xd(2); qd(2); xd(3); qd(3)
    a(f"s_and_b32 s{MU}, s{HW}, 1")
    a(f"s_lshr_b32 s{OC}, s{HW}, 1")
    a(f"s_lshl_b32 s{T0}, s{OC}, 3")
    a(f"v_add_u32 v{P+7}, s{T0}, v{P}")
    a(f"v_bfe_u32 v{P+1}, v{V_L}, 1, 2")
    a(f"v_and_b32 v{P+2}, 1, v{V_L}")
    a(f"v_bfe_u32 v{P+3}, v{V_L}, 4, 1")
    a(f"s_lshl_b32 s{T0}, s{MU}, 1")
    a(f"v_add_u32 v{P+4}, s{T0}, v{P+3}")
    a(f"v_xor_b32 v{P+4}, v{P+4}, v{P+1}")
    a(f"v_mul_u32_u24 v{V_WB}, 3584, v{P+7}")
    a(f"v_lshl_add_u32 v{V_WB}, v{P+4}, 5, v{V_WB}")
    a(f"v_lshl_add_u32 v{V_WB}, v{P+2}, 4, v{V_WB}")
    a(f"s_cmp_eq_u32 s{MU}, 0")
    a(f"s_cselect_b32 s{SB}, s{S['WG']}, s{S['WU']}")
    a(f"s_cselect_b32 s{SB+1}, s{S['WG']+1}, s{S['WU']+1}")
    a(f"s_and_b32 s{SB+1}, s{SB+1}, 0xffff")
    a(f"s_mov_b32 s{SB+2}, {448*3584}")
    a(f"s_mov_b32 s{SB+3}, 0x00020000")
    a(f"s_lshl_b32 s{OFF}, s{S['CB']}, 7")
    def wd(g):
        for i in range(4):
            a(f"s_add_u32 m0, s{M0}, {P1_W + (g % 3)*16384 + i*4096}")
            a("s_nop 0")
            a(f"buffer_load_dwordx4 v{V_WB}, s[{SB}:{SB+3}], s{OFF} offen lds")
            a(f"s_add_u32 s{OFF}, s{OFF}, {16*3584}")
            vm.append(f"w{g}")
    a(f"s_bfe_u32 s{T0}, s2, 0x10003")
    a(f"s_lshl_b32 s{T0}, s{T0}, 7")
    a(f"v_mov_b32 v{V_ST+2}, s{T0}")
    a(f"v_mov_b32 v{V_ST+3}, {SCRN}")
    a(f"v_mov_b32 v{V_ST+1}, 0")
    a(f"s_lshr_b32 s{T0}, s2, 3")
    a(f"s_lshl_b32 s{T0}, s{T0}, 8")
    a(f"s_add_u32 s{T0}, s{T0}, {FL_A}")
    a(f"v_min_u32 v9, 45, v{V_L}")
    a(f"v_lshl_add_u32 v9, v9, 2, s{T0}")
    a(f"v_mov_b32 v10, 0")
    a(f"v_mov_b32 v{P+3}, {S['RELAY']}")
    a(f"v_mov_b32 v{P+4}, 0")
    a(f"s_mov_b32 s{T2}, 0")
    wait_for("x0", "q0")
    if S.get("HSTAMP") == 1: stamp(a, 1)
    a(f"s_cmp_lg_u32 s{HW}, 3")
    a("s_cbranch_scc1 L_h_non")
    a(f"global_load_dword v{V_ST+1}, v{V_ST+2}, s[{S['DBG']}:{S['DBG']+1}] sc1")
    a.label("L_h_non")
    a("s_barrier")
    D, AC, U = 40, 56, 64
    MK = sb + 20; MASK = sb + 26; CB0 = sb + 28
    def cs_setup():
        for r in range(12, 16):
            a(f"v_mov_b32 v{D+r}, 0")
        a(f"s_lshl_b32 s{T0}, s{OC}, 4")
        a(f"s_add_u32 s{T0}, s{T0}, s{S['CB']}")
        a(f"s_min_u32 s{T0}, s{T0}, 27")
        a(f"s_lshl_b32 s{T0}, s{T0}, 7")
        a(f"s_mul_i32 s{T1}, s{S['RB']}, {28*3584}")
        a(f"s_add_u32 s{T0}, s{T0}, s{T1}")
        a(f"v_mul_u32_u24 v{P+5}, 3584, v{P}")
        a(f"v_lshl_add_u32 v{P+5}, v{P+6}, 4, v{P+5}")
        for q in range(4):
            if q == 3: a("s_mov_b32 exec_hi, 0")
            a(f"buffer_load_dwordx4 {vr(D+4*q,4)}, v{P+5}, s[{SB}:{SB+3}], s{T0} offen")
            a(f"s_add_u32 s{T0}, s{T0}, {8*3584}")
            vm.append("c")
        a("s_mov_b64 exec, -1")
    def cs_addr():
        a(f"v_lshl_add_u32 v{P+5}, v{P+6}, 3, v{P}")
        a(f"v_and_b32 v{P+1}, 3, v{P+5}")
        a(f"v_bfe_u32 v{P+7}, v{P+5}, 3, 1")
        a(f"v_lshl_add_u32 v{P+1}, v{P+7}, 2, v{P+1}")
        a(f"v_bfe_u32 v{P+7}, v{P+5}, 2, 1")
        a(f"v_lshl_add_u32 v{P+1}, v{P+7}, 3, v{P+1}")
        a(f"v_lshrrev_b32 v{P+7}, 4, v{P+5}")
        a(f"v_lshl_add_u32 v{P+1}, v{P+7}, 5, v{P+1}")
        a(f"s_lshl_b32 s{T1}, s{MU}, 4")
        a(f"v_add_u32 v{P+1}, s{T1}, v{P+1}")
        a(f"s_lshl_b32 s{T1}, s{S['CB']}, 4")
        a(f"s_add_u32 s{T1}, s{T1}, s{S['RB']}")
        a(f"s_lshl_b32 s{T0}, s{T1}, 2")
        a(f"s_add_u32 s{T0}, s{T0}, s{HW}")
        a(f"s_lshl_b32 s{T0}, s{T0}, 2")
        a(f"s_add_u32 s{T0}, s{T0}, {FL_CS}")
        a(f"v_mov_b32 v{P+5}, s{T0}")
        a(f"s_lshl_b32 s{T1}, s{T1}, 8")
        a(f"s_add_u32 s{T1}, s{T1}, s{OC}")
        a(f"s_lshl_b32 s{T1}, s{T1}, 2")
        a(f"s_add_u32 s{T1}, s{T1}, {WS_CS}")
        a(f"v_lshl_add_u32 v{P+1}, v{P+1}, 3, s{T1}")
        for b in range(3):
            a(f"v_bfe_u32 v{P+7}, v{V_L}, {3+b}, 1")
            a(f"v_cmp_eq_u32 s[{MK+2*b}:{MK+2*b+1}], 1, v{P+7}")
        a(f"s_mov_b32 s{MASK}, 0xffff0000")
    def cs_acc():
        for i in range(4):
            dst = AC if i == 0 else U
            for r in range(4):
                a(f"v_lshlrev_b32 v{dst+2*r}, 16, v{D+4*i+r}")
                a(f"v_and_b32 v{dst+2*r+1}, s{MASK}, v{D+4*i+r}")
            if i:
                for r in range(8):
                    a(f"v_add_f32 v{AC+r}, v{AC+r}, v{U+r}")
    def cs_red():
        for r in range(8):
            a(f"v_add_f32_dpp v{AC+r}, v{AC+r}, v{AC+r} row_ror:8 row_mask:0xf bank_mask:0xf")
        for r in range(4):
            a(f"v_cndmask_b32 v{AC+r}, v{AC+2*r}, v{AC+2*r+1}, s[{MK}:{MK+1}]")
        for n, op, mk in ((4, "v_permlane16_swap_b32", MK + 2), (2, "v_permlane32_swap_b32", MK + 4)):
            for r in range(n):
                a(f"v_mov_b32 v{U+r}, v{AC+r}")
            a("s_nop 1")
            for r in range(n):
                a(f"{op} v{AC+r}, v{U+r}")
            a("s_nop 1")
            for r in range(n):
                a(f"v_add_f32 v{AC+r}, v{AC+r}, v{U+r}")
            for r in range(n // 2):
                a(f"v_cndmask_b32 v{AC+r}, v{AC+2*r}, v{AC+2*r+1}, s[{mk}:{mk+1}]")
        a(f"global_store_dword v{P+1}, v{AC}, s[{WS}:{WS+1}] sc1")
        vm.append("p")
    for s in range(7):
        if s == 0: xd(4); qd(4); qd(5); qd(6)
        if s == 1: xd(5); cs_setup()
        if s == 2: xd(6); wd(0); cs_addr()
        if s == 4:
            a(f"ds_read_b32 v{V_ST+1}, v{V_ST+3}")
            a("s_waitcnt lgkmcnt(0)")
            a(f"v_readfirstlane_b32 s{NONCE}, v{V_ST+1}")
            wd(1)
        if s == 5: cs_acc()
        if s == 6: cs_red()
        need = [f"x{s+1}", f"q{s+1}"] if s < 6 else ["w0"]
        if s == 4: need.append("c")
        wait_for(*need)
        if s == 3:
            a(f"s_cmp_lg_u32 s{HW}, 3")
            a("s_cbranch_scc1 L_h_nopub")
            a(f"s_mov_b32 s{T1}, {SPIN_MAX}")
            a.label("L_h_nonce")
            a(f"v_readfirstlane_b32 s{NONCE}, v{V_ST+1}")
            a(f"s_sub_u32 s{T1}, s{T1}, 1")
            a(f"s_cmp_eq_u32 s{T1}, 0")
            a("s_cbranch_scc1 L_h_nonced")
            a(f"s_cmp_lg_u32 s{NONCE}, 0")
            a("s_cbranch_scc1 L_h_nonced")
            a("s_sleep 2")
            a(f"global_load_dword v{V_ST+1}, v{V_ST+2}, s[{S['DBG']}:{S['DBG']+1}] sc1")
            a("s_waitcnt vmcnt(0)")
            a("s_branch L_h_nonce")
            a.label("L_h_nonced")
            a(f"ds_write_b32 v{V_ST+3}, v{V_ST+1}")
            a("s_waitcnt lgkmcnt(0)")
            a.label("L_h_nopub")
        a("s_barrier")
        if S.get("HSTAMP") == 1 and s in (0, 2, 4, 6): stamp(a, 2 + s // 2)
    B = b_setup(a, S, HW)
    for g in range(7):
        if g == 5:
            a(f"s_add_u32 s{OFF}, s{S['CB']}, 16")
            a(f"s_lshl_b32 s{OFF}, s{OFF}, 7")
        if g >= 5:
            a(f"s_cmp_ge_u32 s{S['CB']}, 12")
            a(f"s_cbranch_scc1 L_h_nw{g}")
        wd(g + 2)
        if g >= 5:
            a.label(f"L_h_nw{g}")
        if g < 5:
            a("s_waitcnt vmcnt(4)")
        elif g == 5:
            a(f"s_cmp_ge_u32 s{S['CB']}, 12")
            a("s_cbranch_scc0 L_h_w5")
            a("s_waitcnt vmcnt(0)")
            a.label("L_h_w5")
            a("s_waitcnt vmcnt(4)")
        else:
            a("s_waitcnt vmcnt(4)")
        if g == 0:
            a("s_mov_b64 exec, 1")
            a(f"global_store_dword v{P+5}, v{V_ST+1}, s[{WS}:{WS+1}] sc1")
            a("s_mov_b64 exec, -1")
        if g == 3:
            a(f"s_cmp_lg_u32 s{HW}, 1")
            a("s_cbranch_scc1 L_h_nkv")
            a(f"global_load_dword v10, v9, s[{WS}:{WS+1}] sc1")
            a.label("L_h_nkv")
        if g == 5:
            a(f"s_cmp_lg_u32 s{HW}, 1")
            a("s_cbranch_scc1 L_h_kvd")
            a(f"s_mov_b32 s{T1}, {SPIN_MAX}")
            a.label("L_h_kvw")
            a(f"v_cmp_ne_u32 vcc, s{NONCE}, v10")
            a(f"s_sub_u32 s{T1}, s{T1}, 1")
            a(f"s_cmp_eq_u32 s{T1}, 0")
            a("s_cbranch_scc1 L_h_kvd")
            a("s_cbranch_vccz L_h_kvd")
            a("s_sleep 4")
            a(f"global_load_dword v10, v9, s[{WS}:{WS+1}] sc1")
            a("s_waitcnt vmcnt(0)")
            a("s_branch L_h_kvw")
            a.label("L_h_kvd")
        a("s_barrier")
        if S.get("HSTAMP") == 2 and g < 6: stamp(a, 1 + g)
    if S.get("HSTAMP") == 1: stamp(a, 6)
    a(f"s_setprio {os.environ.get('BPRIO', '2')}")
    a(f"s_cmp_ge_u32 s{S['CB']}, 12")
    a("s_cbranch_scc1 L_h_done")
    b_pass(a, S, B, HW, lambda g, i: (a(f"s_add_u32 m0, s{M0}, {P1_W + (g % 3)*16384 + i*4096}"), a("s_nop 0"),
           a(f"buffer_load_dwordx4 v{V_WB}, s[{SB}:{SB+3}], s{OFF} offen lds"), a(f"s_add_u32 s{OFF}, s{OFF}, {16*3584}")))
    a.label("L_h_done")

NBAR2 = 7

def b_setup(a, S, HW):
    T0, T1 = S["T0"], S["T1"]
    B = dict(TA=72, XB=74, GA=78, SA=80, L16=81, AF=84, BF=100, ACC=116, G=180, ST=212, CS=216, MB=224, EO=232, T=248)
    P = B["G"]
    a(f"v_bfe_u32 v{P}, v{V_L}, 2, 2")
    a(f"v_lshrrev_b32 v{P+1}, 5, v{V_L}")
    a(f"v_bfe_u32 v{P+2}, v{V_L}, 4, 1")
    a(f"v_and_b32 v{P+3}, 1, v{V_L}")
    a(f"v_bfe_u32 v{P+4}, v{V_L}, 1, 1")
    a(f"v_bfe_u32 v{P+5}, v{V_L}, 3, 1")
    a(f"v_lshlrev_b32 v{P+6}, 3, v{P+4}")
    a(f"v_lshl_add_u32 v{P+7}, v{P}, 7, v{P+6}")
    a(f"v_lshl_add_u32 v{P+7}, v{P+1}, 11, v{P+7}")
    a(f"s_and_b32 s{T0}, s{HW}, 2")
    a(f"v_lshl_add_u32 v{P+8}, v{P+2}, 10, v{P+7}")
    a(f"v_lshl_add_u32 v{P+8}, v{P+3}, 4, v{P+8}")
    a(f"v_lshl_add_u32 v{P+9}, v{P+2}, 1, v{P+5}")
    a(f"v_xor_b32 v{P+9}, s{T0}, v{P+9}")
    a(f"v_lshl_add_u32 v{B['TA']}, v{P+9}, 5, v{P+8}")
    a(f"v_add_u32 v{B['TA']}, {P1_W}, v{B['TA']}")
    a(f"v_xor_b32 v{B['TA']+1}, 32, v{B['TA']}")
    a(f"v_and_b32 v{P+4}, 31, v{V_L}")
    a(f"v_lshlrev_b32 v{P}, 7, v{P+4}")
    a(f"s_and_b32 s{T1}, s{HW}, 1")
    a(f"s_lshl_b32 s{T1}, s{T1}, 13")
    a(f"v_add_u32 v{P}, s{T1}, v{P}")
    a(f"v_bfe_u32 v{P+2}, v{V_L}, 1, 3")
    a(f"v_xor_b32 v{P+1}, v{P+1}, v{P+2}")
    for i in range(4):
        a(f"v_xor_b32 v{P+2}, {2*i}, v{P+1}")
        a(f"v_lshl_add_u32 v{B['XB']+i}, v{P+2}, 4, v{P}")
    a(f"v_lshlrev_b32 v{B['L16']}, 4, v{V_L}")
    a(f"s_lshl_b32 s{T0}, s{T0}, 8")
    a(f"s_lshl_b32 s{T1}, s{S['CB']}, 14")
    a(f"s_add_u32 s{T1}, s{T1}, s{T0}")
    a(f"s_add_u32 s{T1}, s{T1}, {WS_CS + 4096 + 4}")
    a(f"v_lshl_add_u32 v{B['GA']}, v{V_L}, 3, s{T1}")
    a(f"v_add_u32 v{B['GA']+1}, 8192, v{B['GA']}")
    a(f"s_lshl_b32 s{T0}, s{S['RB']}, 10")
    a(f"s_and_b32 s{T1}, s{HW}, 1")
    a(f"s_lshl_b32 s{T1}, s{T1}, 9")
    a(f"s_add_u32 s{T0}, s{T0}, s{T1}")
    a(f"s_add_u32 s{T0}, s{T0}, {WS_ST}")
    a(f"v_lshl_add_u32 v{B['SA']}, v{P+4}, 3, s{T0}")
    return B

def b_gather(a, S, B):
    WS = S["WS"]
    for q in range(16):
        a(f"global_load_dword v{B['G']+q}, v{B['GA']+(q>>3)}, s[{WS}:{WS+1}] offset:{1024*(q&7) - 4096}")
    a(f"global_load_dword v{B['ST']}, v{B['SA']}, s[{WS}:{WS+1}] sc1")
    a(f"global_load_dword v{B['ST']+1}, v{B['SA']}, s[{WS}:{WS+1}] offset:256 sc1")

def b_pass(a, S, B, HW, dma):
    T0, T1, WS = S["T0"], S["T1"], S["WS"]
    AF, BF, ACC = B["AF"], B["BF"], B["ACC"]
    def acc(t, b): return ACC + 16 * (t + 2 * b)
    xoff = [0]
    def reads(k):
        g, j = 7 + k // 4, k % 4
        c = k // 4
        o = []
        if c * 16384 - xoff[0] + 4096 > 65535 and j == 0:
            o += [f"v_add_u32 v{B['XB']+i}, {c*16384 - xoff[0]}, v{B['XB']+i}" for i in range(4)]
            xoff[0] = c * 16384
        o += [f"ds_read_b128 {vr(BF+8*(k&1)+4*b,4)}, v{B['XB']+j} offset:{c*16384 - xoff[0] + 4096*b}" for b in range(2)]
        for t in range(2):
            for hf in range(2):
                o.append(f"ds_read_b64_tr_b16 {vr(AF+8*(k&1)+4*t+2*hf,2)}, v{B['TA']+t} offset:{(g%3)*16384 + j*4096 + hf*512}")
        return o
    for ins in reads(0): a(ins)
    for k in range(28):
        s, j = k // 4, k % 4
        a("s_waitcnt lgkmcnt(0)")
        if j == 3 and s < 6:
            a("s_waitcnt vmcnt(3)" if s < 5 else "s_waitcnt vmcnt(0)")
            a("s_barrier")
        if k == 7: b_gather(a, S, B)
        rd = reads(k + 1) if k < 27 else []
        h = len(rd) - 3
        fills = [rd[:h], rd[h:], [], []]
        i = 0
        for b in range(2):
            for t in range(2):
                c = "0" if k == 0 else vr(acc(t, b), 16)
                a(f"{MFMA} {vr(acc(t,b),16)}, {vr(AF+8*(k&1)+4*t,4)}, {vr(BF+8*(k&1)+4*b,4)}, {c}")
                for ins in fills[i]: a(ins)
                if i == 2 and s < 5:
                    dma(7 + s + 2, j)
                i += 1
    G, CS, MB, EO, T = B["G"], B["CS"], B["MB"], B["EO"], B["T"]
    for q in range(1, 16):
        a(f"v_add_f32 v{G}, v{G}, v{G+q}")
    a(f"v_and_b32 v{CS+1}, 0xffff0000, v{G}")
    a(f"v_sub_f32 v{CS+2}, v{G}, v{CS+1}")
    a(f"v_and_b32 v{CS+3}, 0xffff0000, v{CS+2}")
    a(f"v_sub_f32 v{CS+2}, v{CS+2}, v{CS+3}")
    a(f"v_lshrrev_b32 v{CS}, 16, v{CS+1}")
    a(f"v_or_b32 v{CS}, v{CS}, v{CS+3}")
    a(f"v_lshrrev_b32 v{CS+1}, 16, v{CS+2}")
    for r in range(2, 8):
        a(f"v_mov_b32 v{CS+r}, 0")
    for b in range(2):
        m = MB + 4 * b
        a(f"v_and_b32 v{m+1}, 0xffff, v{B['ST']+b}")
        a(f"v_xor_b32 v{m+1}, 0x8000, v{m+1}")
        a(f"v_lshl_or_b32 v{m}, v{m+1}, 16, v{m+1}")
        a(f"v_mov_b32 v{m+2}, 0")
        a(f"v_mov_b32 v{m+3}, 0")
    a(f"v_permlane32_swap_b32 v{CS}, v{CS+4}")
    a(f"v_permlane32_swap_b32 v{CS+1}, v{CS+5}")
    a("s_mov_b32 exec_lo, 0")
    for b in range(2):
        a(f"v_mov_b32 v{MB+4*b}, 0")
        a(f"v_mov_b32 v{MB+4*b+1}, 0")
    a("s_mov_b64 exec, -1")
    a("s_nop 1")
    for b in range(2):
        for t in range(2):
            a(f"{MFMA} {vr(acc(t,b),16)}, {vr(CS+4*t,4)}, {vr(MB+4*b,4)}, {vr(acc(t,b),16)}")
    a(f"s_add_u32 s{T1}, s{S['CB']}, 16")
    a(f"s_lshl_b32 s{T1}, s{T1}, 2")
    a(f"s_and_b32 s{T0}, s{HW}, 2")
    a(f"s_add_u32 s{T1}, s{T1}, s{T0}")
    a(f"s_lshl_b32 s{T0}, s{S['RB']}, 1")
    a(f"s_and_b32 s{S['T2']}, s{HW}, 1")
    a(f"s_add_u32 s{S['T2']}, s{S['T2']}, s{T0}")
    a(f"s_mul_i32 s{T0}, s{S['T2']}, 224")
    a(f"s_add_u32 s{T0}, s{T0}, s{T1}")
    a(f"s_lshl_b32 s{T0}, s{T0}, 10")
    a(f"s_add_u32 s{T0}, s{T0}, {WS_H}")
    a(f"v_add_u32 v{T}, s{T0}, v{B['L16']}")
    a(f"v_add_u32 v{T+1}, {112*1024}, v{T}")
    for b in range(2):
        for t in range(2):
            c = acc(t, b); o = EO + 4 * (t + 2 * b)
            for r in range(8):
                a(f"v_max_f32 v{c+r}, 0, v{c+r}")
            for r in range(8):
                a(f"v_mul_f32 v{c+r}, v{c+r}, v{c+8+r}")
            for r in range(4):
                a(f"v_cvt_pk_bf16_f32 v{o+r}, v{c+2*r}, v{c+2*r+1}")
            a(f"global_store_dwordx4 v{T+b}, {vr(o,4)}, s[{WS}:{WS+1}] offset:{1024*t} sc1")
    a(f"s_lshl_b32 s{T0}, s{S['T2']}, 8")
    a(f"s_lshl_b32 s{T1}, s{S['CB']}, 3")
    a(f"s_add_u32 s{T0}, s{T0}, s{T1}")
    a(f"s_and_b32 s{T1}, s{HW}, 2")
    a(f"s_lshl_b32 s{T1}, s{T1}, 1")
    a(f"s_add_u32 s{T0}, s{T0}, s{T1}")
    a(f"s_add_u32 s{T0}, s{T0}, {FL_H2 + 128}")
    a(f"v_mov_b32 v{T+2}, s{T0}")
    a(f"v_mov_b32 v{T+3}, s{S['NONCE']}")
    a("s_barrier")
    a("s_waitcnt vmcnt(0)")
    a("s_mov_b64 exec, 1")
    a(f"global_store_dword v{T+2}, v{T+3}, s[{WS}:{WS+1}] sc1")
    a("s_mov_b64 exec, -1")

V_TA, V_TQ, V_XB = 2, 4, 6
V_SR = 10
V_GA = 12
V_CT = 16
V_AF, V_BF = 32, 48
V_ACC = 64
V_CS = 192; V_MB = 208; V_EO = 216; V_G = 216; V_CD = 192
V_ONE = 244

def compute(a, S, peek=None, pre=None, mid=None, sc=" sc1"):
    W, T0, T1, T2 = S["W"], S["T0"], S["T1"], S["T2"]
    WS, NONCE = S["WS"], S["NONCE"]
    sb = S["sb"]
    C = dict(IT=sb, SL=sb + 1, FLAG=sb + 2, RT=sb + 3, FWD=sb + 4, WRAP=sb + 5, M1=sb + 6, M2=sb + 8, ST=sb + 10, RQ=sb + 11)
    P = V_CT
    B0 = 64
    a(f"s_or_b32 s{T1}, s2, s{W}")
    a(f"s_cmp_lg_u32 s{T1}, 0")
    a("s_cbranch_scc1 L_c_nononce")
    a(f"s_memrealtime s[{sb}:{sb+1}]")
    a(f"v_lshlrev_b32 v{P+1}, 7, v{V_L}")
    a("s_waitcnt lgkmcnt(0)")
    a(f"s_or_b32 s{T1}, s{sb}, 1")
    a(f"v_mov_b32 v{P+2}, s{T1}")
    a("s_mov_b64 exec, 3")
    a(f"global_store_dword v{P+1}, v{P+2}, s[{S['DBG']}:{S['DBG']+1}] sc1")
    a("s_mov_b64 exec, -1")
    a.label("L_c_nononce")
    a(f"v_bfe_u32 v{P}, v{V_L}, 2, 2")
    a(f"v_lshrrev_b32 v{P+1}, 5, v{V_L}")
    a(f"v_bfe_u32 v{P+2}, v{V_L}, 4, 1")
    a(f"v_and_b32 v{P+3}, 1, v{V_L}")
    a(f"v_bfe_u32 v{P+4}, v{V_L}, 1, 1")
    a(f"v_bfe_u32 v{P+5}, v{V_L}, 3, 1")
    a(f"v_lshlrev_b32 v{P+6}, 3, v{P+4}")
    a(f"v_lshl_add_u32 v{P+7}, v{P}, 7, v{P+6}")
    a(f"v_lshl_add_u32 v{P+7}, v{P+1}, 11, v{P+7}")
    a(f"s_and_b32 s{T0}, s{W}, 2")
    a(f"v_lshl_add_u32 v{P+8}, v{P+2}, 10, v{P+7}")
    a(f"v_lshl_add_u32 v{P+8}, v{P+3}, 4, v{P+8}")
    a(f"v_lshl_add_u32 v{P+9}, v{P+2}, 1, v{P+5}")
    a(f"v_xor_b32 v{P+9}, s{T0}, v{P+9}")
    a(f"v_lshl_add_u32 v{V_TA}, v{P+9}, 5, v{P+8}")
    a(f"v_add_u32 v{V_TA}, {P1_W}, v{V_TA}")
    a(f"v_xor_b32 v{V_TA+1}, 32, v{V_TA}")
    a(f"v_lshl_add_u32 v{P+8}, v{P}, 6, v{P+6}")
    a(f"v_lshl_add_u32 v{P+8}, v{P+1}, 9, v{P+8}")
    a(f"v_lshl_add_u32 v{P+8}, v{P+3}, 5, v{P+8}")
    a(f"v_lshl_add_u32 v{P+8}, v{P+2}, 4, v{P+8}")
    a(f"v_and_b32 v{P+9}, 19, v{V_L}")
    a(f"v_cmp_eq_u32 vcc, 17, v{P+9}")
    a(f"s_cmp_ge_u32 s{S['CB']}, 14")
    a(f"s_cselect_b32 s{T1}, 8, 0")
    a(f"v_add_u32 v{V_TQ}, {L_WQ}, v{P+8}")
    a(f"v_add_u32 v{P+10}, s{T1}, v{V_TQ}")
    a(f"v_cndmask_b32 v{V_TQ}, v{V_TQ}, v{P+10}, vcc")
    a(f"v_and_b32 v{P}, 31, v{V_L}")
    a(f"v_lshlrev_b32 v{P}, 7, v{P}")
    a(f"s_and_b32 s{T1}, s{W}, 1")
    a(f"s_lshl_b32 s{T1}, s{T1}, 13")
    a(f"s_lshl_b32 s{T2}, s{T0}, 11")
    a(f"s_add_u32 s{T1}, s{T1}, s{T2}")
    a(f"v_add_u32 v{P}, s{T1}, v{P}")
    a(f"v_bfe_u32 v{P+2}, v{V_L}, 1, 3")
    a(f"v_xor_b32 v{P+1}, v{P+1}, v{P+2}")
    for i in range(4):
        a(f"v_xor_b32 v{P+2}, {2*i}, v{P+1}")
        a(f"v_lshl_add_u32 v{V_XB+i}, v{P+2}, 4, v{P}")
    a(f"s_lshl_b32 s{C['RT']}, s{S['RB']}, 2")
    a(f"s_and_b32 s{T1}, s{W}, 1")
    a(f"s_lshl_b32 s{T1}, s{T1}, 1")
    a(f"s_add_u32 s{C['RT']}, s{C['RT']}, s{T1}")
    a(f"s_lshr_b32 s{T1}, s{W}, 1")
    a(f"s_add_u32 s{C['RQ']}, s{C['RT']}, s{T1}")
    a(f"v_lshlrev_b32 v{P}, 4, v{V_L}")
    a(f"v_and_b32 v{P+4}, 31, v{V_L}")
    a(f"v_lshrrev_b32 v{P+5}, 5, v{V_L}")
    a(f"v_lshlrev_b32 v{P+6}, 4, v{P+4}")
    a(f"v_lshl_add_u32 v{P+6}, v{P+5}, 10, v{P+6}")
    a(f"s_lshl_b32 s{T1}, s{C['RT']}, 8")
    a(f"s_add_u32 s{T1}, s{T1}, {WS_ST}")
    a(f"v_lshl_add_u32 v{P+7}, v{P+4}, 3, s{T1}")
    a(f"s_lshl_b32 s{T0}, s{T0}, 8")
    a(f"s_lshl_b32 s{T1}, s{S['CB']}, 14")
    a(f"s_add_u32 s{T1}, s{T1}, s{T0}")
    a(f"s_add_u32 s{T1}, s{T1}, {WS_CS + 4096}")
    a(f"v_lshl_add_u32 v{V_GA}, v{V_L}, 3, s{T1}")
    a(f"v_add_u32 v{V_GA+1}, 8192, v{V_GA}")
    a(f"s_lshl_b32 s{T1}, s{S['CB']}, 8")
    a(f"s_add_u32 s{T1}, s{T1}, {FL_CS}")
    a(f"v_lshl_add_u32 v{V_GA+2}, v{V_L}, 2, s{T1}")
    a(f"v_mov_b32 v{P+12}, {SCRN}")
    a(f"s_mov_b32 s{C['FWD']}, 16384")
    a(f"s_mov_b32 s{C['WRAP']}, {(-2*16384) & 0xffffffff}")
    a(f"s_mov_b32 s{C['SL']}, 0")
    a(f"s_mov_b32 s{C['FLAG']}, 0")
    for r in range(64, 128):
        a(f"v_mov_b32 v{V_ACC+r}, 0")
    for r in range(4):
        a(f"v_mov_b32 v{V_ONE+r}, 0x3f803f80")
    a("s_waitcnt lgkmcnt(0)")
    if mid: mid()
    a("s_barrier")
    stamp(a, 1)

    QA, QC, QS, QG = V_ACC + 64, V_ACC + 80, V_ACC + 96, V_ACC + 112
    ONE = vr(V_ONE, 4)
    def qreads(buf, j):
        return [f"ds_read_b128 {vr(V_BF+4*buf,4)}, v{V_XB+j}",
                f"ds_read_b64_tr_b16 {vr(V_AF+4*buf,2)}, v{V_TQ} offset:{j*1024}",
                f"ds_read_b64_tr_b16 {vr(V_AF+4*buf+2,2)}, v{V_TQ} offset:{j*1024+256}"]
    for ins in qreads(0, 0): a(ins)
    a(f"v_add_u32 v{V_XB}, s{C['FWD']}, v{V_XB}")
    def qloop(tag, swap):
        a(f"s_mov_b32 s{C['IT']}, 7")
        a.label(f"L_c_q{tag}")
        for j in range(4):
            cur, nxt = j & 1, (j & 1) ^ 1
            a("s_waitcnt lgkmcnt(0)")
            if j == 3:
                a("s_barrier")
                a(f"v_add_u32 v{V_TQ}, 4096, v{V_TQ}")
            jj = (j + 1) & 3
            A_, B_ = vr(V_AF + 4 * cur, 4), vr(V_BF + 4 * cur, 4)
            a(f"{MFMA} {vr(QA,16)}, {B_ if swap else A_}, {A_ if swap else B_}, {vr(QA,16)}")
            for ins in qreads(nxt, jj): a(ins)
            a(f"{MFMA} {vr(QC,16)}, {ONE}, {A_}, {vr(QC,16)}")
            a(f"v_add_u32 v{V_XB+jj}, s{C['FWD']}, v{V_XB+jj}")
            a(f"{MFMA} {vr(QS,16)}, {ONE}, {B_}, {vr(QS,16)}")
            a(f"{MFMA} {vr(QG,16)}, {B_}, {B_}, {vr(QG,16)}")
        a(f"s_cmp_lg_u32 s{C['IT']}, 3")
        a(f"s_cbranch_scc1 L_c_qh{tag}")
        a(f"ds_read_b32 v{P+13}, v{P+12}")
        a.label(f"L_c_qh{tag}")
        a(f"s_sub_u32 s{C['IT']}, s{C['IT']}, 1")
        a(f"s_cmp_lg_u32 s{C['IT']}, 0")
        a(f"s_cbranch_scc1 L_c_q{tag}")
    a(f"s_cmp_eq_u32 s{S['CB']}, 15")
    a("s_cbranch_scc0 L_c_qn")
    qloop("v", True)
    a("s_branch L_c_qe")
    RET = f"s_setpc_b64 s[{C['M2']}:{C['M2']+1}]"
    a.label("L_c_qn")
    qloop("p", False)
    a.label("L_c_qe")
    stamp(a, 2)
    a(f"v_readfirstlane_b32 s{NONCE}, v{P+13}")

    def acc(t, b, ps): return V_ACC + 64 * ps + 16 * (t + 2 * b)
    def reads(buf, j):
        out = [f"ds_read_b128 {vr(V_BF+8*buf+4*b,4)}, v{V_XB+j} offset:{4096*b}" for b in range(2)]
        for t in range(2):
            for hf in range(2):
                out.append(f"ds_read_b64_tr_b16 {vr(V_AF+8*buf+4*t+2*hf,2)}, v{V_TA+t} offset:{j*4096 + hf*512}")
        return out
    def pass_entry(extra_s=None):
        for i in range(4):
            a(f"v_add_u32 v{V_XB+i}, {(-(8 if i == 0 else 7)*16384) & 0xffffffff}, v{V_XB+i}")
            if extra_s is not None:
                a(f"v_subrev_u32 v{V_XB+i}, s{extra_s}, v{V_XB+i}")
        for ins in reads(0, 0): a(ins)
        a(f"v_add_u32 v{V_XB}, s{C['FWD']}, v{V_XB}")
    a("s_waitcnt lgkmcnt(0)")
    a(f"s_and_b32 s{T0}, s{W}, 2")
    a(f"s_lshl_b32 s{T0}, s{T0}, 11")
    pass_entry(T0)
    for b, bit in enumerate((0, 1, 3, 4)):
        a(f"v_bfe_u32 v{P+1}, v{V_L}, {bit}, 1")
        a(f"v_cmp_eq_u32 s[{B0+2*b}:{B0+2*b+1}], 1, v{P+1}")
    a(f"v_bfe_u32 v{P+1}, v{V_L}, 2, 1")
    a(f"v_cmp_eq_u32 s[{B0+8}:{B0+9}], 1, v{P+1}")
    n = 8
    for b in range(4):
        for r in range(n):
            a(f"v_cndmask_b32 v{QG+r}, v{QG+2*r}, v{QG+2*r+1}, s[{B0+2*b}:{B0+2*b+1}]")
        n //= 2
    a(f"v_mov_b32 v{QG+1}, v{QG}")
    a("s_nop 1")
    a(f"v_permlane32_swap_b32 v{QG}, v{QG+1}")
    a("s_nop 1")
    a(f"v_cndmask_b32 v{QG}, v{QG}, v{QG+1}, s[{B0+8}:{B0+9}]")
    s_, q_ = QS, QG
    k = hex(f32bits(1.0 / 448))
    a(f"v_mul_f32 v{s_}, {k}, v{s_}")
    a(f"v_mul_f32 v{q_}, {k}, v{q_}")
    a(f"v_fma_f32 v{q_}, -v{s_}, v{s_}, v{q_}")
    a(f"v_max_f32 v{q_}, 0, v{q_}")
    a(f"v_cvt_pk_bf16_f32 v{q_}, v{q_}, v{q_}")
    a(f"v_and_b32 v{q_}, 0xffff0000, v{q_}")
    a(f"v_add_f32 v{q_}, {hex(f32bits(1e-5))}, v{q_}")
    a(f"v_cvt_pk_bf16_f32 v{q_}, v{q_}, v{q_}")
    a(f"v_and_b32 v{q_}, 0xffff0000, v{q_}")
    a(f"v_sqrt_f32 v{q_}, v{q_}")
    a(f"s_lshl_b32 s{T0}, s{C['RQ']}, 8")
    a(f"v_cvt_pk_bf16_f32 v{P+8}, v{s_}, v{q_}")
    a(f"v_mov_b32 v{P+9}, v{P+13}")
    a(f"s_add_u32 s{T0}, s{T0}, {WS_ST}")
    a(f"v_lshl_add_u32 v{P+1}, v{P+4}, 3, s{T0}")
    a("s_mov_b32 exec_hi, 0")
    a(f"global_store_dwordx2 v{P+1}, {vr(P+8,2)}, s[{WS}:{WS+1}] sc1")
    a("s_mov_b64 exec, -1")
    def bfrag(m, st, sr):
        a(f"v_and_b32 v{m+1}, 0xffff, v{st}")
        a(f"v_xor_b32 v{m+1}, 0x8000, v{m+1}")
        a(f"v_lshl_or_b32 v{m}, v{m+1}, 16, v{m+1}")
        a(f"v_mov_b32 v{m+2}, 0")
        a(f"v_mov_b32 v{m+3}, 0")
        if sr is not None:
            a(f"v_and_b32 v{sr}, 0xffff0000, v{st}")
            a(f"v_rcp_f32 v{sr}, v{sr}")
    def split3(c, s):
        a(f"v_and_b32 v{c+1}, 0xffff0000, v{s}")
        a(f"v_sub_f32 v{c+2}, v{s}, v{c+1}")
        a(f"v_and_b32 v{c+3}, 0xffff0000, v{c+2}")
        a(f"v_sub_f32 v{c+2}, v{c+2}, v{c+3}")
        a(f"v_lshrrev_b32 v{c}, 16, v{c+1}")
        a(f"v_or_b32 v{c}, v{c}, v{c+3}")
        a(f"v_lshrrev_b32 v{c+1}, 16, v{c+2}")
        a(f"v_mov_b32 v{c+2}, 0")
        a(f"v_mov_b32 v{c+3}, 0")
    bfrag(V_MB, P + 8, V_SR)
    split3(V_CS, QC)
    a("s_mov_b32 exec_lo, 0")
    for r in (V_MB, V_MB + 1, V_CS, V_CS + 1):
        a(f"v_mov_b32 v{r}, 0")
    a("s_mov_b64 exec, -1")
    c = QA; M1, M2 = C["M1"], C["M2"]
    a(f"s_cmp_eq_u32 s{S['CB']}, 15")
    a("s_cbranch_scc1 L_c_ev")
    a(f"{MFMA} {vr(QA,16)}, {vr(V_CS,4)}, {vr(V_MB,4)}, {vr(QA,16)}")
    a(f"s_cmp_eq_u32 s{S['CB']}, 14")
    a("s_cbranch_scc1 L_c_ek")
    a(f"s_mul_i32 s{T0}, s{C['RQ']}, {56*512}")
    a(f"s_lshl_b32 s{T1}, s{S['CB']}, 11")
    a(f"s_add_u32 s{T0}, s{T0}, s{T1}")
    a(f"s_add_u32 s{T0}, s{T0}, {WS_Q}")
    a(f"v_add_u32 v{P+1}, s{T0}, v{P+6}")
    a(f"v_mul_f32 v{P+2}, {hex(f32bits(QSCALE))}, v{V_SR}")
    a("s_nop 7")
    o = V_EO
    for r in range(16):
        a(f"v_mul_f32 v{c+r}, v{c+r}, v{P+2}")
    for r in range(8):
        a(f"v_cvt_pk_bf16_f32 v{o+r}, v{c+2*r}, v{c+2*r+1}")
    a(f"global_store_dwordx4 v{P+1}, {vr(o,4)}, s[{WS}:{WS+1}]{sc}")
    a(f"global_store_dwordx4 v{P+1}, {vr(o+4,4)}, s[{WS}:{WS+1}] offset:512{sc}")
    a(f"s_lshl_b32 s{T0}, s{S['RB']}, 9")
    a(f"s_lshl_b32 s{T1}, s{S['CB']}, 2")
    a(f"s_add_u32 s{T0}, s{T0}, s{T1}")
    a(f"s_add_u32 s{C['FLAG']}, s{T0}, {FL_A + 128}")
    a(f"s_mov_b32 s{M1}, 3")
    a("s_branch L_c_ed")
    a.label("L_c_ek")
    a(f"v_cmp_eq_u32 s[{M1}:{M1+1}], 1, v{P+5}")
    a(f"s_mul_i32 s{T0}, s{C['RQ']}, {KVT}")
    a(f"s_add_u32 s{T0}, s{T0}, {WS_KV + 2048}")
    a(f"v_mov_b32 v{P+10}, 0x3f803f80")
    a(f"v_mov_b32 v{P+11}, 0x00003f80")
    a(f"v_add_u32 v{P+1}, s{T0}, v{P+6}")
    a("s_nop 7")
    e = V_EO; o = e + 2
    for r in range(16):
        a(f"v_mul_f32 v{c+r}, v{c+r}, v{V_SR}")
    for r in range(8):
        a(f"v_cvt_pk_bf16_f32 v{o+r}, v{c+2*r}, v{c+2*r+1}")
    a(f"v_cndmask_b32 v{o+6}, v{o+6}, v{P+10}, s[{M1}:{M1+1}]")
    a(f"v_cndmask_b32 v{o+7}, v{o+7}, v{P+11}, s[{M1}:{M1+1}]")
    a(f"v_mov_b32 v{e}, v{o+6}")
    a(f"v_mov_b32 v{e+1}, v{o+7}")
    a(f"v_mov_b32 v{P+2}, v{o+6}")
    a(f"v_mov_b32 v{P+3}, v{o+7}")
    a(f"global_store_dwordx4 v{P+1}, {vr(o,4)}, s[{WS}:{WS+1}] offset:-2048{sc}")
    a(f"global_store_dwordx4 v{P+1}, {vr(o+4,4)}, s[{WS}:{WS+1}] offset:-1536{sc}")
    a(f"v_permlane32_swap_b32 v{P+2}, v{e}")
    a(f"v_permlane32_swap_b32 v{P+3}, v{e+1}")
    a("s_nop 1")
    a(f"v_cndmask_b32 v{e}, v{e}, v{P+2}, s[{M1}:{M1+1}]")
    a(f"v_cndmask_b32 v{e+1}, v{e+1}, v{P+3}, s[{M1}:{M1+1}]")
    a(f"global_store_dwordx4 v{P+1}, {vr(e,4)}, s[{WS}:{WS+1}]{sc}")
    a(f"global_store_dwordx4 v{P+1}, {vr(e+4,4)}, s[{WS}:{WS+1}] offset:512{sc}")
    a("s_branch L_c_ekv")
    a.label("L_c_ev")
    a(f"{MFMA} {vr(QA,16)}, {vr(V_MB,4)}, {vr(V_CS,4)}, {vr(QA,16)}")
    a(f"s_mul_i32 s{T0}, s{C['RQ']}, {KVT}")
    a(f"s_add_u32 s{T0}, s{T0}, {WS_KV + 4096}")
    a(f"v_add_u32 v{P+1}, s{T0}, v{P}")
    a(f"v_mov_b32 v{P+10}, 0x3f803f80")
    a(f"v_mov_b32 v{P+11}, 0")
    a(f"v_cmp_eq_u32 vcc, 28, v{P+4}")
    a(f"v_cmp_le_u32 s[{M2}:{M2+1}], 28, v{P+4}")
    a("s_nop 0")
    a(f"v_cndmask_b32 v{P+10}, v{P+11}, v{P+10}, vcc")
    o = V_EO
    for h in range(2):
        for r0 in (0, 8):
            for r in range(r0, r0 + 8):
                a(f"v_readlane_b32 s{64+r-r0}, v{V_SR}, {(r & 3) + 8 * (r >> 2) + 4 * h}")
            a("s_mov_b32 exec_hi, 0" if h == 0 else "s_mov_b32 exec_lo, 0")
            a("s_nop 0")
            for r in range(r0, r0 + 8):
                a(f"v_mul_f32 v{c+r}, s{64+r-r0}, v{c+r}")
            a("s_mov_b64 exec, -1")
    for r in range(8):
        a(f"v_cvt_pk_bf16_f32 v{o+r}, v{c+2*r}, v{c+2*r+1}")
    for r in range(8):
        a(f"v_cndmask_b32 v{o+r}, v{o+r}, v{P+10}, s[{M2}:{M2+1}]")
    a(f"global_store_dwordx4 v{P+1}, {vr(o,4)}, s[{WS}:{WS+1}]{sc}")
    a(f"global_store_dwordx4 v{P+1}, {vr(o+4,4)}, s[{WS}:{WS+1}] offset:1024{sc}")
    a.label("L_c_ekv")
    a(f"s_lshl_b32 s{T0}, s{S['RB']}, 1")
    a(f"s_add_u32 s{T0}, s{T0}, s{S['CB']}")
    a(f"s_lshl_b32 s{T0}, s{T0}, 2")
    a(f"s_add_u32 s{C['FLAG']}, s{T0}, {FL_A - 56}")
    a(f"s_mov_b32 s{M1}, -1")
    a.label("L_c_ed")
    for r in range(64):
        a(f"v_mov_b32 v{V_ACC+64+r}, 0")
    stamp(a, 3)

    def poll_ins():
        return [f"global_load_dwordx2 {vr(P+8,2)}, v{P+7}, s[{WS}:{WS+1}] sc1",
                f"global_load_dwordx2 {vr(P+10,2)}, v{P+7}, s[{WS}:{WS+1}] offset:256 sc1",
                f"global_load_dword v{V_GA+3}, v{V_GA+2}, s[{WS}:{WS+1}] sc1"]
    def gather_ins():
        return [f"global_load_dwordx2 {vr(V_G+2*q,2)}, v{V_GA+(q>>3)}, s[{WS}:{WS+1}] offset:{1024*(q&7) - 4096}" for q in range(16)]
    def loop(tag, ps):
        a(f"s_mov_b32 s{C['IT']}, 7")
        a.label(f"L_c_g{tag}")
        for j in range(4):
            cur, nxt = j & 1, (j & 1) ^ 1
            a("s_waitcnt lgkmcnt(0)")
            if j == 3:
                a("s_barrier")
            jj = (j + 1) & 3
            rd = reads(nxt, jj)
            fills = [rd[0:3], rd[3:6], [f"v_add_u32 v{V_XB+jj}, s{C['FWD']}, v{V_XB+jj}"], []]
            if j == 2:
                fills[2] += [f"s_add_u32 s{C['SL']}, s{C['SL']}, 1", f"s_cmp_eq_u32 s{C['SL']}, 3",
                             f"s_cselect_b32 s{T0}, s{C['WRAP']}, s{C['FWD']}", f"s_cselect_b32 s{C['SL']}, 0, s{C['SL']}"]
                fills[3] += [f"v_add_u32 v{V_TA}, s{T0}, v{V_TA}", f"v_add_u32 v{V_TA+1}, s{T0}, v{V_TA+1}"]
            k = 0
            for b in range(2):
                for t in range(2):
                    a(f"{MFMA} {vr(acc(t,b,ps),16)}, {vr(V_AF+8*cur+4*t,4)}, {vr(V_BF+8*cur+4*b,4)}, {vr(acc(t,b,ps),16)}")
                    for ins in fills[k]: a(ins)
                    k += 1
        a(f"s_getpc_b64 s[{C['M2']}:{C['M2']+1}]")
        a("s_branch L_c_ghook")
        a(f"s_sub_u32 s{C['IT']}, s{C['IT']}, 1")
        a(f"s_cmp_lg_u32 s{C['IT']}, 0")
        a(f"s_cbranch_scc1 L_c_g{tag}")
    def gu_epilogue(ps, cs):
        for b in range(2):
            for t in range(2):
                a(f"{MFMA} {vr(acc(t,b,ps),16)}, {vr(cs+4*t,4)}, {vr(V_MB+4*b,4)}, {vr(acc(t,b,ps),16)}")
        a(f"s_lshl_b32 s{T1}, s{T1}, 2")
        a(f"s_and_b32 s{T0}, s{W}, 2")
        a(f"s_add_u32 s{T1}, s{T1}, s{T0}")
        a(f"s_mul_i32 s{T0}, s{C['RT']}, 112")
        a(f"s_add_u32 s{T0}, s{T0}, s{T1}")
        a(f"s_lshl_b32 s{T0}, s{T0}, 10")
        a(f"s_add_u32 s{T0}, s{T0}, {WS_H}")
        a(f"v_add_u32 v{P+1}, s{T0}, v{P}")
        a(f"v_add_u32 v{P+2}, {112*1024}, v{P+1}")
        a("s_nop 3")
        for b in range(2):
            for t in range(2):
                c = acc(t, b, ps); o = V_EO + 4 * (t + 2 * b)
                for r in range(8):
                    a(f"v_max_f32 v{c+r}, 0, v{c+r}")
                for r in range(8):
                    a(f"v_mul_f32 v{c+r}, v{c+r}, v{c+8+r}")
                for r in range(4):
                    a(f"v_cvt_pk_bf16_f32 v{o+r}, v{c+2*r}, v{c+2*r+1}")
                a(f"global_store_dwordx4 v{P+1+b}, {vr(o,4)}, s[{WS}:{WS+1}] offset:{1024*t}{sc}")
    a(f"s_mov_b32 s{C['ST']}, 0")
    loop("l", 1)
    stamp(a, 5)
    a(f"s_mov_b32 s{T1}, s{S['CB']}")
    gu_epilogue(1, V_CS)
    a("s_branch L_c_done")
    a.label("L_c_ghook")
    a(f"s_add_u32 s{C['M2']}, s{C['M2']}, 4")
    a(f"s_addc_u32 s{C['M2']+1}, s{C['M2']+1}, 0")
    a(f"s_add_u32 s{C['ST']}, s{C['ST']}, 1")
    a(f"s_cmp_lg_u32 s{C['ST']}, 1")
    a("s_cbranch_scc1 L_c_g2")
    a("s_waitcnt vmcnt(0)")
    a(RET)
    a.label("L_c_g2")
    a(f"s_cmp_lg_u32 s{C['ST']}, 2")
    a("s_cbranch_scc1 L_c_g4")
    for ins in poll_ins(): a(ins)
    a(f"s_cmp_lg_u32 s{W}, 0")
    a("s_cbranch_scc1 L_c_g0")
    a(f"v_lshl_add_u32 v{P+1}, v{V_L}, 8, s{C['FLAG']}")
    a(f"s_mov_b32 exec_lo, s{C['M1']}")
    a("s_mov_b32 exec_hi, 0")
    a(f"global_store_dword v{P+1}, v{P+13}, s[{WS}:{WS+1}] sc1")
    a("s_mov_b64 exec, -1")
    a(RET)
    a.label("L_c_g4")
    a(f"s_cmp_lg_u32 s{C['ST']}, 4")
    a("s_cbranch_scc1 L_c_g6")
    a(f"s_mov_b32 s{T2}, {SPIN_MAX}")
    a.label("L_c_ck")
    a("s_waitcnt vmcnt(0)")
    a(f"v_xor_b32 v{P+1}, s{NONCE}, v{P+9}")
    a(f"v_xor_b32 v{P+2}, s{NONCE}, v{P+11}")
    a(f"v_xor_b32 v{P+3}, s{NONCE}, v{V_GA+3}")
    a(f"v_or3_b32 v{P+1}, v{P+1}, v{P+2}, v{P+3}")
    a(f"v_cmp_ne_u32 vcc, 0, v{P+1}")
    a(f"s_sub_u32 s{T2}, s{T2}, 1")
    a(f"s_cmp_eq_u32 s{T2}, 0")
    a("s_cbranch_scc1 L_c_ok")
    a("s_cbranch_vccz L_c_ok")
    a("s_sleep 4")
    for ins in poll_ins(): a(ins)
    a("s_branch L_c_ck")
    a.label("L_c_ok")
    for ins in gather_ins(): a(ins)
    a(RET)
    a.label("L_c_g6")
    a(f"s_cmp_lg_u32 s{C['ST']}, 6")
    a("s_cbranch_scc1 L_c_g7")
    if pre: pre()
    a(RET)
    a.label("L_c_g7")
    a(f"s_cmp_lg_u32 s{C['ST']}, 7")
    a("s_cbranch_scc1 L_c_g0")
    a("s_waitcnt vmcnt(16)")
    a(f"v_add_f32 v{P+14}, v{V_G}, v{V_G+2}")
    a(f"v_add_f32 v{P+15}, v{V_G+4}, v{V_G+6}")
    for q in range(4, 16, 2):
        a(f"v_add_f32 v{P+14}, v{P+14}, v{V_G+2*q}")
        a(f"v_add_f32 v{P+15}, v{P+15}, v{V_G+2*q+2}")
    a(f"v_add_f32 v{P+14}, v{P+14}, v{P+15}")
    for ps in range(1):
        cc = V_CS + 8 * ps
        split3(cc, P + 14 + ps)
        for r in (4, 5, 6, 7):
            a(f"v_mov_b32 v{cc+r}, 0")
    for b in range(2):
        bfrag(V_MB + 4 * b, P + 8 + 2 * b, None)
    for ps in range(1):
        cc = V_CS + 8 * ps
        a(f"v_permlane32_swap_b32 v{cc}, v{cc+4}")
        a(f"v_permlane32_swap_b32 v{cc+1}, v{cc+5}")
    a("s_mov_b32 exec_lo, 0")
    for b in range(2):
        a(f"v_mov_b32 v{V_MB+4*b}, 0")
        a(f"v_mov_b32 v{V_MB+4*b+1}, 0")
    a("s_mov_b64 exec, -1")
    a.label("L_c_g0")
    a(RET)
    a.label("L_c_done")
    a(f"s_lshl_b32 s{T0}, s{C['RT']}, 7")
    a(f"s_lshl_b32 s{T1}, s{S['CB']}, 3")
    a(f"s_add_u32 s{T0}, s{T0}, s{T1}")
    a(f"s_and_b32 s{T1}, s{W}, 2")
    a(f"s_lshl_b32 s{T1}, s{T1}, 1")
    a(f"s_add_u32 s{T0}, s{T0}, s{T1}")
    a(f"s_add_u32 s{T0}, s{T0}, {FL_H2}")
```
